```python
import torch

def _softmax(x, axis=-1):
    return torch.softmax(x, dim=axis)
def _gelu(x):
    return torch.nn.functional.gelu(x, approximate="tanh")
def _silu(x):
    return torch.nn.functional.silu(x)
def _sigmoid(x):
    return torch.sigmoid(x)
def _layernorm(x, axis=-1, eps=1e-5):
    m = x.mean(dim=axis, keepdim=True)
    v = x.var(dim=axis, keepdim=True, unbiased=False)
    return (x - m) / torch.sqrt(v + eps)
def _scatter_add(tgt, idx, src, axis=0):
    return tgt.clone().index_add_(axis, idx, src)
def _segment_sum(src, seg, n):
    out = torch.zeros((n,) + src.shape[1:], dtype=src.dtype)
    return out.index_add_(0, seg, src)
def _pad(x, pw):
    flat = tuple(v for pair in reversed(pw) for v in pair)
    return torch.nn.functional.pad(x, flat)

kernel_name = 'parallel_sum__ssm_conv_h3__dense_activation_gelu__prompt'

def setup_inputs():

    _w = (lambda a: (lambda t: t.to(torch.bfloat16) if t.is_floating_point() else t)(torch.as_tensor(a)))
    def _A_setup():
        B, S, D = 1, 2048, 640
        ks = 4
        return {
            "q": _w((lambda *s: torch.randn(*s, dtype=torch.bfloat16) * 0.05)(B, S, D)),
            "k": _w((lambda *s: torch.randn(*s, dtype=torch.bfloat16) * 0.2)(B, S, D)),
            "v": _w((lambda *s: torch.randn(*s, dtype=torch.bfloat16) * 0.2)(B, S, D)),
            "shift_k": _w((lambda *s: torch.randn(*s, dtype=torch.bfloat16) * 0.2)(D, ks) * 0.5),
            "ssm_k": _w((lambda *s: torch.randn(*s, dtype=torch.bfloat16) * 0.8)(D, S) * (1.0 / S ** 0.5)),
            "ssm_D": _w((lambda *s: torch.randn(*s, dtype=torch.bfloat16) * 0.2)(D)),
        }
    _A_in = _A_setup()

    def _B_setup():
        B, S, D, F = 1, 2048, 640, 1728
        return {
            "x": _w((lambda *s: torch.randn(*s, dtype=torch.bfloat16) * 0.05)(B, S, D)),
            "w1": _w((lambda *s: torch.randn(*s, dtype=torch.bfloat16) * 0.4)(D, F) * (D ** -0.5)),
            "b1": _w((lambda *s: torch.randn(*s, dtype=torch.bfloat16) * 12.8)(F) * 0.01),
            "w2": _w((lambda *s: torch.randn(*s, dtype=torch.bfloat16) * 0.2)(F, D) * (F ** -0.5)),
            "b2": _w((lambda *s: torch.randn(*s, dtype=torch.bfloat16) * 1.6)(D) * 0.01),
        }
    _B_in = _B_setup()

    return {
        "A_q": _A_in["q"],
        "A_k": _A_in["k"],
        "A_v": _A_in["v"],
        "A_shift_k": _A_in["shift_k"],
        "A_ssm_k": _A_in["ssm_k"],
        "A_ssm_D": _A_in["ssm_D"],
        "B_x": _B_in["x"],
        "B_w1": _B_in["w1"],
        "B_b1": _B_in["b1"],
        "B_w2": _B_in["w2"],
        "B_b2": _B_in["b2"],
    }

def reference(A_q, A_k, A_v, A_shift_k, A_ssm_k, A_ssm_D, B_x, B_w1, B_b1, B_w2, B_b2):
    def _A_ref(q, k, v, shift_k, ssm_k, ssm_D):
        B, S, D = q.shape
        ks = shift_k.shape[-1]
        k_pad = _pad(k, ((0, 0), (ks - 1, 0), (0, 0)))
        k_shift = torch.zeros_like(k)
        for t in range(ks):
            k_shift = k_shift + k_pad[:, t:t + S, :] * shift_k[:, ks - 1 - t][None, None, :]
        kv = k_shift * v
        L = 2 * S
        kv_pad = _pad(kv, ((0, 0), (0, S), (0, 0)))
        kf_pad = _pad(ssm_k, ((0, 0), (0, S)))
        kv_f = (lambda x, axes=(-2,-1): torch.fft.rfft2(x.float(), dim=axes))(kv_pad[:, None, :, :], axes=(1, 2))
        kf_f = (lambda x, axes=(-2,-1): torch.fft.rfft2(x.float(), dim=axes))(kf_pad[:, None, :], axes=(1, 2))
        kf_f = (lambda x, *d: x.permute(*d))(kf_f, 1, 2, 0)
        y_f = kv_f * kf_f[None, :, :, :]
        y = (lambda x, s, axes=(-2,-1): torch.fft.irfft2(x, s=s, dim=axes).to(torch.bfloat16))(y_f, (1, L), axes=(1, 2))[:, 0, :S, :]
        y = y + kv * ssm_D[None, None, :]
        return q * y

    def _B_ref(x, w1, b1, w2, b2):
        h = torch.einsum("bsd,df->bsf", x, w1) + b1
        h = _gelu(h)
        return torch.einsum("bsf,fd->bsd", h, w2) + b2

    x = A_q
    xn = _layernorm(x, axis=-1)
    return x + _A_ref(xn, A_k, A_v, A_shift_k, A_ssm_k, A_ssm_D) + _B_ref(xn, B_w1, B_b1, B_w2, B_b2)
```

```python
import re

REG = re.compile(r'(?<![\w.])([vas])(?:(\d+)(?![\w\[])|\[(\d+):(\d+)\])')
TRANS = ('v_exp_f32', 'v_log_f32', 'v_rcp_f32', 'v_rsq_f32', 'v_sqrt_f32', 'v_sin_f32', 'v_cos_f32')


def regs_of(tok):
    out = []
    for m in REG.finditer(tok):
        k = m.group(1)
        if m.group(2) is not None:
            out.append((k, int(m.group(2))))
        else:
            out += [(k, i) for i in range(int(m.group(3)), int(m.group(4)) + 1)]
    if re.search(r'\bvcc\b', tok):
        out += [('s', 'vcc')]
    if re.search(r'\bexec\b', tok):
        out += [('s', 'exec')]
    if re.search(r'\bm0\b', tok):
        out += [('s', 'm0')]
    return out


class Ins:
    __slots__ = ('text', 'op', 'cls', 'wr', 'rd', 'passes', 'srcc', 'states', 'wide_store_data', 'dpp', 'lds_dma')

    def __init__(self, text):
        self.text = text
        t = text.split(';')[0].strip()
        parts = t.split(None, 1)
        op = parts[0]
        self.op = op
        ops = [o.strip() for o in parts[1].split(',')] if len(parts) > 1 else []
        self.wr, self.rd = set(), set()
        self.passes = 0
        self.srcc = set()
        self.states = 1
        self.wide_store_data = set()
        self.dpp = '_dpp' in op or 'row_' in t or 'quad_perm' in t or 'wave_' in t
        self.lds_dma = False
        R = regs_of
        if op.startswith('v_mfma'):
            self.cls = 'mfma'
            self.passes = 8 if '32x32' in op else 4
            self.wr = set(R(ops[0]))
            self.rd = set(R(ops[1])) | set(R(ops[2])) | set(R(ops[3]))
            self.srcc = set(R(ops[3]))
        elif op.startswith('v_'):
            self.cls = 'valu'
            base = op.replace('_e32', '').replace('_e64', '').replace('_dpp', '').replace('_sdwa', '')
            if base in TRANS:
                self.cls = 'trans'
            if base.startswith('v_dot2'):
                self.cls = 'dot'
            self.wr = set(R(ops[0]))
            rest = ops[1:]
            if base.startswith('v_permlane') and 'swap' in base:
                self.wr |= set(R(ops[1]))
                self.rd |= set(R(ops[0]))
            if base in ('v_add_co_u32', 'v_addc_co_u32', 'v_sub_co_u32', 'v_subb_co_u32'):
                self.wr |= set(R(ops[1]))
                rest = ops[2:]
            for o in rest:
                self.rd |= set(R(o))
            if base in ('v_fmac_f32', 'v_dot2c_f32_bf16') or self.dpp or base == 'v_writelane_b32':
                self.rd |= set(R(ops[0]))
            if base.startswith('v_cmpx'):
                self.wr.add(('s', 'exec'))
        elif op.startswith('ds_'):
            self.cls = 'ds'
            if op.startswith('ds_read') or '_rtn' in op or 'permute' in op or 'swizzle' in op:
                self.wr = set(R(ops[0]))
                for o in ops[1:]:
                    self.rd |= set(R(o))
                if 'd16' in op:
                    self.rd |= self.wr
            else:
                for o in ops:
                    self.rd |= set(R(o))
        elif op.startswith('buffer_') or op.startswith('global_'):
            self.cls = 'vmem'
            lds = bool(re.search(r'\blds\b', t)) or 'load_lds' in op
            self.lds_dma = lds
            if 'load' in op and not lds:
                self.wr = set(R(ops[0]))
                for o in ops[1:]:
                    self.rd |= set(R(o))
                if 'd16' in op:
                    self.rd |= self.wr
            else:
                for o in ops:
                    self.rd |= set(R(o))
                if lds:
                    self.rd.add(('s', 'm0'))
                if 'store' in op and ('x3' in op or 'x4' in op):
                    self.wide_store_data = set(R(ops[0] if op.startswith('buffer_') else ops[1]))
                if 'atomic' in op and re.search(r'\bsc0\b', t):
                    self.wr = set(R(ops[0]))
        elif op.startswith('s_'):
            self.cls = 'salu'
            if op.startswith('s_load') or op.startswith('s_buffer_load') or op.startswith('s_mem') or op.startswith('s_atomic'):
                self.cls = 'smem'
            if op == 's_nop':
                self.states = int(ops[0], 0) + 1
            elif op.startswith('s_cmp') or op.startswith('s_cbranch') or op in (
                    's_waitcnt', 's_barrier', 's_endpgm', 's_branch', 's_sleep', 's_setprio', 's_bitcmp1_b32', 's_bitcmp0_b32'):
                for o in ops:
                    self.rd |= set(R(o))
            else:
                self.wr = set(R(ops[0]))
                for o in ops[1:]:
                    self.rd |= set(R(o))
                if 'saveexec' in op:
                    self.wr.add(('s', 'exec'))
        else:
            raise ValueError('unknown instruction ' + text)


def vonly(s):
    return {r for r in s if r[0] in 'va'}


def sonly(s):
    return {r for r in s if r[0] == 's'}


VALU = ('valu', 'trans', 'dot')


def need_states(p, n):
    w = 0
    pv, ps = vonly(p.wr), sonly(p.wr)
    nrv, nwv, nrs = vonly(n.rd), vonly(n.wr), sonly(n.rd)
    if p.cls in VALU:
        if pv & nrv:
            if n.cls == 'mfma':
                w = max(w, 2)
            if n.dpp or n.op.startswith('v_permlane'):
                w = max(w, 2)
            if n.op.startswith('v_readfirstlane') or n.op.startswith('v_readlane'):
                w = max(w, 1)
            if p.cls == 'trans' and n.cls in VALU:
                w = max(w, 1)
        if p.cls == 'dot' and (pv & (nrv | nwv)):
            same_chain = n.op == p.op and n.cls == 'dot' and not (pv & (nrv - nwv))
            if not same_chain:
                w = max(w, 3)
        if ps & nrs:
            if n.cls == 'vmem':
                w = max(w, 5)
            elif n.cls in VALU:
                w = max(w, 4 if ('lane' in n.op) else 2)
            elif n.cls in ('salu', 'smem'):
                w = max(w, 5 if n.op.startswith('s_cbranch') else 2)
        if ('s', 'exec') in ps:
            w = max(w, 5)
    if p.cls == 'salu':
        if ('s', 'm0') in ps and n.lds_dma:
            w = max(w, 1)
        if ('s', 'exec') in ps and (n.dpp or n.cls == 'mfma' or 'lane' in n.op):
            w = max(w, 1)
    if p.cls == 'mfma':
        big = p.passes == 8
        if n.cls == 'mfma':
            if pv & n.srcc:
                if not (pv == n.srcc and p.passes == n.passes):
                    w = max(w, 10 if big else 6)
            if pv & (nrv - n.srcc):
                w = max(w, 12 if big else 8)
            if (pv & nwv) and not (pv & n.srcc):
                w = max(w, 12 if big else 8)
        elif n.cls in VALU or n.cls in ('ds', 'vmem'):
            if pv & (nrv | nwv):
                w = max(w, 12 if big else 8)
            if n.cls in VALU and (p.srcc & nwv):
                w = max(w, 7 if big else 3)
    if p.wide_store_data and (p.wide_store_data & nwv):
        w = max(w, 2)
    return w


class Emit:
    def __init__(self):
        self.lines = []
        self.hist = []
        self.vm = []
        self.lg = []
        self.nbytes = 0
        self.auto = True
        self.nops = 0
        self.written = {('v', 0)}
        self.warn = []

    def raw(self, s):
        self.lines.append(s)

    def comment(self, s):
        self.lines.append('; ' + s)

    def label(self, name, nop=0):
        self.lines.append(name + ':')

    def forget(self):
        self.vm = []
        self.lg = []

    def _push(self, ins):
        self.lines.append('    ' + ins.text)
        self.hist.append(ins)
        if len(self.hist) > 40:
            self.hist.pop(0)

    def _pad(self, ins):
        dist = 0
        need = 0
        for p in reversed(self.hist):
            w = need_states(p, ins)
            if w - dist > need:
                need = w - dist
            dist += p.states
            if dist >= 20:
                break
        while need > 0:
            k = min(need, 16)
            self._push(Ins('s_nop %d' % (k - 1)))
            self.nops += k
            need -= k

    def _wait(self, vm=None, lg=None):
        parts = []
        if vm is not None:
            vm = min(vm, 63)
            parts.append('vmcnt(%d)' % vm)
            self.vm = self.vm[len(self.vm) - vm:] if vm < len(self.vm) else self.vm
            if vm == 0:
                self.vm = []
        if lg is not None:
            if any(o['smem'] for o in self.lg):
                lg = 0
            lg = min(lg, 15)
            parts.append('lgkmcnt(%d)' % lg)
            self.lg = self.lg[len(self.lg) - lg:] if lg < len(self.lg) else self.lg
            if lg == 0:
                self.lg = []
        if parts:
            self._push(Ins('s_waitcnt ' + ' '.join(parts)))

    def _younger(self, q, pred):
        idx = None
        for i, o in enumerate(q):
            if pred(o):
                idx = i
        return None if idx is None else len(q) - 1 - idx

    def wait_tag(self, tag, and_lg=None):
        n = self._younger(self.vm, lambda o: o['tag'] == tag)
        if n is not None or and_lg is not None:
            self._wait(vm=n, lg=and_lg)

    def wait_lg_tag(self, tag):
        n = self._younger(self.lg, lambda o: o['tag'] == tag)
        if n is not None:
            self._wait(lg=n)

    def wait_vm(self, n):
        self._wait(vm=n)

    def wait_lg(self, n=0):
        self._wait(lg=n)

    def wait_all(self):
        self._wait(vm=0, lg=0)

    def I(self, text, tag=None):
        for line in text.strip().split('\n'):
            line = line.strip()
            if not line:
                continue
            if line.endswith(':'):
                self.label(line[:-1])
                continue
            ins = Ins(line)
            touched = ins.rd | ins.wr
            if self.auto:
                nv = self._younger(self.vm, lambda o: o['wr'] & touched)
                nl = self._younger(self.lg, lambda o: o['wr'] & touched)
                if nv is not None or nl is not None:
                    self._wait(vm=nv, lg=nl)
            miss = [r for r in vonly(ins.rd) if r not in self.written and not (ins.dpp and r in ins.wr)]
            if miss:
                self.warn.append('read before write %s: %s' % (sorted(miss)[:3], line))
            self.written |= vonly(ins.wr)
            self._pad(ins)
            self._push(ins)
            if ins.cls == 'vmem':
                self.vm.append(dict(tag=tag, wr=set(ins.wr)))
                assert len(self.vm) <= 200
            elif ins.cls == 'ds':
                self.lg.append(dict(tag=tag, wr=set(ins.wr), smem=False))
            elif ins.cls == 'smem':
                self.lg.append(dict(tag=tag, wr=set(ins.wr), smem=True))

    def text(self):
        return '\n'.join(self.lines) + '\n'


def v(a, n=1):
    return 'v%d' % a if n == 1 else 'v[%d:%d]' % (a, a + n - 1)


def a(x, n=1):
    return 'a%d' % x if n == 1 else 'a[%d:%d]' % (x, x + n - 1)


def s(x, n=1):
    return 's%d' % x if n == 1 else 's[%d:%d]' % (x, x + n - 1)


def merge(main, fill, start=0, per=None):
    out = []
    gaps = max(1, len(main) - start)
    done = 0
    for i, m in enumerate(main):
        out.append(m)
        if i >= start:
            if per is None:
                want = (len(fill) * (i - start + 1) + gaps - 1) // gaps
            else:
                want = min(len(fill), done + per)
            while done < want:
                out.append(fill[done])
                done += 1
    out += fill[done:]
    return out
```

```python
import struct
import sys
from emit import Emit, v, a, s, merge

NAME = 'parallel_sum__ssm_conv_h3__dense_activation_gelu__prompt'
OPT = dict(stamps=0, stop=None)

FS, FH, FK, FW, FY = 0x0, 0x800, 0x1000, 0x1800, 0x1C00
STATS = 0x4000
STAMPS = 0x10000
UT = 0x100000
YP = 0x400000
W2P = 0x700000
HP = 0xA00000
WS_BYTES = 0x1100000
OOB = 0x40000000
SPIN_MAX = 200000

KV = 131072
KVSZ = 17408
MISC = 148480
CSX = MISC
LCNT = MISC + 512
LDS_BYTES = 149504
HBSZ, UBSZ = 4352, 4352
S_W2 = 3 * KVSZ
YB = 0
RED = 16384

sX, sSLOT, sW = 3, 4, 5
sT0, sT1 = 6, 7
pSHIFT, pSSMD, pB1, pB2, pDBG, pWS = 14, 18, 24, 28, 32, 34
rQ, rK, rV, rW1, rW2, rH, rWS, rOUT = 36, 40, 44, 48, 52, 56, 60, 64
sG4, sFH, sMU, sCC, sR, sQ, sTB, sNT0 = 68, 69, 70, 71, 72, 73, 74, 75
sKTB, sKCG = 76, 77
sA, sB, sC, sD = 78, 79, 80, 81
sSPIN, sVAL, sEARLY, sISG = 82, 83, 84, 85
sCH, sHB, sUB, sROUND = 86, 87, 88, 89
sI, sJ = 90, 91
sM = 92
sW2OFF, sST = 100, 101
sDX, sDW = 8, 9
sR2, sNU, sCT = 10, 11, 12
sHOFF = 20
sYOFF = 13
sSAVE = 0

vL = 1
vZ = 255


def f2u(x):
    return struct.unpack('<I', struct.pack('<f', x))[0]


def hexf(x):
    return '0x%08x' % f2u(x)


class Gen:
    def __init__(self, opt):
        self.o = opt
        self.e = Emit()
        self.nlab = 0
        self.nstamp = 0

    def I(self, t, tag=None):
        self.e.I(t, tag)

    def lab(self, p='L'):
        self.nlab += 1
        return '%s_%d' % (p, self.nlab)

    def run(self, seq):
        for it in seq:
            if callable(it):
                it()
            elif isinstance(it, tuple):
                self.I(it[0], it[1])
            else:
                self.I(it)

    def stamp(self, idx):
        if not self.o['stamps']:
            return
        e = self.e
        lab = self.lab('Lst')
        self.I('s_cmp_lg_u32 %s, 0' % s(sW))
        self.I('s_cbranch_scc1 ' + lab)
        e.auto = False
        self.I('s_memrealtime %s' % s(sSAVE, 2))
        e.raw('    s_waitcnt lgkmcnt(0)')
        e.lg.pop()
        self.I('v_mov_b32 v254, %s' % s(sSAVE))
        self.I('s_lshl_b32 %s, s2, 7' % s(sSAVE))
        self.I('s_add_u32 %s, %s, %d' % (s(sSAVE), s(sSAVE), STAMPS + 4 * idx))
        self.I('buffer_store_dword v254, %s, %s, %s offen' % (v(vZ), s(rWS, 4), s(sSAVE)))
        e.vm.pop()
        e.raw('    s_waitcnt vmcnt(0)') if self.o['stamps'] == 2 else None
        e.auto = True
        e.label(lab)

    def srd(self, r, p, nbytes):
        self.I('s_mov_b32 %s, %s\ns_mov_b32 %s, %s\ns_mov_b32 %s, %d\ns_mov_b32 %s, 0x20000' % (
            s(r), s(p), s(r + 1), s(p + 1), s(r + 2), nbytes, s(r + 3)))

    def poll_issue(self, vd, soff, tag=None):
        self.I('buffer_load_dword %s, %s, %s, %s offen sc1' % (v(vd), v(vZ), s(rWS, 4), soff), tag)

    def poll_check(self, vd, soff, target, dbg=False):
        ok, again = self.lab('Lok'), self.lab('Lspin')
        self.I('v_readfirstlane_b32 %s, %s' % (s(sVAL), v(vd)))
        self.I('s_mov_b32 %s, 0' % s(sSPIN))
        self.I('s_cmp_ge_u32 %s, %s' % (s(sVAL), target))
        self.I('s_cbranch_scc1 ' + ok)
        self.e.label(again)
        if dbg:
            self.e.raw('    global_load_dword %s, %s, %s sc1' % (v(vd), v(vZ), s(pDBG, 2)))
        else:
            self.e.raw('    buffer_load_dword %s, %s, %s, %s offen sc1' % (v(vd), v(vZ), s(rWS, 4), soff))
        self.e.raw('    s_waitcnt vmcnt(0)')
        self.e.raw('    v_readfirstlane_b32 %s, %s' % (s(sVAL), v(vd)))
        self.e.raw('    s_add_u32 %s, %s, 1' % (s(sSPIN), s(sSPIN)))
        self.e.raw('    s_cmp_ge_u32 %s, %d' % (s(sSPIN), SPIN_MAX))
        self.e.raw('    s_cbranch_scc1 ' + ok)
        self.e.raw('    s_cmp_lt_u32 %s, %s' % (s(sVAL), target))
        self.e.raw('    s_cbranch_scc1 ' + again)
        self.e.label(ok)

    def signal(self, soffs, vt):
        self.I('v_mov_b32 %s, 1' % v(vt))
        self.I('s_mov_b64 exec, 1')
        for so in soffs:
            self.I('buffer_atomic_add %s, %s, %s, %s offen sc1' % (v(vt), v(vZ), s(rWS, 4), so))
        self.I('s_mov_b64 exec, -1')

    def signal_wave0(self, soffs, vt):
        lab = self.lab('Lsig')
        starts = len(self.e.vm)
        self.I('s_cmp_lg_u32 %s, 0' % s(sW))
        self.I('s_cbranch_scc1 ' + lab)
        self.signal(soffs, vt)
        del self.e.vm[starts:]
        self.e.label(lab)

    def signal_last(self, cnt_off, soff, vt):
        lab = self.lab('Lsig')
        self.I('v_mov_b32 %s, 1' % v(vt))
        self.I('v_mov_b32 %s, %d' % (v(vt + 1), cnt_off))
        self.I('s_mov_b64 exec, 1')
        self.I('ds_add_rtn_u32 %s, %s, %s' % (v(vt + 1), v(vt + 1), v(vt)))
        self.I('v_readfirstlane_b32 %s, %s' % (s(sVAL), v(vt + 1)))
        self.I('s_cmp_lg_u32 %s, 3' % s(sVAL))
        self.I('s_cbranch_scc1 ' + lab)
        self.I('buffer_atomic_add %s, %s, %s, %s offen sc1' % (v(vt), v(vZ), s(rWS, 4), soff))
        self.e.vm.pop()
        self.e.label(lab)
        self.I('s_mov_b64 exec, -1')

    def entry(self):
        I = self.I
        I('s_cmp_ge_u32 s2, 256\ns_cbranch_scc1 L_end')
        I('s_load_dwordx16 s[8:23], s[0:1], 0\ns_load_dwordx8 s[24:31], s[0:1], 64\ns_load_dwordx4 s[32:35], s[0:1], 96')
        I('v_lshrrev_b32 v2, 6, v0\nv_and_b32 %s, 63, v0\nv_mov_b32 %s, 0' % (v(vL), v(vZ)))
        I('v_readfirstlane_b32 %s, v2' % s(sW))
        I('s_and_b32 %s, s2, 7\ns_lshr_b32 %s, s2, 3' % (s(sX), s(sSLOT)))
        I('s_lshr_b32 %s, %s, 1\ns_and_b32 %s, %s, 1' % (s(sG4), s(sX), s(sFH), s(sX)))
        I('s_lshr_b32 %s, %s, 3\ns_and_b32 %s, %s, 7' % (s(sMU), s(sSLOT), s(sCC), s(sSLOT)))
        I('s_lshl_b32 %s, %s, 2\ns_add_u32 %s, %s, %s' % (s(sR), s(sG4), s(sR), s(sR), s(sMU)))
        I('s_lshl_b32 %s, %s, 3\ns_add_u32 %s, %s, %s' % (s(sQ), s(sFH), s(sQ), s(sQ), s(sCC)))
        I('s_lshl_b32 %s, %s, 9\ns_lshl_b32 %s, %s, 4\ns_add_u32 %s, %s, %s' % (
            s(sTB), s(sG4), s(sT0), s(sMU), s(sTB), s(sTB), s(sT0)))
        I('v_lshrrev_b32 v2, 5, v0\nv_mul_u32_u24 v2, %d, v2\nv_and_b32 v3, 31, v0\nv_lshl_add_u32 v2, v3, 3, v2' % (64 * 1280))
        I('s_add_u32 %s, %s, %s\ns_mul_i32 %s, %s, 1280' % (s(sA), s(sTB), s(sQ), s(sA), s(sA)))
        I('v_lshrrev_b32 v6, 3, %s\nv_lshrrev_b32 v7, 5, %s\nv_lshlrev_b32 v7, 1, v7\nv_and_b32 v8, 7, %s' % (v(vL), v(vL), v(vL)))
        I('v_xor_b32 v8, v8, v7\nv_mul_u32_u24 v6, 1280, v6\nv_lshl_add_u32 v4, v8, 4, v6\nv_xor_b32 v5, 64, v4')
        self.e.wait_lg(0)
        self.srd(rQ, 8, 2621440)
        self.srd(rWS, pWS, WS_BYTES)

    def more_srds(self):
        self.srd(rK, 10, 2621440)
        self.srd(rV, 12, 2621440)
        self.srd(rW1, 22, 640 * 3456)
        self.srd(rW2, 26, 1728 * 1280)
        self.srd(rH, 16, 2621440)
        self.srd(rOUT, 30, 2621440)

    def stats_issue(self):
        for i in range(5):
            self.I('buffer_load_dwordx2 %s, v2, %s, %s offen offset:%d' % (v(10 + 2 * i, 2), s(rQ, 4), s(sA), 256 * i))

    def stats_compute(self):
        I = self.I
        I('v_mov_b32 v20, 0\nv_mov_b32 v21, 0\nv_mov_b32 v22, 0x3f803f80')
        for i in range(10):
            I('v_dot2c_f32_bf16 v20, v%d, v22' % (10 + i))
        for i in range(10):
            I('v_dot2c_f32_bf16 v21, v%d, v%d' % (10 + i, 10 + i))
        for mod in ('quad_perm:[1,0,3,2]', 'quad_perm:[2,3,0,1]', 'row_half_mirror', 'row_mirror'):
            I('v_add_f32_dpp v20, v20, v20 %s row_mask:0xf bank_mask:0xf' % mod)
            I('v_add_f32_dpp v21, v21, v21 %s row_mask:0xf bank_mask:0xf' % mod)
        I('v_mov_b32 v22, v20\nv_mov_b32 v23, v21')
        I('v_permlane16_swap_b32 v20, v22\nv_permlane16_swap_b32 v21, v23')
        I('v_add_f32 v20, v20, v22\nv_add_f32 v21, v21, v23')
        I('v_mul_f32 v20, %s, v20\nv_mul_f32 v21, %s, v21' % (hexf(1 / 640), hexf(1 / 640)))
        I('v_fma_f32 v21, -v20, v20, v21\nv_max_f32 v21, 0, v21\nv_add_f32 v21, %s, v21\nv_rsq_f32 v21, v21' % hexf(1e-5))
        I('s_lshl_b32 %s, %s, 7\ns_lshl_b32 %s, %s, 3\ns_add_u32 %s, %s, %s' % (s(sA), s(sR), s(sT0), s(sQ), s(sA), s(sA), s(sT0)))
        I('s_lshl_b32 %s, %s, 3\ns_add_u32 %s, %s, %d' % (s(sA), s(sA), s(sA), s(sA), STATS))
        I('v_lshrrev_b32 v22, 5, v0\nv_lshlrev_b32 v22, 3, v22')
        I('s_mov_b32 exec_lo, 1\ns_mov_b32 exec_hi, 1')
        I('buffer_store_dwordx2 v[20:21], v22, %s, %s offen sc1' % (s(rWS, 4), s(sA)), 'prep')
        I('s_mov_b64 exec, -1')

    def kv_task(self, kappa):
        self.I('s_and_b32 %s, %s, 31\ns_lshr_b32 %s, %s, 5' % (s(sKTB), s(kappa), s(sKCG), s(kappa)))

    def kv_issue(self, lds, vshift):
        I = self.I
        I('s_lshl_b32 %s, %s, 2\ns_add_u32 %s, %s, %s\ns_lshl_b32 %s, %s, 7' % (s(sA), s(sKCG), s(sA), s(sA), s(sW), s(sA), s(sA)))
        I('v_and_b32 v6, 15, %s\nv_lshlrev_b32 v6, 3, v6\nv_add_u32 v6, %s, v6' % (v(vL), s(sA)))
        I('global_load_dwordx2 %s, v6, %s' % (v(vshift, 2), s(pSHIFT, 2)))
        I('s_lshl_b32 %s, %s, 6\ns_mul_i32 %s, %s, 1280\ns_lshl_b32 %s, %s, 7\ns_add_u32 %s, %s, %s' % (
            s(sA), s(sKTB), s(sA), s(sA), s(sB), s(sKCG), s(sA), s(sA), s(sB)))
        I('s_sub_u32 %s, %s, %d\ns_cmp_eq_u32 %s, 0\ns_cselect_b32 %s, 0, %s\ns_cselect_b32 %s, %d, 0' % (
            s(sB), s(sA), 8 * 1280, s(sKTB), s(sB), s(sB), s(sC), OOB))
        I('v_add_u32 v7, %s, v4\ns_mov_b32 m0, %d' % (s(sC), lds))
        I('buffer_load_dwordx4 v7, %s, %s offen nt lds' % (s(rK, 4), s(sB)), 'kv')
        I('s_mul_i32 %s, %s, %d\ns_add_u32 %s, %s, %s\ns_add_u32 %s, %s, %d' % (
            s(sB), s(sW), 16 * 1280, s(sA), s(sA), s(sB), s(sB), s(sA), 8 * 1280))
        I('s_lshl_b32 %s, %s, 11' % (s(sC), s(sW)))
        I('s_add_u32 m0, %s, %d' % (s(sC), lds + 1024))
        I('buffer_load_dwordx4 v5, %s, %s offen nt lds' % (s(rK, 4), s(sA)), 'kv')
        I('s_add_u32 m0, %s, %d' % (s(sC), lds + 2048))
        I('buffer_load_dwordx4 v4, %s, %s offen nt lds' % (s(rK, 4), s(sB)), 'kv')
        I('s_add_u32 m0, %s, %d' % (s(sC), lds + 9216))
        I('buffer_load_dwordx4 v4, %s, %s offen nt lds' % (s(rV, 4), s(sA)), 'kv')
        I('s_add_u32 m0, %s, %d' % (s(sC), lds + 9216 + 1024))
        I('buffer_load_dwordx4 v5, %s, %s offen nt lds' % (s(rV, 4), s(sB)), 'kv')

    def kv_setup(self):
        I = self.I
        L = v(vL)
        I('v_and_b32 v6, 3, %s\nv_lshlrev_b32 v6, 2, v6\nv_bfe_u32 v7, %s, 2, 2\nv_add_u32 v6, v6, v7' % (L, L))
        I('v_bfe_u32 v7, %s, 4, 1\ns_lshl_b32 %s, %s, 1\nv_add_u32 v7, %s, v7' % (L, s(sA), s(sW), s(sA)))
        I('v_lshrrev_b32 v8, 5, %s' % L)
        for dst, off, sub in ((160, 8, True), (161, 6, True), (162, 72, False)):
            I('v_add_u32 v9, %d, v6' % off)
            if sub:
                I('v_sub_u32 v9, v9, v8')
            if off == 72:
                I('v_bfe_u32 v3, v6, 2, 2')
            else:
                I('v_bfe_u32 v3, v9, 2, 2')
            I('v_lshlrev_b32 v3, 1, v3\nv_xor_b32 v3, v3, v7\nv_lshlrev_b32 v3, 4, v3\nv_lshl_add_u32 %s, v9, 7, v3' % v(dst))
        I('v_bfe_u32 v6, %s, 3, 1\nv_bfe_u32 v7, %s, 4, 1\nv_bfe_u32 v9, %s, 1, 2\nv_cmp_eq_u32 vcc, v6, v7' % (L, L, L))
        I('v_cndmask_b32 v9, 7, v9, vcc')
        for d in range(4):
            I('v_cmp_eq_u32 %s, %d, v9' % (s(sM + 2 * d, 2), d))
        I('v_lshlrev_b32 v163, 4, v8\nv_and_b32 v164, 1, %s\nv_lshlrev_b32 v164, 4, v164' % L)
        I('v_cmp_gt_u32 vcc, 32, %s\nv_mov_b32 v6, 0x3f80\nv_cndmask_b32 v6, 0, v6, vcc\nv_lshlrev_b32 v6, v164, v6' % L)
        for d in range(4):
            I('v_cndmask_b32 %s, 0, v6, %s' % (v(168 + d), s(sM + 2 * d, 2)))
        I('v_and_b32 v6, 15, %s\nv_lshlrev_b32 v6, 12, v6\nv_lshrrev_b32 v7, 4, %s\nv_lshl_add_u32 v165, v7, 4, v6' % (L, L))

    def kv_weights(self, vshift):
        I = self.I
        for j in range(2):
            I('v_lshrrev_b32 v6, v163, %s\nv_and_b32 v6, 0xffff, v6\nv_lshlrev_b32 v6, v164, v6' % v(vshift + j))
            for d in range(4):
                I('v_cndmask_b32 %s, 0, v6, %s' % (v(172 + 4 * j + d), s(sM + 2 * d, 2)))

    def kv_compute(self, lds):
        I = self.I
        F = 180
        base = lds % 65536
        hi = lds - base
        regs = (160, 161, 162)
        if hi:
            I('s_mov_b32 %s, %d' % (s(sA), hi))
            for i in range(3):
                I('v_add_u32 %s, %s, %s' % (v(6 + i), s(sA), v(160 + i)))
            regs = (6, 7, 8)
        for b in range(4):
            for i in range(3):
                I('ds_read_b128 %s, %s offset:%d' % (v(F + 12 * b + 4 * i, 4), v(regs[i]), base + 2048 * b))
        KS, VT = 228, 64
        for b in range(4):
            I('v_mfma_f32_16x16x32_bf16 %s, %s, v[172:175], 0' % (v(KS + 4 * b, 4), v(F + 12 * b, 4)))
            I('v_mfma_f32_16x16x32_bf16 %s, %s, v[168:171], 0' % (v(VT + 4 * b, 4), v(F + 12 * b + 8, 4)))
            I('v_mfma_f32_16x16x32_bf16 %s, %s, v[176:179], %s' % (v(KS + 4 * b, 4), v(F + 12 * b + 4, 4), v(KS + 4 * b, 4)))
        I('s_lshl_b32 %s, %s, 2\ns_add_u32 %s, %s, %s\ns_lshl_b32 %s, %s, 16' % (s(sA), s(sKCG), s(sA), s(sA), s(sW), s(sA), s(sA)))
        I('s_lshl_b32 %s, %s, 7\ns_add_u32 %s, %s, %s\ns_add_u32 %s, %s, %d' % (s(sB), s(sKTB), s(sA), s(sA), s(sB), s(sA), s(sA), UT))
        for bp in range(2):
            for b in (2 * bp, 2 * bp + 1):
                for i in range(4):
                    I('v_mul_f32 %s, %s, %s' % (v(KS + 4 * b + i), v(KS + 4 * b + i), v(VT + 4 * b + i)))
            for b in (2 * bp, 2 * bp + 1):
                for i in range(2):
                    I('v_cvt_pk_bf16_f32 %s, %s, %s' % (v(244 + 4 * bp + 2 * (b & 1) + i), v(KS + 4 * b + 2 * i), v(KS + 4 * b + 2 * i + 1)))
            I('buffer_store_dwordx4 %s, v165, %s, %s offen offset:%d sc1' % (v(244 + 4 * bp, 4), s(rWS, 4), s(sA), 64 * bp), 'prep')

    def lds_init(self):
        self.I('v_mov_b32 v6, %d\nds_write_b64 v6, v[254:255]' % LCNT)

    def gemm2_ids(self):
        I = self.I
        I('s_lshl_b32 %s, %s, 1\ns_lshr_b32 %s, %s, 4\ns_add_u32 %s, %s, %s' % (s(sR2), s(sX), s(sT0), s(sSLOT), s(sR2), s(sR2), s(sT0)))
        I('s_bfe_u32 %s, %s, 0x10003\ns_and_b32 %s, %s, 7' % (s(sNU), s(sSLOT), s(sCT), s(sSLOT)))
        I('s_mul_i32 %s, %s, 13\ns_cmp_lg_u32 %s, 0\ns_addc_u32 %s, %s, 0' % (s(sST), s(sW), s(sW), s(sST), s(sST)))
        I('s_mul_i32 %s, %s, 54\ns_add_u32 %s, %s, %s\ns_mul_i32 %s, %s, 5120\ns_add_u32 %s, %s, %d' % (
            s(sW2OFF), s(sCT), s(sW2OFF), s(sW2OFF), s(sST), s(sW2OFF), s(sW2OFF), s(sW2OFF), s(sW2OFF), W2P))

    XA, WA, DX, DW, ASEL, CS, ST, B1 = 20, 28, 32, 36, 40, 44, 48, 52
    ACC, FR = 64, 128

    def g1_setup(self):
        I = self.I
        L = v(vL)
        I('s_mul_i32 %s, %s, 7\ns_add_u32 %s, %s, %s\ns_lshl_b32 %s, %s, 2\ns_min_u32 %s, %s, 50' % (
            s(sT0), s(sFH), s(sT0), s(sT0), s(sCC), s(sNT0), s(sT0), s(sNT0), s(sNT0)))
        I('s_lshr_b32 %s, %s, 1\ns_and_b32 %s, %s, 1' % (s(sI), s(sW), s(sJ), s(sW)))
        I('v_lshrrev_b32 v6, 3, %s\nv_mul_u32_u24 v6, %d, v6\nv_lshrrev_b32 v7, 4, %s\nv_and_b32 v8, 7, %s\nv_xor_b32 v8, v8, v7' % (L, 64 * 1280, L, L))
        I('v_lshl_add_u32 %s, v8, 4, v6' % v(self.DX))
        I('v_xor_b32 v6, 64, %s' % v(self.DX))
        I('v_add_u32 %s, 256, v6\nv_add_u32 %s, 512, %s\nv_add_u32 %s, 768, v6' % (v(self.DX + 1), v(self.DX + 2), v(self.DX), v(self.DX + 3)))
        I('v_mul_u32_u24 v6, 3456, v7\nv_lshlrev_b32 v7, 2, v7\nv_and_b32 v8, 15, %s\nv_xor_b32 v8, v8, v7\nv_lshl_add_u32 %s, v8, 4, v6' % (L, v(self.DW)))
        for i in range(1, 4):
            I('v_add_u32 %s, %d, %s' % (v(self.DW + i), i * (4 * 3456 - 1024), v(self.DW)))
        I('s_lshl_b32 %s, %s, 2\ns_add_u32 %s, %s, %s\ns_mul_i32 %s, %s, 1280' % (s(sT0), s(sW), s(sT0), s(sT0), s(sTB), s(sDX), s(sT0)))
        I('s_mul_i32 %s, %s, %d\ns_lshl_b32 %s, %s, 6\ns_add_u32 %s, %s, %s' % (s(sDW), s(sW), 16 * 3456, s(sT0), s(sNT0), s(sDW), s(sDW), s(sT0)))
        I('s_lshl_b32 %s, %s, 12' % (s(sD), s(sW)))

    def g1_dma(self, c):
        slot = (c % 4) * 32768
        out = [('s_add_u32 m0, %s, %d' % (s(sD), slot), None)]
        for i in range(4):
            out.append(('buffer_load_dwordx4 %s, %s, %s offen offset:%d lds' % (v(self.DX + i), s(rQ, 4), s(sDX), 1024 * i), 'c%d' % c))
        out.append(('s_add_u32 m0, %s, %d' % (s(sD), slot + 16384), None))
        out.append(('s_add_u32 %s, %s, 128' % (s(sDX), s(sDX)), None))
        for i in range(4):
            out.append(('buffer_load_dwordx4 %s, %s, %s offen offset:%d lds' % (v(self.DW + i), s(rW1, 4), s(sDW), 1024 * i), 'c%d' % c))
        out.append(('s_add_u32 %s, %s, %d' % (s(sDW), s(sDW), 64 * 3456), None))
        return out

    def g1_frag_setup(self):
        I = self.I
        L = v(vL)
        I('v_and_b32 v6, 31, %s\nv_bfe_u32 v7, %s, 1, 3\nv_lshrrev_b32 v8, 5, %s\nv_xor_b32 v7, v7, v8' % (L, L, L))
        I('s_lshl_b32 %s, %s, 13\nv_lshlrev_b32 v6, 7, v6\nv_add_u32 v6, %s, v6' % (s(sT0), s(sJ), s(sT0)))
        for k in range(4):
            I('v_xor_b32 v8, %d, v7\nv_lshl_add_u32 %s, v8, 4, v6\nv_add_u32 %s, 0x10000, %s' % (2 * k, v(self.XA + k), v(self.XA + 4 + k), v(self.XA + k)))
        I('v_bfe_u32 v6, %s, 2, 2\nv_lshrrev_b32 v7, 5, %s\nv_lshl_add_u32 v7, v7, 3, v6\nv_lshlrev_b32 v7, 8, v7' % (L, L))
        I('v_bfe_u32 v8, %s, 4, 1\nv_lshl_add_u32 v7, v8, 5, v7\nv_and_b32 v8, 3, %s\nv_lshl_add_u32 v7, v8, 3, v7\nv_add_u32 v7, 16384, v7' % (L, L))
        for k in range(2):
            I('v_xor_b32 v8, %s, v6' % s(sW))
            if k:
                I('v_xor_b32 v8, 1, v8')
            I('v_lshl_add_u32 %s, v8, 6, v7\nv_add_u32 %s, 0x10000, %s' % (v(self.WA + k), v(self.WA + 2 + k), v(self.WA + k)))
        I('v_and_b32 v6, 31, %s\nv_cmp_eq_u32 vcc, 0, v6\nv_cmp_eq_u32 %s, 20, v6\ns_or_b64 vcc, vcc, %s' % (L, s(sM, 2), s(sM, 2)))
        I('v_mov_b32 v6, 0x3f803f80\nv_cndmask_b32 %s, 0, v6, vcc' % v(self.ASEL))
        for k in range(1, 4):
            I('v_mov_b32 %s, %s' % (v(self.ASEL + k), v(self.ASEL)))

    def b1_issue(self):
        I = self.I
        I('s_add_u32 %s, %s, %s\ns_lshl_b32 %s, %s, 6' % (s(sA), s(sW), s(sNT0), s(sA), s(sA)))
        I('v_and_b32 v6, 31, %s\nv_lshl_add_u32 v6, v6, 1, %s\nv_xor_b32 v7, 64, v6' % (v(vL), s(sA)))
        I('global_load_ushort %s, v6, %s\nglobal_load_ushort %s, v7, %s' % (v(self.B1), s(pB1, 2), v(self.B1 + 1), s(pB1, 2)))

    def g1_reads(self, c, k, fs):
        slot = c % 4
        hi = slot // 2
        off = (slot % 2) * 32768
        F = self.FR + 16 * fs
        out = []
        xr = [('ds_read_b128 %s, %s offset:%d' % (v(F + 4 * b, 4), v(self.XA + 4 * hi + k), off + 4096 * b), None) for b in range(2)]
        wr = [('ds_read_b64_tr_b16 %s, %s offset:%d' % (v(F + 8 + 4 * aa + 2 * hf, 2), v(self.WA + 2 * hi + aa), off + 4096 * k + 1024 * hf), None)
              for aa in range(2) for hf in range(2)]
        return [wr[0], wr[1], xr[0], xr[1], wr[2], wr[3]]

    def g1_mfmas(self, fs, first):
        F = self.FR + 16 * fs
        out = []
        for aa, b in ((0, 0), (0, 1), (1, 0), (1, 1)):
            acc = v(self.ACC + 16 * (2 * aa + b), 16)
            out.append('v_mfma_f32_32x32x16_bf16 %s, %s, %s, %s' % (acc, v(F + 8 + 4 * aa, 4), v(F + 4 * b, 4), '0' if first else acc))
        return out

    def g1_cs(self, fs, first):
        F = self.FR + 16 * fs
        cs = v(self.CS, 4)
        return 'v_mfma_f32_16x16x32_bf16 %s, %s, %s, %s' % (cs, v(self.ASEL, 4), v(F + 8, 4), '0' if first else cs)

    def h_issue(self, hb, ch):
        out = ['s_add_u32 m0, %s, 32' % s(hb), 's_lshl_b32 %s, %s, 12' % (s(sA), s(ch))]
        for i in range(4):
            out.append(('buffer_load_dwordx4 v252, %s, %s offen offset:%d nt lds' % (s(rH, 4), s(sA), 1024 * i), 'h'))
        out.append('s_lshl_b32 %s, %s, 1' % (s(sA), s(ch)))
        out.append('v_mov_b32 v6, %s' % s(sA))
        return out

    def role_g(self):
        I, e = self.I, self.e
        self.stats_issue()
        self.more_srds()
        I('s_lshl_b32 %s, %s, 2\ns_add_u32 %s, %s, %s\ns_mul_i32 %s, %s, 7\ns_add_u32 %s, %s, %s' % (
            s(sT0), s(sX), s(sT0), s(sT0), s(sMU), s(sT0), s(sT0), s(sT0), s(sT0), s(sCC)))
        self.kv_task(sT0)
        self.kv_issue(KV, 166)
        self.g1_setup()
        for c in range(4):
            self.run(self.g1_dma(c))
        self.b1_issue()
        self.stamp(1)
        I('v_mov_b32 v254, 0')
        self.lds_init()
        self.kv_setup()
        self.g1_frag_setup_done = False
        self.stats_compute()
        self.stamp(2)
        self.kv_weights(166)
        e.wait_tag('kv', and_lg=0)
        I('s_barrier')
        self.kv_compute(KV)
        I('global_load_dword v56, %s, %s sc1' % (v(vZ), s(pDBG, 2)), 'z')
        self.stamp(3)
        self.g1_frag_setup()
        I('s_mul_i32 %s, %s, 7\ns_add_u32 %s, %s, %s\ns_lshl_b32 %s, %s, 1' % (s(sCH), s(sMU), s(sCH), s(sCH), s(sCC), s(sCH), s(sCH)))
        I('s_mul_i32 %s, %s, 80\ns_add_u32 %s, %s, %s\ns_add_u32 %s, %s, %s' % (s(sT0), s(sX), s(sCH), s(sCH), s(sT0), s(sCH), s(sCH), s(sI)))
        I('s_mul_i32 %s, %s, %d\ns_add_u32 %s, %s, %d' % (s(sUB), s(sW), UBSZ, s(sHB), s(sUB), KV))
        I('v_lshlrev_b32 v252, 4, %s' % v(vL))
        self.gemm2_ids()
        e.wait_tag('c0')
        I('s_barrier')
        self.run(self.g1_reads(0, 0, 0))
        self.stamp(4)
        for c in range(10):
            for k in range(4):
                fs = k & 1
                first = c == 0 and k == 0
                mf = self.g1_mfmas(fs, first)
                mf.insert(2, self.g1_cs(fs, first))
                fill = []
                if k < 3:
                    fill = self.g1_reads(c, k + 1, fs ^ 1)
                    if c == 6 and k == 0:
                        fill += self.h_issue(sHB, sCH) + ['global_load_ushort v61, v6, %s' % s(pSSMD, 2)]
                    if c == 7 and k == 0:
                        fill += ['s_lshl_b32 %s, %s, 7' % (s(sB), s(sR)), lambda: self.poll_issue(57, s(sB))]
                        fill += ['s_lshr_b32 %s, %s, 6' % (s(sC), s(sCH)), 's_lshl_b32 %s, %s, 7' % (s(sC), s(sC)),
                                 's_add_u32 %s, %s, %d' % (s(sC), s(sC), FK)]
                    if c == 9 and k == 0:
                        fill += [lambda: self.poll_issue(58, s(sC))]
                        fill += ['s_lshr_b32 %s, %s, 1' % (s(sD), s(sCT)), 's_lshl_b32 %s, %s, 7' % (s(sD), s(sD)),
                                 's_add_u32 %s, %s, %d' % (s(sD), s(sD), FW), lambda: self.poll_issue(59, s(sD))]
                    self.run(merge(mf, fill, 0, 2))
                else:
                    if c < 9:
                        e.wait_tag('prep' if c == 1 else 'c%d' % (c + 1), and_lg=0)
                        if c == 1:
                            self.poll_check(56, None, 1, dbg=True)
                        I('s_barrier')
                        fill = self.g1_reads(c + 1, 0, fs ^ 1)
                        if c + 4 < 10:
                            fill += self.g1_dma(c + 4)
                        if c == 1:
                            I('s_lshl_b32 %s, %s, 7\ns_lshl_b32 %s, %s, 7\ns_add_u32 %s, %s, %d' % (
                                s(sA), s(sR), s(sB), s(sKCG), s(sB), s(sB), FK))
                            self.signal_wave0([s(sA), s(sB)], 6)
                        if c == 8:
                            self.poll_check(57, s(sB), 16)
                            I('s_lshl_b32 %s, %s, 7\ns_lshl_b32 %s, %s, 6\ns_add_u32 %s, %s, %s' % (
                                s(sA), s(sR), s(sB), s(sJ), s(sA), s(sA), s(sB)))
                            I('s_lshl_b32 %s, %s, 3\ns_add_u32 %s, %s, %d' % (s(sA), s(sA), s(sA), s(sA), STATS))
                            I('v_and_b32 v6, 31, %s\nv_lshlrev_b32 v6, 3, v6' % v(vL))
                            for b in range(2):
                                fill.append('buffer_load_dwordx2 %s, v6, %s, %s offen offset:%d sc1' % (v(self.ST + 2 * b, 2), s(rWS, 4), s(sA), 256 * b))
                    self.run(merge(mf, fill, 0, 4))
        self.stamp(5)
        self.g1_epilogue()

    def u_issue(self, ch, dst):
        self.I('s_lshl_b32 %s, %s, 12\ns_add_u32 %s, %s, %d' % (s(sA), s(ch), s(sA), s(sA), UT))
        for i in range(4):
            self.I('buffer_load_dwordx4 %s, v252, %s, %s offen offset:%d sc1' % (v(dst + 4 * i, 4), s(rWS, 4), s(sA), 1024 * i), 'u')

    def g1_epilogue(self):
        I, e = self.I, self.e
        L = v(vL)
        UR = 224
        lab = self.lab('Lnou')
        e.wait_vm(0)
        I('v_readfirstlane_b32 %s, v58' % s(sVAL))
        I('s_cmp_ge_u32 %s, 32\ns_cselect_b32 %s, 1, 0\ns_cbranch_scc0 %s' % (s(sVAL), s(sEARLY), lab))
        self.u_issue(sCH, UR)
        del e.vm[-4:]
        e.label(lab)
        I('s_lshl_b32 %s, %s, 7\ns_add_u32 %s, %s, %d\ns_xor_b32 %s, %s, 128' % (s(sA), s(sW), s(sA), s(sA), CSX, s(sB), s(sA)))
        I('v_and_b32 v6, 31, %s\nv_lshlrev_b32 v6, 2, v6\nv_add_u32 v7, %s, v6\nv_add_u32 v8, %s, v6' % (L, s(sA), s(sB)))
        I('s_mov_b32 exec_hi, 0')
        I('ds_write_b32 v7, %s' % v(self.CS))
        I('s_mov_b32 exec_hi, -1')
        C0 = -2.0 * 0.7978845608028654 * 1.4426950408889634
        XB, KK, SG, AX = 128, 136, 140, 144
        I('s_mov_b32 %s, -1\ns_mov_b32 %s, 0' % (s(sM), s(sM + 1)))
        for b in range(2):
            m, r = v(self.ST + 2 * b), v(self.ST + 2 * b + 1)
            sg = v(SG + 2 * b)
            I('v_rcp_f32 %s, %s' % (sg, r))
            I('v_cvt_pk_bf16_f32 v9, -%s, -%s' % (m, m))
            I('v_mul_f32 %s, %s, %s' % (v(KK + 2 * b), hexf(C0), r))
            I('v_mul_f32 v3, %s, %s' % (r, r))
            I('v_and_b32 v10, 0xffff0000, v9')
            I('v_sub_f32 v10, -%s, v10' % m)
            I('v_cvt_pk_bf16_f32 v10, v10, %s' % sg)
            I('v_mul_f32 v3, %s, v3' % hexf(0.044715))
            I('v_and_b32 v11, 0xffff0000, v10')
            I('v_sub_f32 v11, %s, v11' % sg)
            I('v_cvt_pk_bf16_f32 v11, v11, 0')
            I('v_mul_f32 %s, v3, %s' % (v(KK + 2 * b + 1), v(KK + 2 * b)))
            for d in range(3):
                I('v_cndmask_b32 %s, 0, %s, %s' % (v(XB + 4 * b + d), v(9 + d), s(sM, 2)))
            I('v_mov_b32 %s, 0' % v(XB + 4 * b + 3))
        e.wait_lg(0)
        I('s_barrier')
        I('ds_read_b32 v12, v7\nds_read_b32 v13, v8')
        for aa in range(2):
            cs = v(12 + aa)
            I('v_cvt_pk_bf16_f32 v9, %s, %s\nv_and_b32 v10, 0xffff0000, v9\nv_sub_f32 v10, %s, v10' % (cs, cs, cs))
            I('v_cvt_pk_bf16_f32 %s, %s, v10' % (v(AX + 4 * aa), cs))
            I('v_and_b32 v9, 0xffff, v9\nv_lshl_or_b32 %s, %s, 16, v9' % (v(AX + 4 * aa + 1), v(self.B1 + aa)))
            I('v_mov_b32 %s, %s\nv_mov_b32 %s, 0' % (v(AX + 4 * aa + 2), v(self.B1 + aa), v(AX + 4 * aa + 3)))
        for aa in range(2):
            for b in range(2):
                acc = v(self.ACC + 16 * (2 * aa + b), 16)
                I('v_mfma_f32_32x32x16_bf16 %s, %s, %s, %s' % (acc, v(AX + 4 * aa, 4), v(XB + 4 * b, 4), acc))
        I('v_bfe_u32 v6, %s, 4, 1\nv_lshlrev_b32 v6, 10, v6\nv_lshrrev_b32 v7, 5, %s\nv_lshl_add_u32 v6, v7, 9, v6' % (L, L))
        I('v_and_b32 v7, 15, %s\nv_lshl_add_u32 v14, v7, 4, v6' % L)
        I('s_lshl_b32 %s, %s, 1\ns_add_u32 %s, %s, %s\ns_mul_i32 %s, %s, 54' % (s(sA), s(sR), s(sA), s(sA), s(sJ), s(sA), s(sA)))
        I('s_lshl_b32 %s, %s, 1\ns_add_u32 %s, %s, %s\ns_add_u32 %s, %s, %s' % (s(sB), s(sI), s(sB), s(sB), s(sNT0), s(sA), s(sA), s(sB)))
        I('s_add_u32 %s, %s, %s\ns_xor_b32 %s, %s, 1\ns_add_u32 %s, %s, %s' % (s(sB), s(sA), s(sJ), s(sT0), s(sJ), s(sA), s(sA), s(sT0)))
        I('s_lshl_b32 %s, %s, 12\ns_add_u32 %s, %s, %d\ns_lshl_b32 %s, %s, 12\ns_add_u32 %s, %s, %d' % (
            s(sB), s(sB), s(sB), s(sB), HP, s(sA), s(sA), s(sA), s(sA), HP))
        I('s_cmp_eq_u32 %s, 14\ns_cselect_b32 %s, %d, 0\ns_cmp_eq_u32 %s, 0\ns_cselect_b32 %s, %s, 0' % (
            s(sQ), s(sT0), OOB, s(sI), s(sT0), s(sT0)))
        I('v_add_u32 v14, %s, v14' % s(sT0))
        self.stamp(6)
        T = 160
        for aa in range(2):
            for b in range(2):
                acc = self.ACC + 16 * (2 * aa + b)
                kk, sg = v(KK + 2 * b, 2), v(SG + 2 * b, 2)
                for c in range(2):
                    prs = [acc + 8 * c + 2 * j for j in range(4)]
                    tp = [T + 16 * c + 2 * j for j in range(4)]
                    tq = [T + 16 * c + 8 + 2 * j for j in range(4)]
                    out = 192 + 8 * (2 * aa + b) + 4 * c
                    for p, t in zip(prs, tp):
                        I('v_pk_mul_f32 %s, %s, %s' % (v(t, 2), v(p, 2), v(p, 2)))
                    for p, t in zip(prs, tp):
                        I('v_pk_fma_f32 %s, %s, %s, %s op_sel:[0,1,0] op_sel_hi:[1,1,0]' % (v(t, 2), v(t, 2), kk, kk))
                    for p, t in zip(prs, tp):
                        I('v_pk_mul_f32 %s, %s, %s' % (v(t, 2), v(t, 2), v(p, 2)))
                    for t in tp:
                        I('v_exp_f32 %s, %s\nv_exp_f32 %s, %s' % (v(t), v(t), v(t + 1), v(t + 1)))
                    for t in tp:
                        I('v_pk_fma_f32 %s, %s, %s, %s op_sel:[0,0,0] op_sel_hi:[1,0,0]' % (v(t, 2), v(t, 2), sg, sg))
                    for t in tp:
                        I('v_rcp_f32 %s, %s\nv_rcp_f32 %s, %s' % (v(t), v(t), v(t + 1), v(t + 1)))
                    for p, t, u in zip(prs, tp, tq):
                        I('v_pk_mul_f32 %s, %s, %s' % (v(u, 2), v(t, 2), v(p, 2)))
                    for j, u in enumerate(tq):
                        I('v_cvt_pk_bf16_f32 %s, %s, %s' % (v(out + j), v(u), v(u + 1)))
                    I('buffer_store_dwordx4 %s, v14, %s, %s offen offset:%d sc1' % (
                        v(out, 4), s(rWS, 4), s(sB if aa == 0 else sA), 2048 * b + 256 * c), 'H')
        self.stamp(7)
        late, both = self.lab('Llate'), self.lab('Lboth')
        I('s_cmp_eq_u32 %s, 0\ns_cbranch_scc1 %s' % (s(sEARLY), late))
        e.raw('    s_waitcnt vmcnt(8)')
        I('s_branch ' + both)
        e.label(late)
        self.poll_check(58, s(sC), 32)
        self.u_issue(sCH, UR)
        del e.vm[-4:]
        e.raw('    s_waitcnt vmcnt(0)')
        e.label(both)
        self.conv_stage(sHB, sUB, UR, 61)
        self.poll_check(59, s(sD), 8)
        I('s_mov_b32 %s, 1\ns_mov_b32 %s, 2\ns_mov_b64 vcc, -1' % (s(sISG), s(sROUND)))
        self.stamp(8)
        I('s_branch L_conv')

    def conv_stage(self, hb, ub, ur, vD):
        I = self.I
        L = v(vL)
        I('v_lshrrev_b32 v6, 2, %s\nv_lshlrev_b32 v6, 6, v6\nv_and_b32 v7, 3, %s\nv_lshl_add_u32 v6, v7, 3, v6' % (L, L))
        I('s_add_u32 %s, %s, 256\nv_add_u32 v6, %s, v6\nv_add_u32 v7, 2048, v6' % (s(sT0), s(ub), s(sT0)))
        self.e.wait_tag('h')
        I('v_mov_b32 v8, %s\nds_read_u16 v9, v8 offset:32' % s(hb))
        for i in range(4):
            I('ds_write2_b64 %s, %s, %s offset0:%d offset1:%d' % (v(6 + i // 2), v(ur + 4 * i, 2), v(ur + 4 * i + 2, 2), 128 * (i & 1), 128 * (i & 1) + 4))
        I('v_lshl_add_u32 v10, %s, 2, %s\nds_write_b32 v10, %s' % (L, s(ub), v(vZ)))
        I('v_and_b32 v10, 7, %s\nv_lshl_add_u32 v10, v10, 2, %s\nds_write_b32 v10, %s' % (L, s(hb), v(vZ)))
        I('v_lshlrev_b32 v9, 16, v9\nv_lshlrev_b32 v10, 16, %s\nv_add_f32 v9, v9, v10\nv_cvt_pk_bf16_f32 v9, v9, v9' % v(vD))
        I('ds_write_b16 v8, v9 offset:32')

    def role_s(self):
        I, e = self.I, self.e
        L = v(vL)
        lab = self.lab('Lnoz')
        I('s_cmp_lg_u32 s2, 56\ns_cbranch_scc1 %s\ns_cmp_lg_u32 %s, 0\ns_cbranch_scc1 %s' % (lab, s(sW), lab))
        I('v_lshlrev_b32 v6, 7, %s\nbuffer_store_dword %s, v6, %s, 0 offen sc1' % (L, v(vZ), s(rWS, 4)))
        e.vm.pop()
        e.label(lab)
        self.stats_issue()
        self.more_srds()
        I('s_lshl_b32 %s, %s, 2\ns_add_u32 %s, %s, %s' % (s(sD), s(sX), s(sD), s(sD), s(sMU)))
        for t in range(3):
            I('s_mul_i32 %s, %s, 3\ns_add_u32 %s, %s, %d' % (s(sT0), s(sD), s(sT0), s(sT0), 224 + t))
            self.kv_task(sT0)
            self.kv_issue(t * KVSZ, 80 + 2 * t)
        for i in range(10):
            I('v_add_u32 v6, %d, %s\nv_mul_u32_u24 v7, 3277, v6\nv_lshrrev_b32 v7, 16, v7\nv_mul_u32_u24 v8, 20, v7\nv_sub_u32 v8, v6, v8' % (64 * i, L))
            I('v_mul_u32_u24 v7, 1280, v7\nv_lshl_add_u32 v7, v8, 4, v7\nv_subrev_u32 %s, %d, v7' % (v(24 + i), 1024 * (i % 4)))
        I('s_lshr_b32 %s, %s, 2\ns_lshl_b32 %s, %s, 2\ns_add_u32 %s, %s, %s' % (s(sI), s(sD), s(sI), s(sI), s(sI), s(sI), s(sW)))
        I('s_and_b32 %s, %s, 3' % (s(sJ), s(sD)))
        I('s_mul_i32 %s, %s, %d\ns_mul_i32 %s, %s, 320\ns_add_u32 %s, %s, %s' % (s(sA), s(sI), 32 * 1280, s(sB), s(sJ), s(sA), s(sA), s(sB)))
        I('s_mul_i32 %s, %s, 20480\ns_add_u32 %s, %s, %d' % (s(sC), s(sW), s(sC), s(sC), S_W2))
        for u in range(2):
            for i in range(10):
                if i % 4 == 0:
                    I('s_add_u32 m0, %s, %d' % (s(sC), 10240 * u + 1024 * i))
                I('buffer_load_dwordx4 %s, %s, %s offen offset:%d nt lds' % (v(24 + i), s(rW2, 4), s(sA), 1024 * (i % 4)), 'w2')
            if u == 0:
                I('s_add_u32 %s, %s, %d' % (s(sA), s(sA), 32 * 32 * 1280))
        self.stamp(1)
        I('v_mov_b32 v254, 0')
        self.lds_init()
        self.kv_setup()
        self.stats_compute()
        lab = self.lab('Lnoz')
        I('s_cmp_lg_u32 s2, 56\ns_cbranch_scc1 %s\ns_cmp_lg_u32 %s, 0\ns_cbranch_scc1 %s' % (lab, s(sW), lab))
        I('v_mov_b32 v6, 1\ns_mov_b64 exec, 1\nglobal_store_dword %s, v6, %s sc1\ns_mov_b64 exec, -1' % (v(vZ), s(pDBG, 2)))
        e.vm.pop()
        e.label(lab)
        self.stamp(2)
        e.wait_tag('kv', and_lg=0)
        I('s_barrier')
        for t in range(3):
            I('s_mul_i32 %s, %s, 3\ns_add_u32 %s, %s, %d' % (s(sT0), s(sD), s(sT0), s(sT0), 224 + t))
            self.kv_task(sT0)
            self.kv_weights(80 + 2 * t)
            self.kv_compute(t * KVSZ)
            I('s_lshl_b32 %s, %s, 7\ns_add_u32 %s, %s, %d' % (s(sHOFF + t), s(sKCG), s(sHOFF + t), s(sHOFF + t), FK))
        I('global_load_dword v56, %s, %s sc1' % (v(vZ), s(pDBG, 2)), 'z')
        self.stamp(3)
        I('v_lshrrev_b32 v6, 4, %s\nv_and_b32 v7, 1, v6\nv_lshlrev_b32 v7, 4, v7\nv_lshrrev_b32 v6, 1, v6\nv_lshl_add_u32 v7, v6, 2, v7' % L)
        I('v_bfe_u32 v6, %s, 2, 2\nv_add_u32 v7, v7, v6\nv_mul_u32_u24 v7, 320, v7\nv_and_b32 v6, 3, %s\nv_lshl_add_u32 v7, v6, 3, v7' % (L, L))
        I('s_mul_i32 %s, %s, 20480\ns_add_u32 %s, %s, %d\nv_add_u32 v7, %s, v7' % (s(sC), s(sW), s(sC), s(sC), S_W2, s(sC)))
        e.wait_tag('w2')
        for u in range(2):
            for n in range(10):
                for hf in range(2):
                    I('ds_read_b64_tr_b16 %s, v7 offset:%d' % (v(64 + 40 * u + 4 * n + 2 * hf, 2), 10240 * u + 2560 * hf + 32 * n))
        self.poll_check(56, None, 1, dbg=True)
        e.wait_vm(0)
        I('s_barrier')
        I('s_lshl_b32 %s, %s, 7' % (s(sA), s(sR)))
        self.signal_wave0([s(sA), s(sHOFF), s(sHOFF + 1), s(sHOFF + 2)], 6)
        I('v_lshlrev_b32 v252, 4, %s' % L)
        I('s_mul_i32 %s, %s, 108\ns_add_u32 %s, %s, %s\ns_mul_i32 %s, %s, 5120\ns_add_u32 %s, %s, %d' % (
            s(sA), s(sJ), s(sA), s(sA), s(sI), s(sA), s(sA), s(sA), s(sA), W2P))
        skip = self.lab('Lone')
        for u in range(2):
            if u:
                I('s_cmp_ge_u32 %s, 22\ns_cbranch_scc1 %s' % (s(sI), skip))
            for half in range(2):
                I('s_add_u32 %s, %s, %d\ns_add_u32 %s, %s, 4096' % (s(sB), s(sA), 32 * 5120 * u + 54 * 5120 * half, s(sC), s(sB)))
                for n in range(5):
                    I('buffer_store_dwordx4 %s, v252, %s, %s offen offset:%d sc1' % (
                        v(64 + 40 * u + 20 * half + 4 * n, 4), s(rWS, 4), s(sB if n < 4 else sC), 1024 * (n % 4)))
        e.label(skip)
        e.wait_all()
        I('s_barrier')
        I('s_lshl_b32 %s, %s, 7\ns_add_u32 %s, %s, %d' % (s(sA), s(sJ), s(sA), s(sA), FW))
        self.signal_wave0([s(sA)], 6)
        self.stamp(4)
        self.gemm2_ids()
        I('s_mul_i32 %s, %s, 80\ns_mul_i32 %s, %s, 6\ns_add_u32 %s, %s, %s\ns_add_u32 %s, %s, 56' % (
            s(sCH), s(sX), s(sT0), s(sMU), s(sCH), s(sCH), s(sT0), s(sCH), s(sCH)))
        I('s_lshr_b32 %s, %s, 6\ns_lshl_b32 %s, %s, 7\ns_add_u32 %s, %s, %d' % (s(sB), s(sCH), s(sB), s(sB), s(sB), s(sB), FK))
        I('s_add_u32 %s, %s, 5\ns_lshr_b32 %s, %s, 6\ns_lshl_b32 %s, %s, 7\ns_add_u32 %s, %s, %d' % (
            s(sC), s(sCH), s(sC), s(sC), s(sC), s(sC), s(sC), s(sC), FK))
        I('s_lshr_b32 %s, %s, 1\ns_lshl_b32 %s, %s, 7\ns_add_u32 %s, %s, %d' % (s(sD), s(sCT), s(sD), s(sD), s(sD), s(sD), FW))
        I('s_lshr_b32 %s, %s, 1\ns_add_u32 %s, %s, %s' % (s(sT0), s(sW), s(sCH), s(sCH), s(sT0)))
        I('s_mul_i32 %s, %s, %d\ns_add_u32 %s, %s, %d' % (s(sHB), s(sW), HBSZ + UBSZ, s(sUB), s(sHB), HBSZ))
        self.poll_issue(57, s(sB))
        self.poll_issue(58, s(sC))
        STEP = 4 * (HBSZ + UBSZ)
        for r in range(3):
            I('s_add_u32 %s, %s, %d\ns_add_u32 %s, %s, %d' % (s(sI), s(sHB), r * STEP, s(sJ), s(sCH), 2 * r))
            self.run(self.h_issue(sI, sJ))
            I('global_load_ushort %s, v6, %s' % (v(61 + r), s(pSSMD, 2)))
        self.poll_check(57, s(sB), 32)
        self.poll_check(58, s(sC), 32)
        for r in range(3):
            I('s_add_u32 %s, %s, %d' % (s(sJ), s(sCH), 2 * r))
            self.u_issue(sJ, 64 + 16 * r)
        self.poll_issue(57, s(sD))
        for r in range(3):
            I('s_add_u32 %s, %s, %d\ns_add_u32 %s, %s, %d' % (s(sI), s(sHB), r * STEP, s(sJ), s(sUB), r * STEP))
            self.conv_stage(sI, sJ, 64 + 16 * r, 61 + r)
        self.poll_check(57, s(sD), 8)
        I('s_mov_b32 %s, 0\ns_mov_b32 %s, 0\ns_mov_b64 vcc, 0' % (s(sISG), s(sROUND)))
        self.stamp(8)

    def conv(self):
        I, e = self.I, self.e
        L = v(vL)
        e.label('L_conv')
        e.forget()
        e.vm = [dict(tag='H', wr=set()) for _ in range(8)]
        e.lg = [dict(tag=None, wr=set(), smem=False)]
        I('v_bfe_u32 v2, %s, 2, 2\nv_lshrrev_b32 v6, 4, %s\nv_lshlrev_b32 v7, 1, v6\nv_sub_u32 v2, v2, v7\nv_lshlrev_b32 v2, 5, v2' % (L, L))
        I('v_and_b32 v7, 3, %s\nv_lshl_add_u32 v2, v7, 3, v2\ns_add_u32 %s, %s, 224\nv_add_u32 v2, %s, v2\nv_add_u32 v3, 2048, v2' % (L, s(sT0), s(sUB), s(sT0)))
        I('v_bfe_u32 v8, %s, 2, 2\nv_sub_u32 v7, v7, v8\nv_lshlrev_b32 v7, 3, v7\nv_lshl_add_u32 v4, v6, 6, v7' % L)
        I('s_add_u32 %s, %s, 32\nv_add_u32 v4, %s, v4' % (s(sT0), s(sHB), s(sT0)))
        I('v_lshrrev_b32 v6, 3, %s\nv_mul_u32_u24 v6, %d, v6\nv_and_b32 v7, 7, %s\nv_lshl_add_u32 v5, v7, 4, v6' % (L, 640 * 128, L))
        I('s_lshl_b32 %s, %s, 7\ns_add_u32 %s, %s, %d' % (s(sYOFF), s(sCH), s(sYOFF), s(sYOFF), YP))
        I('s_lshl_b32 %s, %s, 7\ns_add_u32 %s, %s, %d' % (s(sD), s(sR2), s(sD), s(sD), FH))
        I('s_mov_b32 %s, %s' % (s(sC), s(sW2OFF)))
        e.wait_lg(0)
        I('s_bitcmp1_b32 %s, 0\ns_cbranch_scc1 L_convB' % s(sW))
        vm0, hist0 = list(e.vm), list(e.hist)
        keep = {('v', i) for i in (0, 1, 2, 3, 4, 5, 252, 255)}
        e.written = set(keep)
        self.conv_body(list(range(8)) + list(range(23, 32)), carry=(23,))
        I('s_branch L_convE')
        e.label('L_convB')
        e.vm, e.lg, e.hist = list(vm0), [], list(hist0)
        e.written = set(keep)
        self.conv_body(list(range(7, 24)), carry=(7,))
        e.label('L_convE')
        nxt = self.lab('Lg2')
        I('s_cmp_ge_u32 %s, 2\ns_cbranch_scc1 %s' % (s(sROUND), nxt))
        STEP = 4 * (HBSZ + UBSZ)
        I('s_add_u32 %s, %s, 1\ns_add_u32 %s, %s, 2\ns_add_u32 %s, %s, %d\ns_add_u32 %s, %s, %d' % (
            s(sROUND), s(sROUND), s(sCH), s(sCH), s(sHB), s(sHB), STEP, s(sUB), s(sUB), STEP))
        I('s_cmp_eq_u32 %s, 2\ns_cselect_b64 vcc, -1, 0' % s(sROUND))
        I('s_branch L_conv')
        e.label(nxt)

    def conv_body(self, tiles, carry):
        I, e = self.I, self.e
        ACC, HF, UF, NU = 16, 96, 160, 4
        T1, T2, YV, YPK = 176, 178, 180, 184
        acc = {t: ACC + 4 * i for i, t in enumerate(tiles)}
        mmax = max(tiles)
        nsig = mmax // 2 + 1

        def uread(m):
            return 'ds_read2_b64 %s, %s offset0:%d offset1:%d' % (v(UF + 4 * (m % NU), 4), v(2 + m // 16), 16 * (m % 16) + 4, 16 * (m % 16))

        def hread(sg):
            return ['ds_read_b64_tr_b16 %s, v4 offset:%d' % (v(HF + 4 * sg + 2 * hf, 2), 256 * sg + 32 * hf) for hf in range(2)]

        steps = []
        for m in range(mmax + 1):
            ts = [t for t in tiles if t >= m and (t - m) % 2 == 0]
            steps.append(ts)
        order = []
        for m in range(2):
            for t in steps[m]:
                if (t - m) // 2 not in order:
                    order.append((t - m) // 2)
        rest = [sg for sg in range(nsig) if sg not in order]
        rest.sort(reverse=True)
        I(uread(0))
        for sg in order[:3]:
            for x in hread(sg):
                I(x)
        I(uread(1))
        pend_h = [x for sg in order[3:] + rest for x in hread(sg)]

        def post(t):
            z = acc[t]
            cur, prv = t & 1, (t & 1) ^ 1
            out = []
            dpp = ' row_mask:0xf bank_mask:0xf'
            has_prev = (t - 1) in acc and t not in carry
            chain = [(T1 + cur, z + 3, (acc[t - 1] + 3) if has_prev else None, z + 2),
                     (T2 + cur, T1 + cur, T1 + prv, z + 1)]
            if t not in carry:
                chain.append((YV + (t & 1), T2 + cur, T2 + prv, z))
            for d, src, psrc, add in chain:
                if has_prev:
                    out.append('v_add_f32_dpp %s, %s, %s wave_ror:1%s' % (v(d), v(psrc), v(add), dpp))
            for d, src, psrc, add in chain:
                out.append('v_add_f32_dpp %s, %s, %s wave_shr:1%s%s' % (v(d), v(src), v(add), dpp, '' if has_prev else ' bound_ctrl:0'))
            if t not in carry and t & 1:
                out.append('v_cvt_pk_bf16_f32 %s, %s, %s' % (v(YPK + 4 * ((t >> 3) & 1) + ((t & 7) >> 1)), v(YV), v(YV + 1)))
                if t & 7 == 7:
                    g = t >> 3
                    out.append('s_add_u32 %s, %s, %d' % (s(sT0), s(sYOFF), g * 8 * 640 * 128))
                    out.append(('buffer_store_dwordx4 %s, v5, %s, %s offen sc1' % (v(YPK + 4 * (g & 1), 4), s(rWS, 4), s(sT0)), 'y'))
            return out

        def w2group(g):
            def f():
                lab = self.lab('Lw')
                I('s_cbranch_vccz ' + lab)
                for i in range(4):
                    I('buffer_load_dwordx4 %s, v252, %s, %s offen offset:%d sc1' % (a(16 * g + 4 * i, 4), s(rWS, 4), s(sC), 1024 * i))
                I('s_add_u32 %s, %s, 4096' % (s(sC), s(sC)))
                e.label(lab)
            return f

        def hsignal():
            lab = self.lab('Lh')
            I('s_cmp_eq_u32 %s, 0\ns_cbranch_scc1 %s' % (s(sISG), lab))
            e.wait_tag('H')
            I('s_lshl_b32 %s, %s, 7\ns_add_u32 %s, %s, %d' % (s(sT0), s(sR), s(sT0), s(sT0), FH))
            lg = list(e.lg)
            self.signal_last(LCNT, s(sT0), 6)
            e.lg = lg
            e.label(lab)

        total = sum(len(x) for x in steps)
        done = 0
        ng = 0
        hs_at = self.o.get('hs_at', 30)
        signalled = False
        polled = False
        pending_post = []
        for m, ts in enumerate(steps):
            mf = []
            for t in ts:
                sg = (t - m) // 2
                first = m < 2
                mf.append('v_mfma_f32_16x16x32_bf16 %s, %s, %s, %s' % (
                    v(acc[t], 4), v(UF + 4 * (m % NU), 4), v(HF + 4 * sg, 4), '0' if first else v(acc[t], 4)))
            fill = []
            if m + 2 <= mmax:
                fill.append(uread(m + 2))
            take = len(pend_h) if m >= 1 else min(len(pend_h), 2 * len(mf))
            if m < 2:
                seq = []
                k = 0
                for i, x in enumerate(mf):
                    need = HF + 4 * ((ts[i] - m) // 2)
                    while any(('v[%d:' % need) in p or ('v[%d:' % (need + 2)) in p for p in pend_h):
                        seq.append(pend_h.pop(0))
                    seq.append(x)
                    for _ in range(2):
                        if pend_h:
                            seq.append(pend_h.pop(0))
                    if i == 0:
                        seq += fill
                self.run(seq + pending_post)
                pending_post = []
            else:
                fill += pend_h[:4]
                pend_h = pend_h[4:]
                while ng < 16 and done >= (ng * (total - 24)) // 16:
                    fill.append(w2group(ng))
                    ng += 1
                if not signalled and done >= hs_at:
                    fill.append(hsignal)
                    signalled = True
                if not polled and m >= mmax - 3:
                    fill.append(lambda: self.poll_issue(253, s(sD)))
                    polled = True
                self.run(merge(mf, fill + pending_post, 0))
                pending_post = []
            done += len(mf)
            if m in acc:
                pending_post = post(m)
        assert ng == 16 and signalled and polled and not pend_h
        self.run(pending_post)

    def gemm2(self):
        I, e = self.I, self.e
        L = v(vL)
        ACC, WX, HR, NR, XN = 16, 96, 120, 7, 232
        e.forget()
        e.vm = [dict(tag='poll', wr={('v', 253)}), dict(tag='y', wr=set())]
        self.stamp(9)
        e.wait_lg(0)
        I('s_barrier')
        for i in range(6):
            if i == 4:
                I('s_add_u32 %s, %s, 4096' % (s(sC), s(sC)))
            I('buffer_load_dwordx4 %s, v252, %s, %s offen offset:%d sc1' % (v(WX + 4 * i, 4), s(rWS, 4), s(sC), 1024 * (i % 4)))
        I('s_lshr_b32 %s, %s, 2\ns_lshl_b32 %s, %s, 9\ns_and_b32 %s, %s, 3\ns_lshl_b32 %s, %s, 4\ns_add_u32 %s, %s, %s' % (
            s(sA), s(sR2), s(sA), s(sA), s(sB), s(sR2), s(sB), s(sB), s(sA), s(sA), s(sB)))
        I('s_lshl_b32 %s, %s, 3\ns_add_u32 %s, %s, %s\ns_lshl_b32 %s, %s, 1\ns_add_u32 %s, %s, %s' % (
            s(sB), s(sNU), s(sA), s(sA), s(sB), s(sB), s(sW), s(sA), s(sA), s(sB)))
        I('s_mul_i32 %s, %s, 1280\ns_mul_i32 %s, %s, 160\ns_add_u32 %s, %s, %s' % (s(sA), s(sA), s(sB), s(sCT), s(sT1), s(sA), s(sB)))
        I('v_and_b32 v6, 7, %s\nv_lshlrev_b32 v6, 6, v6\nv_bfe_u32 v7, %s, 3, 1\nv_add_u32 v6, v6, v7\nv_mul_u32_u24 v6, 1280, v6' % (L, L))
        I('v_lshrrev_b32 v7, 4, %s\nv_lshlrev_b32 v7, 3, v7\nv_add_u32 v2, v6, v7\nv_add_u32 v3, %s, v7' % (L, s(sB)))
        RAW = HR + 16 * (NR - 2)
        for n in range(5):
            I('buffer_load_dwordx2 %s, v2, %s, %s offen offset:%d' % (v(RAW + 2 * n, 2), s(rQ, 4), s(sT1), 32 * n))
        for n in range(5):
            I('global_load_dwordx2 %s, v3, %s offset:%d' % (v(RAW + 10 + 2 * n, 2), s(pB2, 2), 32 * n))
        I('s_lshl_b32 %s, %s, 1\ns_add_u32 %s, %s, %s\ns_mul_i32 %s, %s, 54\ns_add_u32 %s, %s, %s' % (
            s(sA), s(sR2), s(sA), s(sA), s(sNU), s(sA), s(sA), s(sA), s(sA), s(sST)))
        I('s_lshl_b32 %s, %s, 12\ns_add_u32 %s, %s, %d' % (s(sA), s(sA), s(sHOFF), s(sA), HP))
        for t in range(4):
            I('s_add_u32 %s, %s, %d\ns_and_b32 %s, %s, 3\ns_lshl_b32 %s, %s, 10\nv_add_u32 %s, %s, v252' % (
                s(sA), s(sW), t + 1, s(sA), s(sA), s(sA), s(sA), v(8 + t), s(sA)))
        I('s_cmp_ge_u32 %s, 2\ns_cselect_b32 %s, %d, 0' % (s(sW), s(sA), OOB))
        for t in range(4):
            I('v_add_u32 %s, %s, %s' % (v(12 + t), s(sA), v(8 + t)))
        for i in range(60):
            I('v_mov_b32 %s, 0' % v(ACC + i))
        self.poll_check(253, s(sD), 14)
        self.stamp(10)

        def hload(st):
            out = []
            for t in range(4):
                out.append('buffer_load_dwordx4 %s, %s, %s, %s offen sc1' % (
                    v(HR + 16 * (st % NR) + 4 * t, 4), v((12 if st == 0 else 8) + t), s(rWS, 4), s(sHOFF)))
            out.append('s_add_u32 %s, %s, 4096' % (s(sHOFF), s(sHOFF)))
            return out
        for st in range(NR - 2):
            self.run(hload(st))
        I('s_lshl_b32 %s, %s, 1\ns_add_u32 %s, %s, %s\ns_lshl_b32 %s, %s, 2\ns_add_u32 %s, %s, %s' % (
            s(sA), s(sR2), s(sA), s(sA), s(sNU), s(sA), s(sA), s(sA), s(sA), s(sW)))
        I('s_lshl_b32 %s, %s, 7\ns_add_u32 %s, %s, %d\nv_and_b32 v6, 15, %s\nv_lshlrev_b32 v6, 3, v6' % (s(sA), s(sA), s(sA), s(sA), STATS, L))
        I('buffer_load_dwordx2 v[4:5], v6, %s, %s offen sc1' % (s(rWS, 4), s(sA)))
        for n in range(5):
            for h in range(2):
                x, b = RAW + 2 * n + h, RAW + 10 + 2 * n + h
                d, o = XN + 4 * n + 2 * h, ACC + 60 + 4 * n + 2 * h
                I('v_lshlrev_b32 %s, 16, %s\nv_and_b32 %s, 0xffff0000, %s' % (v(d), v(x), v(d + 1), v(x)))
                I('v_lshlrev_b32 %s, 16, %s\nv_and_b32 %s, 0xffff0000, %s' % (v(o), v(b), v(o + 1), v(b)))
                I('v_pk_add_f32 %s, %s, %s' % (v(o, 2), v(o, 2), v(d, 2)))
        for st in range(NR - 2, NR):
            self.run(hload(st))
        e.wait_tag('y')
        I('s_lshl_b32 %s, %s, 7\ns_add_u32 %s, %s, %d' % (s(sT0), s(sX), s(sT0), s(sT0), FY))
        self.signal_last(LCNT + 4, s(sT0), 6)
        I('s_lshl_b32 %s, %s, 7\ns_add_u32 %s, %s, %d' % (s(sD), s(sCT), s(sD), s(sD), FY))

        def wfrag(st, n):
            fi = 5 * st + n
            return a(4 * fi, 4) if fi < 64 else v(WX + 4 * (fi - 64), 4)

        def mfma(st, t, n):
            c = v(ACC + 4 * (5 * t + n), 4)
            return 'v_mfma_f32_16x16x32_bf16 %s, %s, %s, %s' % (c, wfrag(st, n), v(HR + 16 * (st % NR) + 4 * t, 4), c)

        TAIL = 3
        for st in range(14 - TAIL):
            mf = [mfma(st, t, n) for t in range(4) for n in range(5)]
            fill = []
            if st == 2:
                fill += ['v_mul_f32 v4, v4, v5'] + ['v_fma_f32 %s, %s, v5, -v4' % (v(XN + i), v(XN + i)) for i in range(20)]
            if st == 7:
                fill.append(lambda: self.poll_issue(253, s(sD)))
                fill += ['s_lshl_b32 %s, %s, 1' % (s(sA), s(sR2)), 's_add_u32 %s, %s, %s' % (s(sA), s(sA), s(sNU)),
                         's_mul_i32 %s, %s, 8' % (s(sA), s(sA)), 's_add_u32 %s, %s, %s' % (s(sA), s(sA), s(sCT)),
                         's_mul_i32 %s, %s, 10240' % (s(sA), s(sA)), 's_add_u32 %s, %s, %d' % (s(sYOFF), s(sA), YP),
                         'v_lshlrev_b32 v6, 4, v0', 's_cmp_ge_u32 %s, 2' % s(sW), 's_cselect_b32 %s, %d, 8192' % (s(sA), OOB),
                         'v_add_u32 v7, %s, v6' % s(sA),
                         'v_lshrrev_b32 v12, 3, v0', 'v_mul_u32_u24 v12, 144, v12', 'v_and_b32 v13, 7, v0', 'v_lshl_add_u32 v12, v13, 4, v12']
            if st == 8:
                for t in range(3):
                    fill += ['s_add_u32 %s, %s, %d' % (s(sA), s(sW), t + 1), 's_and_b32 %s, %s, 3' % (s(sA), s(sA)),
                             's_mul_i32 %s, %s, 15360' % (s(sA), s(sA)), 's_add_u32 %s, %s, %d' % (s(sA), s(sA), RED + 5120 * t),
                             'v_add_u32 %s, %s, v252' % (v(8 + t), s(sA))]
                fill += ['s_mul_i32 %s, %s, 15360' % (s(sA), s(sW)), 's_add_u32 %s, %s, %d' % (s(sA), s(sA), RED),
                         'v_add_u32 v11, %s, v252' % s(sA),
                         'v_lshrrev_b32 v13, 2, %s' % L, 'v_mul_u32_u24 v13, 144, v13', 'v_and_b32 v14, 3, %s' % L,
                         'v_lshl_add_u32 v13, v14, 3, v13', 's_lshl_b32 %s, %s, 5' % (s(sA), s(sW)), 'v_add_u32 v13, %s, v13' % s(sA)]
            if st + NR < 14:
                self.run(merge(mf, fill, 0))
                self.run(hload(st + NR))
            else:
                self.run(merge(mf, fill, 0))
        YR = HR + 16 * ((14 - TAIL - 1) % NR)
        self.poll_check(253, s(sD), 32)
        self.stamp(11)
        I('s_add_u32 %s, %s, 4096' % (s(sA), s(sYOFF)))
        I('buffer_load_dwordx4 %s, v6, %s, %s offen sc1' % (v(YR, 4), s(rWS, 4), s(sYOFF)))
        I('buffer_load_dwordx4 %s, v6, %s, %s offen sc1' % (v(YR + 4, 4), s(rWS, 4), s(sA)))
        I('buffer_load_dwordx4 %s, v7, %s, %s offen sc1' % (v(YR + 8, 4), s(rWS, 4), s(sYOFF)))
        pend = []
        for t in range(4):
            mf = [mfma(st, t, n) for n in range(5) for st in range(14 - TAIL, 14)]
            self.run(merge(mf, pend, 2))
            pend = ['ds_write_b128 %s, %s offset:%d' % (v(8 + t), v(ACC + 4 * (5 * t + n), 4), 1024 * n) for n in range(5)] if t < 3 else []
        for i in range(3):
            I('ds_write_b128 v12, %s offset:%d' % (v(YR + 4 * i, 4), YB + 32 * 144 * i))
        e.wait_lg(0)
        I('s_barrier')
        self.stamp(12)
        P = HR
        YT = 96
        for n in range(5):
            I('ds_read_b64_tr_b16 %s, v13 offset:%d' % (v(YT + 2 * n, 2), YB + 16 * 144 * n))
            for t in range(3):
                I('ds_read_b128 %s, v11 offset:%d' % (v(P + 12 * n + 4 * t, 4), 5120 * t + 1024 * n))
        for n in range(5):
            o = ACC + 60 + 4 * n
            for h in range(2):
                y = YT + 2 * n + h
                I('v_lshlrev_b32 %s, 16, %s\nv_and_b32 %s, 0xffff0000, %s' % (v(6), v(y), v(7), v(y)))
                I('v_pk_fma_f32 %s, %s, v[6:7], %s' % (v(o + 2 * h, 2), v(XN + 4 * n + 2 * h, 2), v(o + 2 * h, 2)))
            for h in range(2):
                p = P + 12 * n + 2 * h
                I('v_pk_add_f32 %s, %s, %s' % (v(p, 2), v(p, 2), v(p + 4, 2)))
                I('v_pk_add_f32 %s, %s, %s' % (v(o + 2 * h, 2), v(o + 2 * h, 2), v(p + 8, 2)))
            for h in range(2):
                I('v_pk_add_f32 %s, %s, %s' % (v(o + 2 * h, 2), v(o + 2 * h, 2), v(P + 12 * n + 2 * h, 2)))
            for h in range(2):
                I('v_cvt_pk_bf16_f32 %s, %s, %s' % (v(ACC + 2 * n + h), v(o + 2 * h), v(o + 2 * h + 1)))
            I('buffer_store_dwordx2 %s, v2, %s, %s offen offset:%d' % (v(ACC + 2 * n, 2), s(rOUT, 4), s(sT1), 32 * n))
        self.stamp(13)

    def build(self):
        e = self.e
        k = NAME + '_kernel'
        e.raw('; @launch grid=(256,1,1) block=(256,1,1) lds=%d' % LDS_BYTES)
        e.raw('.amdgcn_target "amdgcn-amd-amdhsa--gfx950"')
        e.raw('.text\n.globl %s\n.p2align 8\n.type %s,@function\n%s:' % (k, k, k))
        self.entry()
        self.stamp(0)
        self.I('s_cmp_eq_u32 %s, 7\ns_cbranch_scc1 L_roleS' % s(sCC))
        hist = list(e.hist)
        self.role_g()
        e.label('L_roleS')
        e.written = {('v', i) for i in (0, 1, 2, 4, 5, 255)}
        e.forget()
        e.hist = hist
        self.role_s()
        self.conv()
        self.gemm2()
        e.label('L_end')
        e.raw('    s_endpgm')
        e.raw('''.section .rodata,"a"
.p2align 6
.amdhsa_kernel %s
  .amdhsa_next_free_vgpr 512
  .amdhsa_next_free_sgpr 102
  .amdhsa_accum_offset 256
  .amdhsa_group_segment_fixed_size 0
  .amdhsa_kernarg_size 112
  .amdhsa_user_sgpr_count 2
  .amdhsa_user_sgpr_kernarg_segment_ptr 1
  .amdhsa_system_sgpr_workgroup_id_x 1
.end_amdhsa_kernel''' % k)
        return e.text()


if __name__ == '__main__':
    out = sys.argv[1]
    opt = dict(OPT)
    for kv in sys.argv[2:]:
        key, val = kv.split('=')
        opt[key] = int(val)
    g = Gen(opt)
    open(out, 'w').write(g.build())
    print('written', out, 'nop states', g.e.nops)
    for w in g.e.warn:
        print('WARN', w)
```

```python
import struct
import sys
from emit import Emit, v, a, s, merge

NAME = 'parallel_sum__ssm_conv_h3__dense_activation_gelu__prompt'
OPT = dict(stamps=0, stop=None)

FS, FH, FK, FW, FY = 0x0, 0x800, 0x1000, 0x1800, 0x1C00
STATS = 0x4000
STAMPS = 0x10000
UT = 0x100000
YP = 0x400000
W2P = 0x700000
HP = 0xA00000
WS_BYTES = 0x1100000
OOB = 0x40000000
SPIN_MAX = 200000

KV = 131072
KVSZ = 17408
MISC = 148480
CSX = MISC
LCNT = MISC + 512
LDS_BYTES = 149504
HBSZ, UBSZ = 4352, 4352
S_W2 = 3 * KVSZ
YB = 0
RED = 16384

sX, sSLOT, sW = 3, 4, 5
sT0, sT1 = 6, 7
pSHIFT, pSSMD, pB1, pB2, pDBG, pWS = 14, 18, 24, 28, 32, 34
rQ, rK, rV, rW1, rW2, rH, rWS, rOUT = 36, 40, 44, 48, 52, 56, 60, 64
sG4, sFH, sMU, sCC, sR, sQ, sTB, sNT0 = 68, 69, 70, 71, 72, 73, 74, 75
sKTB, sKCG = 76, 77
sA, sB, sC, sD = 78, 79, 80, 81
sSPIN, sVAL, sEARLY, sISG = 82, 83, 84, 85
sCH, sHB, sUB, sROUND = 86, 87, 88, 89
sI, sJ = 90, 91
sM = 92
sW2OFF, sST = 100, 101
sDX, sDW = 8, 9
sR2, sNU, sCT = 10, 11, 12
sHOFF = 20
sYOFF = 13
sSAVE = 0

vL = 1
vZ = 255


def f2u(x):
    return struct.unpack('<I', struct.pack('<f', x))[0]


def hexf(x):
    return '0x%08x' % f2u(x)


class Gen:
    def __init__(self, opt):
        self.o = opt
        self.e = Emit()
        self.nlab = 0
        self.nstamp = 0

    def I(self, t, tag=None):
        self.e.I(t, tag)

    def lab(self, p='L'):
        self.nlab += 1
        return '%s_%d' % (p, self.nlab)

    def run(self, seq):
        for it in seq:
            if callable(it):
                it()
            elif isinstance(it, tuple):
                self.I(it[0], it[1])
            else:
                self.I(it)

    def stamp(self, idx):
        if not self.o['stamps']:
            return
        e = self.e
        lab = self.lab('Lst')
        self.I('s_cmp_lg_u32 %s, 0' % s(sW))
        self.I('s_cbranch_scc1 ' + lab)
        e.auto = False
        self.I('s_memrealtime %s' % s(sSAVE, 2))
        e.raw('    s_waitcnt lgkmcnt(0)')
        e.lg.pop()
        self.I('v_mov_b32 v254, %s' % s(sSAVE))
        self.I('s_lshl_b32 %s, s2, 7' % s(sSAVE))
        self.I('s_add_u32 %s, %s, %d' % (s(sSAVE), s(sSAVE), STAMPS + 4 * idx))
        self.I('buffer_store_dword v254, %s, %s, %s offen' % (v(vZ), s(rWS, 4), s(sSAVE)))
        e.vm.pop()
        e.raw('    s_waitcnt vmcnt(0)') if self.o['stamps'] == 2 else None
        e.auto = True
        e.label(lab)

    def srd(self, r, p, nbytes):
        self.I('s_mov_b32 %s, %s\ns_mov_b32 %s, %s\ns_mov_b32 %s, %d\ns_mov_b32 %s, 0x20000' % (
            s(r), s(p), s(r + 1), s(p + 1), s(r + 2), nbytes, s(r + 3)))

    def poll_issue(self, vd, soff, tag=None):
        self.I('buffer_load_dword %s, %s, %s, %s offen sc1' % (v(vd), v(vZ), s(rWS, 4), soff), tag)

    def poll_check(self, vd, soff, target, dbg=False):
        ok, again = self.lab('Lok'), self.lab('Lspin')
        self.I('v_readfirstlane_b32 %s, %s' % (s(sVAL), v(vd)))
        self.I('s_mov_b32 %s, 0' % s(sSPIN))
        self.I('s_cmp_ge_u32 %s, %s' % (s(sVAL), target))
        self.I('s_cbranch_scc1 ' + ok)
        self.e.label(again)
        if dbg:
            self.e.raw('    global_load_dword %s, %s, %s sc1' % (v(vd), v(vZ), s(pDBG, 2)))
        else:
            self.e.raw('    buffer_load_dword %s, %s, %s, %s offen sc1' % (v(vd), v(vZ), s(rWS, 4), soff))
        self.e.raw('    s_waitcnt vmcnt(0)')
        self.e.raw('    v_readfirstlane_b32 %s, %s' % (s(sVAL), v(vd)))
        self.e.raw('    s_add_u32 %s, %s, 1' % (s(sSPIN), s(sSPIN)))
        self.e.raw('    s_cmp_ge_u32 %s, %d' % (s(sSPIN), SPIN_MAX))
        self.e.raw('    s_cbranch_scc1 ' + ok)
        self.e.raw('    s_cmp_lt_u32 %s, %s' % (s(sVAL), target))
        self.e.raw('    s_cbranch_scc1 ' + again)
        self.e.label(ok)

    def signal(self, soffs, vt):
        self.I('v_mov_b32 %s, 1' % v(vt))
        self.I('s_mov_b64 exec, 1')
        for so in soffs:
            self.I('buffer_atomic_add %s, %s, %s, %s offen sc1' % (v(vt), v(vZ), s(rWS, 4), so))
        self.I('s_mov_b64 exec, -1')

    def signal_wave0(self, soffs, vt):
        lab = self.lab('Lsig')
        starts = len(self.e.vm)
        self.I('s_cmp_lg_u32 %s, 0' % s(sW))
        self.I('s_cbranch_scc1 ' + lab)
        self.signal(soffs, vt)
        del self.e.vm[starts:]
        self.e.label(lab)

    def signal_last(self, cnt_off, soff, vt):
        lab = self.lab('Lsig')
        self.I('v_mov_b32 %s, 1' % v(vt))
        self.I('v_mov_b32 %s, %d' % (v(vt + 1), cnt_off))
        self.I('s_mov_b64 exec, 1')
        self.I('ds_add_rtn_u32 %s, %s, %s' % (v(vt + 1), v(vt + 1), v(vt)))
        self.I('v_readfirstlane_b32 %s, %s' % (s(sVAL), v(vt + 1)))
        self.I('s_cmp_lg_u32 %s, 3' % s(sVAL))
        self.I('s_cbranch_scc1 ' + lab)
        self.I('buffer_atomic_add %s, %s, %s, %s offen sc1' % (v(vt), v(vZ), s(rWS, 4), soff))
        self.e.vm.pop()
        self.e.label(lab)
        self.I('s_mov_b64 exec, -1')

    def entry(self):
        I = self.I
        I('s_cmp_ge_u32 s2, 256\ns_cbranch_scc1 L_end')
        I('s_load_dwordx16 s[8:23], s[0:1], 0\ns_load_dwordx8 s[24:31], s[0:1], 64\ns_load_dwordx4 s[32:35], s[0:1], 96')
        I('v_lshrrev_b32 v2, 6, v0\nv_and_b32 %s, 63, v0\nv_mov_b32 %s, 0' % (v(vL), v(vZ)))
        I('v_readfirstlane_b32 %s, v2' % s(sW))
        I('s_and_b32 %s, s2, 7\ns_lshr_b32 %s, s2, 3' % (s(sX), s(sSLOT)))
        I('s_lshr_b32 %s, %s, 1\ns_and_b32 %s, %s, 1' % (s(sG4), s(sX), s(sFH), s(sX)))
        I('s_lshr_b32 %s, %s, 3\ns_and_b32 %s, %s, 7' % (s(sMU), s(sSLOT), s(sCC), s(sSLOT)))
        I('s_lshl_b32 %s, %s, 2\ns_add_u32 %s, %s, %s' % (s(sR), s(sG4), s(sR), s(sR), s(sMU)))
        I('s_lshl_b32 %s, %s, 3\ns_add_u32 %s, %s, %s' % (s(sQ), s(sFH), s(sQ), s(sQ), s(sCC)))
        I('s_lshl_b32 %s, %s, 9\ns_lshl_b32 %s, %s, 4\ns_add_u32 %s, %s, %s' % (
            s(sTB), s(sG4), s(sT0), s(sMU), s(sTB), s(sTB), s(sT0)))
        I('v_lshrrev_b32 v2, 5, v0\nv_mul_u32_u24 v2, %d, v2\nv_and_b32 v3, 31, v0\nv_lshl_add_u32 v2, v3, 3, v2' % (64 * 1280))
        I('s_add_u32 %s, %s, %s\ns_mul_i32 %s, %s, 1280' % (s(sA), s(sTB), s(sQ), s(sA), s(sA)))
        I('v_lshrrev_b32 v6, 3, %s\nv_lshrrev_b32 v7, 5, %s\nv_lshlrev_b32 v7, 1, v7\nv_and_b32 v8, 7, %s' % (v(vL), v(vL), v(vL)))
        I('v_xor_b32 v8, v8, v7\nv_mul_u32_u24 v6, 1280, v6\nv_lshl_add_u32 v4, v8, 4, v6\nv_xor_b32 v5, 64, v4')
        self.e.wait_lg(0)
        self.srd(rQ, 8, 2621440)
        self.srd(rWS, pWS, WS_BYTES)

    def more_srds(self):
        self.srd(rK, 10, 2621440)
        self.srd(rV, 12, 2621440)
        self.srd(rW1, 22, 640 * 3456)
        self.srd(rW2, 26, 1728 * 1280)
        self.srd(rH, 16, 2621440)
        self.srd(rOUT, 30, 2621440)

    def stats_issue(self):
        for i in range(5):
            self.I('buffer_load_dwordx2 %s, v2, %s, %s offen offset:%d' % (v(10 + 2 * i, 2), s(rQ, 4), s(sA), 256 * i))

    def stats_compute(self):
        I = self.I
        I('v_mov_b32 v20, 0\nv_mov_b32 v21, 0\nv_mov_b32 v22, 0x3f803f80')
        for i in range(10):
            I('v_dot2c_f32_bf16 v20, v%d, v22' % (10 + i))
        for i in range(10):
            I('v_dot2c_f32_bf16 v21, v%d, v%d' % (10 + i, 10 + i))
        for mod in ('quad_perm:[1,0,3,2]', 'quad_perm:[2,3,0,1]', 'row_half_mirror', 'row_mirror'):
            I('v_add_f32_dpp v20, v20, v20 %s row_mask:0xf bank_mask:0xf' % mod)
            I('v_add_f32_dpp v21, v21, v21 %s row_mask:0xf bank_mask:0xf' % mod)
        I('v_mov_b32 v22, v20\nv_mov_b32 v23, v21')
        I('v_permlane16_swap_b32 v20, v22\nv_permlane16_swap_b32 v21, v23')
        I('v_add_f32 v20, v20, v22\nv_add_f32 v21, v21, v23')
        I('v_mul_f32 v20, %s, v20\nv_mul_f32 v21, %s, v21' % (hexf(1 / 640), hexf(1 / 640)))
        I('v_fma_f32 v21, -v20, v20, v21\nv_max_f32 v21, 0, v21\nv_add_f32 v21, %s, v21\nv_rsq_f32 v21, v21' % hexf(1e-5))
        I('s_lshl_b32 %s, %s, 7\ns_lshl_b32 %s, %s, 3\ns_add_u32 %s, %s, %s' % (s(sA), s(sR), s(sT0), s(sQ), s(sA), s(sA), s(sT0)))
        I('s_lshl_b32 %s, %s, 3\ns_add_u32 %s, %s, %d' % (s(sA), s(sA), s(sA), s(sA), STATS))
        I('v_lshrrev_b32 v22, 5, v0\nv_lshlrev_b32 v22, 3, v22')
        I('s_mov_b32 exec_lo, 1\ns_mov_b32 exec_hi, 1')
        I('buffer_store_dwordx2 v[20:21], v22, %s, %s offen sc1' % (s(rWS, 4), s(sA)), 'prep')
        I('s_mov_b64 exec, -1')

    def kv_task(self, kappa):
        self.I('s_and_b32 %s, %s, 31\ns_lshr_b32 %s, %s, 5' % (s(sKTB), s(kappa), s(sKCG), s(kappa)))

    def kv_issue(self, lds, vshift):
        I = self.I
        I('s_lshl_b32 %s, %s, 2\ns_add_u32 %s, %s, %s\ns_lshl_b32 %s, %s, 7' % (s(sA), s(sKCG), s(sA), s(sA), s(sW), s(sA), s(sA)))
        I('v_and_b32 v6, 15, %s\nv_lshlrev_b32 v6, 3, v6\nv_add_u32 v6, %s, v6' % (v(vL), s(sA)))
        I('global_load_dwordx2 %s, v6, %s' % (v(vshift, 2), s(pSHIFT, 2)))
        I('s_lshl_b32 %s, %s, 6\ns_mul_i32 %s, %s, 1280\ns_lshl_b32 %s, %s, 7\ns_add_u32 %s, %s, %s' % (
            s(sA), s(sKTB), s(sA), s(sA), s(sB), s(sKCG), s(sA), s(sA), s(sB)))
        I('s_sub_u32 %s, %s, %d\ns_cmp_eq_u32 %s, 0\ns_cselect_b32 %s, 0, %s\ns_cselect_b32 %s, %d, 0' % (
            s(sB), s(sA), 8 * 1280, s(sKTB), s(sB), s(sB), s(sC), OOB))
        I('v_add_u32 v7, %s, v4\ns_mov_b32 m0, %d' % (s(sC), lds))
        I('buffer_load_dwordx4 v7, %s, %s offen nt lds' % (s(rK, 4), s(sB)), 'kv')
        I('s_mul_i32 %s, %s, %d\ns_add_u32 %s, %s, %s\ns_add_u32 %s, %s, %d' % (
            s(sB), s(sW), 16 * 1280, s(sA), s(sA), s(sB), s(sB), s(sA), 8 * 1280))
        I('s_lshl_b32 %s, %s, 11' % (s(sC), s(sW)))
        I('s_add_u32 m0, %s, %d' % (s(sC), lds + 1024))
        I('buffer_load_dwordx4 v5, %s, %s offen nt lds' % (s(rK, 4), s(sA)), 'kv')
        I('s_add_u32 m0, %s, %d' % (s(sC), lds + 2048))
        I('buffer_load_dwordx4 v4, %s, %s offen nt lds' % (s(rK, 4), s(sB)), 'kv')
        I('s_add_u32 m0, %s, %d' % (s(sC), lds + 9216))
        I('buffer_load_dwordx4 v4, %s, %s offen nt lds' % (s(rV, 4), s(sA)), 'kv')
        I('s_add_u32 m0, %s, %d' % (s(sC), lds + 9216 + 1024))
        I('buffer_load_dwordx4 v5, %s, %s offen nt lds' % (s(rV, 4), s(sB)), 'kv')

    def kv_setup(self):
        I = self.I
        L = v(vL)
        I('v_and_b32 v6, 3, %s\nv_lshlrev_b32 v6, 2, v6\nv_bfe_u32 v7, %s, 2, 2\nv_add_u32 v6, v6, v7' % (L, L))
        I('v_bfe_u32 v7, %s, 4, 1\ns_lshl_b32 %s, %s, 1\nv_add_u32 v7, %s, v7' % (L, s(sA), s(sW), s(sA)))
        I('v_lshrrev_b32 v8, 5, %s' % L)
        for dst, off, sub in ((160, 8, True), (161, 6, True), (162, 72, False)):
            I('v_add_u32 v9, %d, v6' % off)
            if sub:
                I('v_sub_u32 v9, v9, v8')
            if off == 72:
                I('v_bfe_u32 v3, v6, 2, 2')
            else:
                I('v_bfe_u32 v3, v9, 2, 2')
            I('v_lshlrev_b32 v3, 1, v3\nv_xor_b32 v3, v3, v7\nv_lshlrev_b32 v3, 4, v3\nv_lshl_add_u32 %s, v9, 7, v3' % v(dst))
        I('v_bfe_u32 v6, %s, 3, 1\nv_bfe_u32 v7, %s, 4, 1\nv_bfe_u32 v9, %s, 1, 2\nv_cmp_eq_u32 vcc, v6, v7' % (L, L, L))
        I('v_cndmask_b32 v9, 7, v9, vcc')
        for d in range(4):
            I('v_cmp_eq_u32 %s, %d, v9' % (s(sM + 2 * d, 2), d))
        I('v_lshlrev_b32 v163, 4, v8\nv_and_b32 v164, 1, %s\nv_lshlrev_b32 v164, 4, v164' % L)
        I('v_cmp_gt_u32 vcc, 32, %s\nv_mov_b32 v6, 0x3f80\nv_cndmask_b32 v6, 0, v6, vcc\nv_lshlrev_b32 v6, v164, v6' % L)
        for d in range(4):
            I('v_cndmask_b32 %s, 0, v6, %s' % (v(168 + d), s(sM + 2 * d, 2)))
        I('v_and_b32 v6, 15, %s\nv_lshlrev_b32 v6, 12, v6\nv_lshrrev_b32 v7, 4, %s\nv_lshl_add_u32 v165, v7, 4, v6' % (L, L))

    def kv_weights(self, vshift):
        I = self.I
        for j in range(2):
            I('v_lshrrev_b32 v6, v163, %s\nv_and_b32 v6, 0xffff, v6\nv_lshlrev_b32 v6, v164, v6' % v(vshift + j))
            for d in range(4):
                I('v_cndmask_b32 %s, 0, v6, %s' % (v(172 + 4 * j + d), s(sM + 2 * d, 2)))

    def kv_compute(self, lds):
        I = self.I
        F = 180
        base = lds % 65536
        hi = lds - base
        regs = (160, 161, 162)
        if hi:
            I('s_mov_b32 %s, %d' % (s(sA), hi))
            for i in range(3):
                I('v_add_u32 %s, %s, %s' % (v(6 + i), s(sA), v(160 + i)))
            regs = (6, 7, 8)
        for b in range(4):
            for i in range(3):
                I('ds_read_b128 %s, %s offset:%d' % (v(F + 12 * b + 4 * i, 4), v(regs[i]), base + 2048 * b))
        KS, VT = 228, 64
        for b in range(4):
            I('v_mfma_f32_16x16x32_bf16 %s, %s, v[172:175], 0' % (v(KS + 4 * b, 4), v(F + 12 * b, 4)))
            I('v_mfma_f32_16x16x32_bf16 %s, %s, v[168:171], 0' % (v(VT + 4 * b, 4), v(F + 12 * b + 8, 4)))
            I('v_mfma_f32_16x16x32_bf16 %s, %s, v[176:179], %s' % (v(KS + 4 * b, 4), v(F + 12 * b + 4, 4), v(KS + 4 * b, 4)))
        I('s_lshl_b32 %s, %s, 2\ns_add_u32 %s, %s, %s\ns_lshl_b32 %s, %s, 16' % (s(sA), s(sKCG), s(sA), s(sA), s(sW), s(sA), s(sA)))
        I('s_lshl_b32 %s, %s, 7\ns_add_u32 %s, %s, %s\ns_add_u32 %s, %s, %d' % (s(sB), s(sKTB), s(sA), s(sA), s(sB), s(sA), s(sA), UT))
        for bp in range(2):
            for b in (2 * bp, 2 * bp + 1):
                for i in range(4):
                    I('v_mul_f32 %s, %s, %s' % (v(KS + 4 * b + i), v(KS + 4 * b + i), v(VT + 4 * b + i)))
            for b in (2 * bp, 2 * bp + 1):
                for i in range(2):
                    I('v_cvt_pk_bf16_f32 %s, %s, %s' % (v(244 + 4 * bp + 2 * (b & 1) + i), v(KS + 4 * b + 2 * i), v(KS + 4 * b + 2 * i + 1)))
            I('buffer_store_dwordx4 %s, v165, %s, %s offen offset:%d sc1' % (v(244 + 4 * bp, 4), s(rWS, 4), s(sA), 64 * bp), 'prep')

    def lds_init(self):
        self.I('v_mov_b32 v6, %d\nds_write_b64 v6, v[254:255]' % LCNT)

    def gemm2_ids(self):
        I = self.I
        I('s_lshl_b32 %s, %s, 1\ns_lshr_b32 %s, %s, 4\ns_add_u32 %s, %s, %s' % (s(sR2), s(sX), s(sT0), s(sSLOT), s(sR2), s(sR2), s(sT0)))
        I('s_bfe_u32 %s, %s, 0x10003\ns_and_b32 %s, %s, 7' % (s(sNU), s(sSLOT), s(sCT), s(sSLOT)))
        I('s_mul_i32 %s, %s, 13\ns_cmp_lg_u32 %s, 0\ns_addc_u32 %s, %s, 0' % (s(sST), s(sW), s(sW), s(sST), s(sST)))
        I('s_mul_i32 %s, %s, 54\ns_add_u32 %s, %s, %s\ns_mul_i32 %s, %s, 5120\ns_add_u32 %s, %s, %d' % (
            s(sW2OFF), s(sCT), s(sW2OFF), s(sW2OFF), s(sST), s(sW2OFF), s(sW2OFF), s(sW2OFF), s(sW2OFF), W2P))

    XA, WA, DX, DW, ASEL, CS, ST, B1 = 20, 28, 32, 36, 40, 44, 48, 52
    ACC, FR = 64, 128

    def g1_setup(self):
        I = self.I
        L = v(vL)
        I('s_mul_i32 %s, %s, 7\ns_add_u32 %s, %s, %s\ns_lshl_b32 %s, %s, 2\ns_min_u32 %s, %s, 50' % (
            s(sT0), s(sFH), s(sT0), s(sT0), s(sCC), s(sNT0), s(sT0), s(sNT0), s(sNT0)))
        I('s_lshr_b32 %s, %s, 1\ns_and_b32 %s, %s, 1' % (s(sI), s(sW), s(sJ), s(sW)))
        I('v_lshrrev_b32 v6, 3, %s\nv_mul_u32_u24 v6, %d, v6\nv_lshrrev_b32 v7, 4, %s\nv_and_b32 v8, 7, %s\nv_xor_b32 v8, v8, v7' % (L, 64 * 1280, L, L))
        I('v_lshl_add_u32 %s, v8, 4, v6' % v(self.DX))
        I('v_xor_b32 v6, 64, %s' % v(self.DX))
        I('v_add_u32 %s, 256, v6\nv_add_u32 %s, 512, %s\nv_add_u32 %s, 768, v6' % (v(self.DX + 1), v(self.DX + 2), v(self.DX), v(self.DX + 3)))
        I('v_mul_u32_u24 v6, 3456, v7\nv_lshlrev_b32 v7, 2, v7\nv_and_b32 v8, 15, %s\nv_xor_b32 v8, v8, v7\nv_lshl_add_u32 %s, v8, 4, v6' % (L, v(self.DW)))
        for i in range(1, 4):
            I('v_add_u32 %s, %d, %s' % (v(self.DW + i), i * (4 * 3456 - 1024), v(self.DW)))
        I('s_lshl_b32 %s, %s, 2\ns_add_u32 %s, %s, %s\ns_mul_i32 %s, %s, 1280' % (s(sT0), s(sW), s(sT0), s(sT0), s(sTB), s(sDX), s(sT0)))
        I('s_mul_i32 %s, %s, %d\ns_lshl_b32 %s, %s, 6\ns_add_u32 %s, %s, %s' % (s(sDW), s(sW), 16 * 3456, s(sT0), s(sNT0), s(sDW), s(sDW), s(sT0)))
        I('s_lshl_b32 %s, %s, 12' % (s(sD), s(sW)))

    def g1_dma(self, c):
        slot = (c % 4) * 32768
        out = [('s_add_u32 m0, %s, %d' % (s(sD), slot), None)]
        for i in range(4):
            out.append(('buffer_load_dwordx4 %s, %s, %s offen offset:%d lds' % (v(self.DX + i), s(rQ, 4), s(sDX), 1024 * i), 'c%d' % c))
        out.append(('s_add_u32 m0, %s, %d' % (s(sD), slot + 16384), None))
        out.append(('s_add_u32 %s, %s, 128' % (s(sDX), s(sDX)), None))
        for i in range(4):
            out.append(('buffer_load_dwordx4 %s, %s, %s offen offset:%d lds' % (v(self.DW + i), s(rW1, 4), s(sDW), 1024 * i), 'c%d' % c))
        out.append(('s_add_u32 %s, %s, %d' % (s(sDW), s(sDW), 64 * 3456), None))
        return out

    def g1_frag_setup(self):
        I = self.I
        L = v(vL)
        I('v_and_b32 v6, 31, %s\nv_bfe_u32 v7, %s, 1, 3\nv_lshrrev_b32 v8, 5, %s\nv_xor_b32 v7, v7, v8' % (L, L, L))
        I('s_lshl_b32 %s, %s, 13\nv_lshlrev_b32 v6, 7, v6\nv_add_u32 v6, %s, v6' % (s(sT0), s(sJ), s(sT0)))
        for k in range(4):
            I('v_xor_b32 v8, %d, v7\nv_lshl_add_u32 %s, v8, 4, v6\nv_add_u32 %s, 0x10000, %s' % (2 * k, v(self.XA + k), v(self.XA + 4 + k), v(self.XA + k)))
        I('v_bfe_u32 v6, %s, 2, 2\nv_lshrrev_b32 v7, 5, %s\nv_lshl_add_u32 v7, v7, 3, v6\nv_lshlrev_b32 v7, 8, v7' % (L, L))
        I('v_bfe_u32 v8, %s, 4, 1\nv_lshl_add_u32 v7, v8, 5, v7\nv_and_b32 v8, 3, %s\nv_lshl_add_u32 v7, v8, 3, v7\nv_add_u32 v7, 16384, v7' % (L, L))
        for k in range(2):
            I('v_xor_b32 v8, %s, v6' % s(sW))
            if k:
                I('v_xor_b32 v8, 1, v8')
            I('v_lshl_add_u32 %s, v8, 6, v7\nv_add_u32 %s, 0x10000, %s' % (v(self.WA + k), v(self.WA + 2 + k), v(self.WA + k)))
        I('v_and_b32 v6, 31, %s\nv_cmp_eq_u32 vcc, 0, v6\nv_cmp_eq_u32 %s, 20, v6\ns_or_b64 vcc, vcc, %s' % (L, s(sM, 2), s(sM, 2)))
        I('v_mov_b32 v6, 0x3f803f80\nv_cndmask_b32 %s, 0, v6, vcc' % v(self.ASEL))
        for k in range(1, 4):
            I('v_mov_b32 %s, %s' % (v(self.ASEL + k), v(self.ASEL)))

    def b1_issue(self):
        I = self.I
        I('s_add_u32 %s, %s, %s\ns_lshl_b32 %s, %s, 6' % (s(sA), s(sW), s(sNT0), s(sA), s(sA)))
        I('v_and_b32 v6, 31, %s\nv_lshl_add_u32 v6, v6, 1, %s\nv_xor_b32 v7, 64, v6' % (v(vL), s(sA)))
        I('global_load_ushort %s, v6, %s\nglobal_load_ushort %s, v7, %s' % (v(self.B1), s(pB1, 2), v(self.B1 + 1), s(pB1, 2)))

    def g1_reads(self, c, k, fs):
        slot = c % 4
        hi = slot // 2
        off = (slot % 2) * 32768
        F = self.FR + 16 * fs
        out = []
        xr = [('ds_read_b128 %s, %s offset:%d' % (v(F + 4 * b, 4), v(self.XA + 4 * hi + k), off + 4096 * b), None) for b in range(2)]
        wr = [('ds_read_b64_tr_b16 %s, %s offset:%d' % (v(F + 8 + 4 * aa + 2 * hf, 2), v(self.WA + 2 * hi + aa), off + 4096 * k + 1024 * hf), None)
              for aa in range(2) for hf in range(2)]
        return [wr[0], wr[1], xr[0], xr[1], wr[2], wr[3]]

    def g1_mfmas(self, fs, first):
        F = self.FR + 16 * fs
        out = []
        for aa, b in ((0, 0), (0, 1), (1, 0), (1, 1)):
            acc = v(self.ACC + 16 * (2 * aa + b), 16)
            out.append('v_mfma_f32_32x32x16_bf16 %s, %s, %s, %s' % (acc, v(F + 8 + 4 * aa, 4), v(F + 4 * b, 4), '0' if first else acc))
        return out

    def g1_cs(self, fs, first):
        F = self.FR + 16 * fs
        cs = v(self.CS, 4)
        return 'v_mfma_f32_16x16x32_bf16 %s, %s, %s, %s' % (cs, v(self.ASEL, 4), v(F + 8, 4), '0' if first else cs)

    def h_issue(self, hb, ch):
        out = ['s_add_u32 m0, %s, 32' % s(hb), 's_lshl_b32 %s, %s, 12' % (s(sA), s(ch))]
        for i in range(4):
            out.append(('buffer_load_dwordx4 v252, %s, %s offen offset:%d nt lds' % (s(rH, 4), s(sA), 1024 * i), 'h'))
        out.append('s_lshl_b32 %s, %s, 1' % (s(sA), s(ch)))
        out.append('v_mov_b32 v6, %s' % s(sA))
        return out

    def role_g(self):
        I, e = self.I, self.e
        self.stats_issue()
        self.more_srds()
        I('s_lshl_b32 %s, %s, 2\ns_add_u32 %s, %s, %s\ns_mul_i32 %s, %s, 7\ns_add_u32 %s, %s, %s' % (
            s(sT0), s(sX), s(sT0), s(sT0), s(sMU), s(sT0), s(sT0), s(sT0), s(sT0), s(sCC)))
        self.kv_task(sT0)
        self.kv_issue(KV, 166)
        self.g1_setup()
        for c in range(4):
            self.run(self.g1_dma(c))
        self.b1_issue()
        self.stamp(1)
        I('v_mov_b32 v254, 0')
        self.lds_init()
        self.kv_setup()
        self.g1_frag_setup_done = False
        self.stats_compute()
        self.stamp(2)
        self.kv_weights(166)
        e.wait_tag('kv', and_lg=0)
        I('s_barrier')
        self.kv_compute(KV)
        I('global_load_dword v56, %s, %s sc1' % (v(vZ), s(pDBG, 2)), 'z')
        self.stamp(3)
        self.g1_frag_setup()
        I('s_mul_i32 %s, %s, 7\ns_add_u32 %s, %s, %s\ns_lshl_b32 %s, %s, 1' % (s(sCH), s(sMU), s(sCH), s(sCH), s(sCC), s(sCH), s(sCH)))
        I('s_mul_i32 %s, %s, 80\ns_add_u32 %s, %s, %s\ns_add_u32 %s, %s, %s' % (s(sT0), s(sX), s(sCH), s(sCH), s(sT0), s(sCH), s(sCH), s(sI)))
        I('s_mul_i32 %s, %s, %d\ns_add_u32 %s, %s, %d' % (s(sUB), s(sW), UBSZ, s(sHB), s(sUB), KV))
        I('v_lshlrev_b32 v252, 4, %s' % v(vL))
        self.gemm2_ids()
        e.wait_tag('c0')
        I('s_barrier')
        self.run(self.g1_reads(0, 0, 0))
        self.stamp(4)
        for c in range(10):
            for k in range(4):
                fs = k & 1
                first = c == 0 and k == 0
                mf = self.g1_mfmas(fs, first)
                mf.insert(2, self.g1_cs(fs, first))
                fill = []
                if k < 3:
                    fill = self.g1_reads(c, k + 1, fs ^ 1)
                    if c == 6 and k == 0:
                        fill += self.h_issue(sHB, sCH) + ['global_load_ushort v61, v6, %s' % s(pSSMD, 2)]
                    if c == 7 and k == 0:
                        fill += ['s_lshl_b32 %s, %s, 7' % (s(sB), s(sR)), lambda: self.poll_issue(57, s(sB))]
                        fill += ['s_lshr_b32 %s, %s, 6' % (s(sC), s(sCH)), 's_lshl_b32 %s, %s, 7' % (s(sC), s(sC)),
                                 's_add_u32 %s, %s, %d' % (s(sC), s(sC), FK)]
                    if c == 9 and k == 0:
                        fill += [lambda: self.poll_issue(58, s(sC))]
                        fill += ['s_lshr_b32 %s, %s, 1' % (s(sD), s(sCT)), 's_lshl_b32 %s, %s, 7' % (s(sD), s(sD)),
                                 's_add_u32 %s, %s, %d' % (s(sD), s(sD), FW), lambda: self.poll_issue(59, s(sD))]
                    self.run(merge(mf, fill, 0, 2))
                else:
                    if c < 9:
                        e.wait_tag('prep' if c == 1 else 'c%d' % (c + 1), and_lg=0)
                        if c == 1:
                            self.poll_check(56, None, 1, dbg=True)
                        I('s_barrier')
                        fill = self.g1_reads(c + 1, 0, fs ^ 1)
                        if c + 4 < 10:
                            fill += self.g1_dma(c + 4)
                        if c == 1:
                            I('s_lshl_b32 %s, %s, 7\ns_lshl_b32 %s, %s, 7\ns_add_u32 %s, %s, %d' % (
                                s(sA), s(sR), s(sB), s(sKCG), s(sB), s(sB), FK))
                            self.signal_wave0([s(sA), s(sB)], 6)
                        if c == 8:
                            self.poll_check(57, s(sB), 16)
                            I('s_lshl_b32 %s, %s, 7\ns_lshl_b32 %s, %s, 6\ns_add_u32 %s, %s, %s' % (
                                s(sA), s(sR), s(sB), s(sJ), s(sA), s(sA), s(sB)))
                            I('s_lshl_b32 %s, %s, 3\ns_add_u32 %s, %s, %d' % (s(sA), s(sA), s(sA), s(sA), STATS))
                            I('v_and_b32 v6, 31, %s\nv_lshlrev_b32 v6, 3, v6' % v(vL))
                            for b in range(2):
                                fill.append('buffer_load_dwordx2 %s, v6, %s, %s offen offset:%d sc1' % (v(self.ST + 2 * b, 2), s(rWS, 4), s(sA), 256 * b))
                    self.run(merge(mf, fill, 0, 4))
        self.stamp(5)
        self.g1_epilogue()

    def u_issue(self, ch, dst):
        self.I('s_lshl_b32 %s, %s, 12\ns_add_u32 %s, %s, %d' % (s(sA), s(ch), s(sA), s(sA), UT))
        for i in range(4):
            self.I('buffer_load_dwordx4 %s, v252, %s, %s offen offset:%d sc1' % (v(dst + 4 * i, 4), s(rWS, 4), s(sA), 1024 * i), 'u')

    def g1_epilogue(self):
        I, e = self.I, self.e
        L = v(vL)
        UR = 224
        lab = self.lab('Lnou')
        e.wait_vm(0)
        I('v_readfirstlane_b32 %s, v58' % s(sVAL))
        I('s_cmp_ge_u32 %s, 32\ns_cselect_b32 %s, 1, 0\ns_cbranch_scc0 %s' % (s(sVAL), s(sEARLY), lab))
        self.u_issue(sCH, UR)
        del e.vm[-4:]
        e.label(lab)
        I('s_lshl_b32 %s, %s, 7\ns_add_u32 %s, %s, %d\ns_xor_b32 %s, %s, 128' % (s(sA), s(sW), s(sA), s(sA), CSX, s(sB), s(sA)))
        I('v_and_b32 v6, 31, %s\nv_lshlrev_b32 v6, 2, v6\nv_add_u32 v7, %s, v6\nv_add_u32 v8, %s, v6' % (L, s(sA), s(sB)))
        I('s_mov_b32 exec_hi, 0')
        I('ds_write_b32 v7, %s' % v(self.CS))
        I('s_mov_b32 exec_hi, -1')
        C0 = -2.0 * 0.7978845608028654 * 1.4426950408889634
        XB, KK, SG, AX = 128, 136, 140, 144
        I('s_mov_b32 %s, -1\ns_mov_b32 %s, 0' % (s(sM), s(sM + 1)))
        for b in range(2):
            m, r = v(self.ST + 2 * b), v(self.ST + 2 * b + 1)
            sg = v(SG + 2 * b)
            I('v_rcp_f32 %s, %s' % (sg, r))
            I('v_cvt_pk_bf16_f32 v9, -%s, -%s' % (m, m))
            I('v_mul_f32 %s, %s, %s' % (v(KK + 2 * b), hexf(C0), r))
            I('v_mul_f32 v3, %s, %s' % (r, r))
            I('v_and_b32 v10, 0xffff0000, v9')
            I('v_sub_f32 v10, -%s, v10' % m)
            I('v_cvt_pk_bf16_f32 v10, v10, %s' % sg)
            I('v_mul_f32 v3, %s, v3' % hexf(0.044715))
            I('v_and_b32 v11, 0xffff0000, v10')
            I('v_sub_f32 v11, %s, v11' % sg)
            I('v_cvt_pk_bf16_f32 v11, v11, 0')
            I('v_mul_f32 %s, v3, %s' % (v(KK + 2 * b + 1), v(KK + 2 * b)))
            for d in range(3):
                I('v_cndmask_b32 %s, 0, %s, %s' % (v(XB + 4 * b + d), v(9 + d), s(sM, 2)))
            I('v_mov_b32 %s, 0' % v(XB + 4 * b + 3))
        e.wait_lg(0)
        I('s_barrier')
        I('ds_read_b32 v12, v7\nds_read_b32 v13, v8')
        for aa in range(2):
            cs = v(12 + aa)
            I('v_cvt_pk_bf16_f32 v9, %s, %s\nv_and_b32 v10, 0xffff0000, v9\nv_sub_f32 v10, %s, v10' % (cs, cs, cs))
            I('v_cvt_pk_bf16_f32 %s, %s, v10' % (v(AX + 4 * aa), cs))
            I('v_and_b32 v9, 0xffff, v9\nv_lshl_or_b32 %s, %s, 16, v9' % (v(AX + 4 * aa + 1), v(self.B1 + aa)))
            I('v_mov_b32 %s, %s\nv_mov_b32 %s, 0' % (v(AX + 4 * aa + 2), v(self.B1 + aa), v(AX + 4 * aa + 3)))
        for aa in range(2):
            for b in range(2):
                acc = v(self.ACC + 16 * (2 * aa + b), 16)
                I('v_mfma_f32_32x32x16_bf16 %s, %s, %s, %s' % (acc, v(AX + 4 * aa, 4), v(XB + 4 * b, 4), acc))
        I('v_bfe_u32 v6, %s, 4, 1\nv_lshlrev_b32 v6, 10, v6\nv_lshrrev_b32 v7, 5, %s\nv_lshl_add_u32 v6, v7, 9, v6' % (L, L))
        I('v_and_b32 v7, 15, %s\nv_lshl_add_u32 v14, v7, 4, v6' % L)
        I('s_lshl_b32 %s, %s, 1\ns_add_u32 %s, %s, %s\ns_mul_i32 %s, %s, 54' % (s(sA), s(sR), s(sA), s(sA), s(sJ), s(sA), s(sA)))
        I('s_lshl_b32 %s, %s, 1\ns_add_u32 %s, %s, %s\ns_add_u32 %s, %s, %s' % (s(sB), s(sI), s(sB), s(sB), s(sNT0), s(sA), s(sA), s(sB)))
        I('s_add_u32 %s, %s, %s\ns_xor_b32 %s, %s, 1\ns_add_u32 %s, %s, %s' % (s(sB), s(sA), s(sJ), s(sT0), s(sJ), s(sA), s(sA), s(sT0)))
        I('s_lshl_b32 %s, %s, 12\ns_add_u32 %s, %s, %d\ns_lshl_b32 %s, %s, 12\ns_add_u32 %s, %s, %d' % (
            s(sB), s(sB), s(sB), s(sB), HP, s(sA), s(sA), s(sA), s(sA), HP))
        I('s_cmp_eq_u32 %s, 14\ns_cselect_b32 %s, %d, 0\ns_cmp_eq_u32 %s, 0\ns_cselect_b32 %s, %s, 0' % (
            s(sQ), s(sT0), OOB, s(sI), s(sT0), s(sT0)))
        I('v_add_u32 v14, %s, v14' % s(sT0))
        self.stamp(6)
        T = 160
        for aa in range(2):
            for b in range(2):
                acc = self.ACC + 16 * (2 * aa + b)
                kk, sg = v(KK + 2 * b, 2), v(SG + 2 * b, 2)
                for c in range(2):
                    prs = [acc + 8 * c + 2 * j for j in range(4)]
                    tp = [T + 16 * c + 2 * j for j in range(4)]
                    tq = [T + 16 * c + 8 + 2 * j for j in range(4)]
                    out = 192 + 8 * (2 * aa + b) + 4 * c
                    for p, t in zip(prs, tp):
                        I('v_pk_mul_f32 %s, %s, %s' % (v(t, 2), v(p, 2), v(p, 2)))
                    for p, t in zip(prs, tp):
                        I('v_pk_fma_f32 %s, %s, %s, %s op_sel:[0,1,0] op_sel_hi:[1,1,0]' % (v(t, 2), v(t, 2), kk, kk))
                    for p, t in zip(prs, tp):
                        I('v_pk_mul_f32 %s, %s, %s' % (v(t, 2), v(t, 2), v(p, 2)))
                    for t in tp:
                        I('v_exp_f32 %s, %s\nv_exp_f32 %s, %s' % (v(t), v(t), v(t + 1), v(t + 1)))
                    for t in tp:
                        I('v_pk_fma_f32 %s, %s, %s, %s op_sel:[0,0,0] op_sel_hi:[1,0,0]' % (v(t, 2), v(t, 2), sg, sg))
                    for t in tp:
                        I('v_rcp_f32 %s, %s\nv_rcp_f32 %s, %s' % (v(t), v(t), v(t + 1), v(t + 1)))
                    for p, t, u in zip(prs, tp, tq):
                        I('v_pk_mul_f32 %s, %s, %s' % (v(u, 2), v(t, 2), v(p, 2)))
                    for j, u in enumerate(tq):
                        I('v_cvt_pk_bf16_f32 %s, %s, %s' % (v(out + j), v(u), v(u + 1)))
                    I('buffer_store_dwordx4 %s, v14, %s, %s offen offset:%d sc1' % (
                        v(out, 4), s(rWS, 4), s(sB if aa == 0 else sA), 2048 * b + 256 * c), 'H')
        self.stamp(7)
        late, both = self.lab('Llate'), self.lab('Lboth')
        I('s_cmp_eq_u32 %s, 0\ns_cbranch_scc1 %s' % (s(sEARLY), late))
        e.raw('    s_waitcnt vmcnt(8)')
        I('s_branch ' + both)
        e.label(late)
        self.poll_check(58, s(sC), 32)
        self.u_issue(sCH, UR)
        del e.vm[-4:]
        e.raw('    s_waitcnt vmcnt(0)')
        e.label(both)
        self.conv_stage(sHB, sUB, UR, 61)
        self.poll_check(59, s(sD), 8)
        I('s_mov_b32 %s, 1\ns_mov_b32 %s, 2\ns_mov_b64 vcc, -1' % (s(sISG), s(sROUND)))
        self.stamp(8)
        I('s_branch L_conv')

    def conv_stage(self, hb, ub, ur, vD):
        I = self.I
        L = v(vL)
        I('v_lshrrev_b32 v6, 2, %s\nv_lshlrev_b32 v6, 6, v6\nv_and_b32 v7, 3, %s\nv_lshl_add_u32 v6, v7, 3, v6' % (L, L))
        I('s_add_u32 %s, %s, 256\nv_add_u32 v6, %s, v6\nv_add_u32 v7, 2048, v6' % (s(sT0), s(ub), s(sT0)))
        self.e.wait_tag('h')
        I('v_mov_b32 v8, %s\nds_read_u16 v9, v8 offset:32' % s(hb))
        for i in range(4):
            I('ds_write2_b64 %s, %s, %s offset0:%d offset1:%d' % (v(6 + i // 2), v(ur + 4 * i, 2), v(ur + 4 * i + 2, 2), 128 * (i & 1), 128 * (i & 1) + 4))
        I('v_lshl_add_u32 v10, %s, 2, %s\nds_write_b32 v10, %s' % (L, s(ub), v(vZ)))
        I('v_and_b32 v10, 7, %s\nv_lshl_add_u32 v10, v10, 2, %s\nds_write_b32 v10, %s' % (L, s(hb), v(vZ)))
        I('v_lshlrev_b32 v9, 16, v9\nv_lshlrev_b32 v10, 16, %s\nv_add_f32 v9, v9, v10\nv_cvt_pk_bf16_f32 v9, v9, v9' % v(vD))
        I('ds_write_b16 v8, v9 offset:32')

    def role_s(self):
        I, e = self.I, self.e
        L = v(vL)
        lab = self.lab('Lnoz')
        I('s_cmp_lg_u32 s2, 56\ns_cbranch_scc1 %s\ns_cmp_lg_u32 %s, 0\ns_cbranch_scc1 %s' % (lab, s(sW), lab))
        I('v_lshlrev_b32 v6, 7, %s\nbuffer_store_dword %s, v6, %s, 0 offen sc1' % (L, v(vZ), s(rWS, 4)))
        e.vm.pop()
        e.label(lab)
        self.stats_issue()
        self.more_srds()
        I('s_lshl_b32 %s, %s, 2\ns_add_u32 %s, %s, %s' % (s(sD), s(sX), s(sD), s(sD), s(sMU)))
        for t in range(3):
            I('s_mul_i32 %s, %s, 3\ns_add_u32 %s, %s, %d' % (s(sT0), s(sD), s(sT0), s(sT0), 224 + t))
            self.kv_task(sT0)
            self.kv_issue(t * KVSZ, 80 + 2 * t)
        for i in range(10):
            I('v_add_u32 v6, %d, %s\nv_mul_u32_u24 v7, 3277, v6\nv_lshrrev_b32 v7, 16, v7\nv_mul_u32_u24 v8, 20, v7\nv_sub_u32 v8, v6, v8' % (64 * i, L))
            I('v_mul_u32_u24 v7, 1280, v7\nv_lshl_add_u32 v7, v8, 4, v7\nv_subrev_u32 %s, %d, v7' % (v(24 + i), 1024 * (i % 4)))
        I('s_lshr_b32 %s, %s, 2\ns_lshl_b32 %s, %s, 2\ns_add_u32 %s, %s, %s' % (s(sI), s(sD), s(sI), s(sI), s(sI), s(sI), s(sW)))
        I('s_and_b32 %s, %s, 3' % (s(sJ), s(sD)))
        I('s_mul_i32 %s, %s, %d\ns_mul_i32 %s, %s, 320\ns_add_u32 %s, %s, %s' % (s(sA), s(sI), 32 * 1280, s(sB), s(sJ), s(sA), s(sA), s(sB)))
        I('s_mul_i32 %s, %s, 20480\ns_add_u32 %s, %s, %d' % (s(sC), s(sW), s(sC), s(sC), S_W2))
        for u in range(2):
            for i in range(10):
                if i % 4 == 0:
                    I('s_add_u32 m0, %s, %d' % (s(sC), 10240 * u + 1024 * i))
                I('buffer_load_dwordx4 %s, %s, %s offen offset:%d nt lds' % (v(24 + i), s(rW2, 4), s(sA), 1024 * (i % 4)), 'w2')
            if u == 0:
                I('s_add_u32 %s, %s, %d' % (s(sA), s(sA), 32 * 32 * 1280))
        self.stamp(1)
        I('v_mov_b32 v254, 0')
        self.lds_init()
        self.kv_setup()
        self.stats_compute()
        lab = self.lab('Lnoz')
        I('s_cmp_lg_u32 s2, 56\ns_cbranch_scc1 %s\ns_cmp_lg_u32 %s, 0\ns_cbranch_scc1 %s' % (lab, s(sW), lab))
        I('v_mov_b32 v6, 1\ns_mov_b64 exec, 1\nglobal_store_dword %s, v6, %s sc1\ns_mov_b64 exec, -1' % (v(vZ), s(pDBG, 2)))
        e.vm.pop()
        e.label(lab)
        self.stamp(2)
        e.wait_tag('kv', and_lg=0)
        I('s_barrier')
        for t in range(3):
            I('s_mul_i32 %s, %s, 3\ns_add_u32 %s, %s, %d' % (s(sT0), s(sD), s(sT0), s(sT0), 224 + t))
            self.kv_task(sT0)
            self.kv_weights(80 + 2 * t)
            self.kv_compute(t * KVSZ)
            I('s_lshl_b32 %s, %s, 7\ns_add_u32 %s, %s, %d' % (s(sHOFF + t), s(sKCG), s(sHOFF + t), s(sHOFF + t), FK))
        I('global_load_dword v56, %s, %s sc1' % (v(vZ), s(pDBG, 2)), 'z')
        self.stamp(3)
        I('v_lshrrev_b32 v6, 4, %s\nv_and_b32 v7, 1, v6\nv_lshlrev_b32 v7, 4, v7\nv_lshrrev_b32 v6, 1, v6\nv_lshl_add_u32 v7, v6, 2, v7' % L)
        I('v_bfe_u32 v6, %s, 2, 2\nv_add_u32 v7, v7, v6\nv_mul_u32_u24 v7, 320, v7\nv_and_b32 v6, 3, %s\nv_lshl_add_u32 v7, v6, 3, v7' % (L, L))
        I('s_mul_i32 %s, %s, 20480\ns_add_u32 %s, %s, %d\nv_add_u32 v7, %s, v7' % (s(sC), s(sW), s(sC), s(sC), S_W2, s(sC)))
        e.wait_tag('w2')
        for u in range(2):
            for n in range(10):
                for hf in range(2):
                    I('ds_read_b64_tr_b16 %s, v7 offset:%d' % (v(64 + 40 * u + 4 * n + 2 * hf, 2), 10240 * u + 2560 * hf + 32 * n))
        self.poll_check(56, None, 1, dbg=True)
        e.wait_vm(0)
        I('s_barrier')
        I('s_lshl_b32 %s, %s, 7' % (s(sA), s(sR)))
        self.signal_wave0([s(sA), s(sHOFF), s(sHOFF + 1), s(sHOFF + 2)], 6)
        I('v_lshlrev_b32 v252, 4, %s' % L)
        I('s_mul_i32 %s, %s, 108\ns_add_u32 %s, %s, %s\ns_mul_i32 %s, %s, 5120\ns_add_u32 %s, %s, %d' % (
            s(sA), s(sJ), s(sA), s(sA), s(sI), s(sA), s(sA), s(sA), s(sA), W2P))
        skip = self.lab('Lone')
        for u in range(2):
            if u:
                I('s_cmp_ge_u32 %s, 22\ns_cbranch_scc1 %s' % (s(sI), skip))
            for half in range(2):
                I('s_add_u32 %s, %s, %d\ns_add_u32 %s, %s, 4096' % (s(sB), s(sA), 32 * 5120 * u + 54 * 5120 * half, s(sC), s(sB)))
                for n in range(5):
                    I('buffer_store_dwordx4 %s, v252, %s, %s offen offset:%d sc1' % (
                        v(64 + 40 * u + 20 * half + 4 * n, 4), s(rWS, 4), s(sB if n < 4 else sC), 1024 * (n % 4)))
        e.label(skip)
        e.wait_all()
        I('s_barrier')
        I('s_lshl_b32 %s, %s, 7\ns_add_u32 %s, %s, %d' % (s(sA), s(sJ), s(sA), s(sA), FW))
        self.signal_wave0([s(sA)], 6)
        self.stamp(4)
        self.gemm2_ids()
        I('s_mul_i32 %s, %s, 80\ns_mul_i32 %s, %s, 6\ns_add_u32 %s, %s, %s\ns_add_u32 %s, %s, 56' % (
            s(sCH), s(sX), s(sT0), s(sMU), s(sCH), s(sCH), s(sT0), s(sCH), s(sCH)))
        I('s_lshr_b32 %s, %s, 6\ns_lshl_b32 %s, %s, 7\ns_add_u32 %s, %s, %d' % (s(sB), s(sCH), s(sB), s(sB), s(sB), s(sB), FK))
        I('s_add_u32 %s, %s, 5\ns_lshr_b32 %s, %s, 6\ns_lshl_b32 %s, %s, 7\ns_add_u32 %s, %s, %d' % (
            s(sC), s(sCH), s(sC), s(sC), s(sC), s(sC), s(sC), s(sC), FK))
        I('s_lshr_b32 %s, %s, 1\ns_lshl_b32 %s, %s, 7\ns_add_u32 %s, %s, %d' % (s(sD), s(sCT), s(sD), s(sD), s(sD), s(sD), FW))
        I('s_lshr_b32 %s, %s, 1\ns_add_u32 %s, %s, %s' % (s(sT0), s(sW), s(sCH), s(sCH), s(sT0)))
        I('s_mul_i32 %s, %s, %d\ns_add_u32 %s, %s, %d' % (s(sHB), s(sW), HBSZ + UBSZ, s(sUB), s(sHB), HBSZ))
        self.poll_issue(57, s(sB))
        self.poll_issue(58, s(sC))
        STEP = 4 * (HBSZ + UBSZ)
        for r in range(3):
            I('s_add_u32 %s, %s, %d\ns_add_u32 %s, %s, %d' % (s(sI), s(sHB), r * STEP, s(sJ), s(sCH), 2 * r))
            self.run(self.h_issue(sI, sJ))
            I('global_load_ushort %s, v6, %s' % (v(61 + r), s(pSSMD, 2)))
        self.poll_check(57, s(sB), 32)
        self.poll_check(58, s(sC), 32)
        for r in range(3):
            I('s_add_u32 %s, %s, %d' % (s(sJ), s(sCH), 2 * r))
            self.u_issue(sJ, 64 + 16 * r)
        self.poll_issue(57, s(sD))
        for r in range(3):
            I('s_add_u32 %s, %s, %d\ns_add_u32 %s, %s, %d' % (s(sI), s(sHB), r * STEP, s(sJ), s(sUB), r * STEP))
            self.conv_stage(sI, sJ, 64 + 16 * r, 61 + r)
        self.poll_check(57, s(sD), 8)
        I('s_mov_b32 %s, 0\ns_mov_b32 %s, 0\ns_mov_b64 vcc, 0' % (s(sISG), s(sROUND)))
        self.stamp(8)

    def conv(self):
        I, e = self.I, self.e
        L = v(vL)
        e.label('L_conv')
        e.forget()
        e.vm = [dict(tag='H', wr=set()) for _ in range(8)]
        e.lg = [dict(tag=None, wr=set(), smem=False)]
        I('v_bfe_u32 v2, %s, 2, 2\nv_lshrrev_b32 v6, 4, %s\nv_lshlrev_b32 v7, 1, v6\nv_sub_u32 v2, v2, v7\nv_lshlrev_b32 v2, 5, v2' % (L, L))
        I('v_and_b32 v7, 3, %s\nv_lshl_add_u32 v2, v7, 3, v2\ns_add_u32 %s, %s, 224\nv_add_u32 v2, %s, v2\nv_add_u32 v3, 2048, v2' % (L, s(sT0), s(sUB), s(sT0)))
        I('v_bfe_u32 v8, %s, 2, 2\nv_sub_u32 v7, v7, v8\nv_lshlrev_b32 v7, 3, v7\nv_lshl_add_u32 v4, v6, 6, v7' % L)
        I('s_add_u32 %s, %s, 32\nv_add_u32 v4, %s, v4' % (s(sT0), s(sHB), s(sT0)))
        I('v_lshrrev_b32 v6, 3, %s\nv_mul_u32_u24 v6, %d, v6\nv_and_b32 v7, 7, %s\nv_lshl_add_u32 v5, v7, 4, v6' % (L, 640 * 128, L))
        I('s_lshl_b32 %s, %s, 7\ns_add_u32 %s, %s, %d' % (s(sYOFF), s(sCH), s(sYOFF), s(sYOFF), YP))
        I('s_lshl_b32 %s, %s, 7\ns_add_u32 %s, %s, %d' % (s(sD), s(sR2), s(sD), s(sD), FH))
        I('s_mov_b32 %s, %s' % (s(sC), s(sW2OFF)))
        e.wait_lg(0)
        I('s_bitcmp1_b32 %s, 0\ns_cbranch_scc1 L_convB' % s(sW))
        vm0, hist0 = list(e.vm), list(e.hist)
        keep = {('v', i) for i in (0, 1, 2, 3, 4, 5, 252, 255)}
        e.written = set(keep)
        self.conv_body(list(range(8)) + list(range(23, 32)), carry=(23,))
        I('s_branch L_convE')
        e.label('L_convB')
        e.vm, e.lg, e.hist = list(vm0), [], list(hist0)
        e.written = set(keep)
        self.conv_body(list(range(7, 24)), carry=(7,))
        e.label('L_convE')
        nxt = self.lab('Lg2')
        I('s_cmp_ge_u32 %s, 2\ns_cbranch_scc1 %s' % (s(sROUND), nxt))
        STEP = 4 * (HBSZ + UBSZ)
        I('s_add_u32 %s, %s, 1\ns_add_u32 %s, %s, 2\ns_add_u32 %s, %s, %d\ns_add_u32 %s, %s, %d' % (
            s(sROUND), s(sROUND), s(sCH), s(sCH), s(sHB), s(sHB), STEP, s(sUB), s(sUB), STEP))
        I('s_cmp_eq_u32 %s, 2\ns_cselect_b64 vcc, -1, 0' % s(sROUND))
        I('s_branch L_conv')
        e.label(nxt)

    def conv_body(self, tiles, carry):
        I, e = self.I, self.e
        ACC, HF, UF, NU = 16, 96, 160, 4
        T1, T2, YV, YPK = 176, 178, 180, 184
        acc = {t: ACC + 4 * i for i, t in enumerate(tiles)}
        mmax = max(tiles)
        nsig = mmax // 2 + 1

        def uread(m):
            return 'ds_read2_b64 %s, %s offset0:%d offset1:%d' % (v(UF + 4 * (m % NU), 4), v(2 + m // 16), 16 * (m % 16) + 4, 16 * (m % 16))

        def hread(sg):
            return ['ds_read_b64_tr_b16 %s, v4 offset:%d' % (v(HF + 4 * sg + 2 * hf, 2), 256 * sg + 32 * hf) for hf in range(2)]

        steps = []
        for m in range(mmax + 1):
            ts = [t for t in tiles if t >= m and (t - m) % 2 == 0]
            steps.append(ts)
        order = []
        for m in range(2):
            for t in steps[m]:
                if (t - m) // 2 not in order:
                    order.append((t - m) // 2)
        rest = [sg for sg in range(nsig) if sg not in order]
        rest.sort(reverse=True)
        I(uread(0))
        for sg in order[:3]:
            for x in hread(sg):
                I(x)
        I(uread(1))
        pend_h = [x for sg in order[3:] + rest for x in hread(sg)]

        def post(t):
            z = acc[t]
            cur, prv = t & 1, (t & 1) ^ 1
            out = []
            dpp = ' row_mask:0xf bank_mask:0xf'
            has_prev = (t - 1) in acc and t not in carry
            chain = [(T1 + cur, z + 3, (acc[t - 1] + 3) if has_prev else None, z + 2),
                     (T2 + cur, T1 + cur, T1 + prv, z + 1)]
            if t not in carry:
                chain.append((YV + (t & 1), T2 + cur, T2 + prv, z))
            for d, src, psrc, add in chain:
                if has_prev:
                    out.append('v_add_f32_dpp %s, %s, %s wave_ror:1%s' % (v(d), v(psrc), v(add), dpp))
            for d, src, psrc, add in chain:
                out.append('v_add_f32_dpp %s, %s, %s wave_shr:1%s%s' % (v(d), v(src), v(add), dpp, '' if has_prev else ' bound_ctrl:0'))
            if t not in carry and t & 1:
                out.append('v_cvt_pk_bf16_f32 %s, %s, %s' % (v(YPK + 4 * ((t >> 3) & 1) + ((t & 7) >> 1)), v(YV), v(YV + 1)))
                if t & 7 == 7:
                    g = t >> 3
                    out.append('s_add_u32 %s, %s, %d' % (s(sT0), s(sYOFF), g * 8 * 640 * 128))
                    out.append(('buffer_store_dwordx4 %s, v5, %s, %s offen sc1' % (v(YPK + 4 * (g & 1), 4), s(rWS, 4), s(sT0)), 'y'))
            return out

        def w2group(g):
            def f():
                lab = self.lab('Lw')
                I('s_cbranch_vccz ' + lab)
                for i in range(4):
                    I('buffer_load_dwordx4 %s, v252, %s, %s offen offset:%d sc1' % (a(16 * g + 4 * i, 4), s(rWS, 4), s(sC), 1024 * i))
                I('s_add_u32 %s, %s, 4096' % (s(sC), s(sC)))
                e.label(lab)
            return f

        def hsignal():
            lab = self.lab('Lh')
            I('s_cmp_eq_u32 %s, 0\ns_cbranch_scc1 %s' % (s(sISG), lab))
            e.wait_tag('H')
            I('s_lshl_b32 %s, %s, 7\ns_add_u32 %s, %s, %d' % (s(sT0), s(sR), s(sT0), s(sT0), FH))
            lg = list(e.lg)
            self.signal_last(LCNT, s(sT0), 6)
            e.lg = lg
            e.label(lab)

        total = sum(len(x) for x in steps)
        done = 0
        ng = 0
        hs_at = self.o.get('hs_at', 30)
        signalled = False
        polled = False
        pending_post = []
        for m, ts in enumerate(steps):
            mf = []
            for t in ts:
                sg = (t - m) // 2
                first = m < 2
                mf.append('v_mfma_f32_16x16x32_bf16 %s, %s, %s, %s' % (
                    v(acc[t], 4), v(UF + 4 * (m % NU), 4), v(HF + 4 * sg, 4), '0' if first else v(acc[t], 4)))
            fill = []
            if m + 2 <= mmax:
                fill.append(uread(m + 2))
            take = len(pend_h) if m >= 1 else min(len(pend_h), 2 * len(mf))
            if m < 2:
                seq = []
                k = 0
                for i, x in enumerate(mf):
                    need = HF + 4 * ((ts[i] - m) // 2)
                    while any(('v[%d:' % need) in p or ('v[%d:' % (need + 2)) in p for p in pend_h):
                        seq.append(pend_h.pop(0))
                    seq.append(x)
                    for _ in range(2):
                        if pend_h:
                            seq.append(pend_h.pop(0))
                    if i == 0:
                        seq += fill
                self.run(seq + pending_post)
                pending_post = []
            else:
                fill += pend_h[:4]
                pend_h = pend_h[4:]
                while ng < 16 and done >= (ng * (total - 24)) // 16:
                    fill.append(w2group(ng))
                    ng += 1
                if not signalled and done >= hs_at:
                    fill.append(hsignal)
                    signalled = True
                if not polled and m >= mmax - 3:
                    fill.append(lambda: self.poll_issue(253, s(sD)))
                    polled = True
                self.run(merge(mf, fill + pending_post, 0))
                pending_post = []
            done += len(mf)
            if m in acc:
                pending_post = post(m)
        assert ng == 16 and signalled and polled and not pend_h
        self.run(pending_post)

    def gemm2(self):
        I, e = self.I, self.e
        L = v(vL)
        ACC, WX, HR, NR, XN = 16, 96, 120, 7, 232
        e.forget()
        e.vm = [dict(tag='poll', wr={('v', 253)}), dict(tag='y', wr=set())]
        self.stamp(9)
        e.wait_lg(0)
        I('s_barrier')
        for i in range(6):
            if i == 4:
                I('s_add_u32 %s, %s, 4096' % (s(sC), s(sC)))
            I('buffer_load_dwordx4 %s, v252, %s, %s offen offset:%d sc1' % (v(WX + 4 * i, 4), s(rWS, 4), s(sC), 1024 * (i % 4)))
        I('s_lshr_b32 %s, %s, 2\ns_lshl_b32 %s, %s, 9\ns_and_b32 %s, %s, 3\ns_lshl_b32 %s, %s, 4\ns_add_u32 %s, %s, %s' % (
            s(sA), s(sR2), s(sA), s(sA), s(sB), s(sR2), s(sB), s(sB), s(sA), s(sA), s(sB)))
        I('s_lshl_b32 %s, %s, 3\ns_add_u32 %s, %s, %s\ns_lshl_b32 %s, %s, 1\ns_add_u32 %s, %s, %s' % (
            s(sB), s(sNU), s(sA), s(sA), s(sB), s(sB), s(sW), s(sA), s(sA), s(sB)))
        I('s_mul_i32 %s, %s, 1280\ns_mul_i32 %s, %s, 160\ns_add_u32 %s, %s, %s' % (s(sA), s(sA), s(sB), s(sCT), s(sT1), s(sA), s(sB)))
        I('v_and_b32 v6, 7, %s\nv_lshlrev_b32 v6, 6, v6\nv_bfe_u32 v7, %s, 3, 1\nv_add_u32 v6, v6, v7\nv_mul_u32_u24 v6, 1280, v6' % (L, L))
        I('v_lshrrev_b32 v7, 4, %s\nv_lshlrev_b32 v7, 3, v7\nv_add_u32 v2, v6, v7\nv_add_u32 v3, %s, v7' % (L, s(sB)))
        RAW = HR + 16 * (NR - 2)
        for n in range(5):
            I('buffer_load_dwordx2 %s, v2, %s, %s offen offset:%d' % (v(RAW + 2 * n, 2), s(rQ, 4), s(sT1), 32 * n))
        for n in range(5):
            I('global_load_dwordx2 %s, v3, %s offset:%d' % (v(RAW + 10 + 2 * n, 2), s(pB2, 2), 32 * n))
        I('s_lshl_b32 %s, %s, 1\ns_add_u32 %s, %s, %s\ns_mul_i32 %s, %s, 54\ns_add_u32 %s, %s, %s' % (
            s(sA), s(sR2), s(sA), s(sA), s(sNU), s(sA), s(sA), s(sA), s(sA), s(sST)))
        I('s_lshl_b32 %s, %s, 12\ns_add_u32 %s, %s, %d' % (s(sA), s(sA), s(sHOFF), s(sA), HP))
        for t in range(4):
            I('s_add_u32 %s, %s, %d\ns_and_b32 %s, %s, 3\ns_lshl_b32 %s, %s, 10\nv_add_u32 %s, %s, v252' % (
                s(sA), s(sW), t + 1, s(sA), s(sA), s(sA), s(sA), v(8 + t), s(sA)))
        I('s_cmp_ge_u32 %s, 2\ns_cselect_b32 %s, %d, 0' % (s(sW), s(sA), OOB))
        for t in range(4):
            I('v_add_u32 %s, %s, %s' % (v(12 + t), s(sA), v(8 + t)))
        for i in range(60):
            I('v_mov_b32 %s, 0' % v(ACC + i))
        self.poll_check(253, s(sD), 14)
        self.stamp(10)

        def hload(st):
            out = []
            for t in range(4):
                out.append('buffer_load_dwordx4 %s, %s, %s, %s offen sc1' % (
                    v(HR + 16 * (st % NR) + 4 * t, 4), v((12 if st == 0 else 8) + t), s(rWS, 4), s(sHOFF)))
            out.append('s_add_u32 %s, %s, 4096' % (s(sHOFF), s(sHOFF)))
            return out
        for st in range(NR - 2):
            self.run(hload(st))
        I('s_lshl_b32 %s, %s, 1\ns_add_u32 %s, %s, %s\ns_lshl_b32 %s, %s, 2\ns_add_u32 %s, %s, %s' % (
            s(sA), s(sR2), s(sA), s(sA), s(sNU), s(sA), s(sA), s(sA), s(sA), s(sW)))
        I('s_lshl_b32 %s, %s, 7\ns_add_u32 %s, %s, %d\nv_and_b32 v6, 15, %s\nv_lshlrev_b32 v6, 3, v6' % (s(sA), s(sA), s(sA), s(sA), STATS, L))
        I('buffer_load_dwordx2 v[4:5], v6, %s, %s offen sc1' % (s(rWS, 4), s(sA)))
        for n in range(5):
            for h in range(2):
                x, b = RAW + 2 * n + h, RAW + 10 + 2 * n + h
                d, o = XN + 4 * n + 2 * h, ACC + 60 + 4 * n + 2 * h
                I('v_lshlrev_b32 %s, 16, %s\nv_and_b32 %s, 0xffff0000, %s' % (v(d), v(x), v(d + 1), v(x)))
                I('v_lshlrev_b32 %s, 16, %s\nv_and_b32 %s, 0xffff0000, %s' % (v(o), v(b), v(o + 1), v(b)))
                I('v_pk_add_f32 %s, %s, %s' % (v(o, 2), v(o, 2), v(d, 2)))
        for st in range(NR - 2, NR):
            self.run(hload(st))
        e.wait_tag('y')
        I('s_lshl_b32 %s, %s, 7\ns_add_u32 %s, %s, %d' % (s(sT0), s(sX), s(sT0), s(sT0), FY))
        self.signal_last(LCNT + 4, s(sT0), 6)
        I('s_lshl_b32 %s, %s, 7\ns_add_u32 %s, %s, %d' % (s(sD), s(sCT), s(sD), s(sD), FY))

        def wfrag(st, n):
            fi = 5 * st + n
            return a(4 * fi, 4) if fi < 64 else v(WX + 4 * (fi - 64), 4)

        def mfma(st, t, n):
            c = v(ACC + 4 * (5 * t + n), 4)
            return 'v_mfma_f32_16x16x32_bf16 %s, %s, %s, %s' % (c, wfrag(st, n), v(HR + 16 * (st % NR) + 4 * t, 4), c)

        TAIL = 3
        for st in range(14 - TAIL):
            mf = [mfma(st, t, n) for t in range(4) for n in range(5)]
            fill = []
            if st == 2:
                fill += ['v_mul_f32 v4, v4, v5'] + ['v_fma_f32 %s, %s, v5, -v4' % (v(XN + i), v(XN + i)) for i in range(20)]
            if st == 7:
                fill.append(lambda: self.poll_issue(253, s(sD)))
                fill += ['s_lshl_b32 %s, %s, 1' % (s(sA), s(sR2)), 's_add_u32 %s, %s, %s' % (s(sA), s(sA), s(sNU)),
                         's_mul_i32 %s, %s, 8' % (s(sA), s(sA)), 's_add_u32 %s, %s, %s' % (s(sA), s(sA), s(sCT)),
                         's_mul_i32 %s, %s, 10240' % (s(sA), s(sA)), 's_add_u32 %s, %s, %d' % (s(sYOFF), s(sA), YP),
                         'v_lshlrev_b32 v6, 4, v0', 's_cmp_ge_u32 %s, 2' % s(sW), 's_cselect_b32 %s, %d, 8192' % (s(sA), OOB),
                         'v_add_u32 v7, %s, v6' % s(sA),
                         'v_lshrrev_b32 v12, 3, v0', 'v_mul_u32_u24 v12, 144, v12', 'v_and_b32 v13, 7, v0', 'v_lshl_add_u32 v12, v13, 4, v12']
            if st == 8:
                for t in range(3):
                    fill += ['s_add_u32 %s, %s, %d' % (s(sA), s(sW), t + 1), 's_and_b32 %s, %s, 3' % (s(sA), s(sA)),
                             's_mul_i32 %s, %s, 15360' % (s(sA), s(sA)), 's_add_u32 %s, %s, %d' % (s(sA), s(sA), RED + 5120 * t),
                             'v_add_u32 %s, %s, v252' % (v(8 + t), s(sA))]
                fill += ['s_mul_i32 %s, %s, 15360' % (s(sA), s(sW)), 's_add_u32 %s, %s, %d' % (s(sA), s(sA), RED),
                         'v_add_u32 v11, %s, v252' % s(sA),
                         'v_lshrrev_b32 v13, 2, %s' % L, 'v_mul_u32_u24 v13, 144, v13', 'v_and_b32 v14, 3, %s' % L,
                         'v_lshl_add_u32 v13, v14, 3, v13', 's_lshl_b32 %s, %s, 5' % (s(sA), s(sW)), 'v_add_u32 v13, %s, v13' % s(sA)]
            if st + NR < 14:
                self.run(merge(mf, fill, 0))
                self.run(hload(st + NR))
            else:
                self.run(merge(mf, fill, 0))
        YR = HR + 16 * ((14 - TAIL - 1) % NR)
        self.poll_check(253, s(sD), 32)
        self.stamp(11)
        I('s_add_u32 %s, %s, 4096' % (s(sA), s(sYOFF)))
        I('buffer_load_dwordx4 %s, v6, %s, %s offen sc1' % (v(YR, 4), s(rWS, 4), s(sYOFF)))
        I('buffer_load_dwordx4 %s, v6, %s, %s offen sc1' % (v(YR + 4, 4), s(rWS, 4), s(sA)))
        I('buffer_load_dwordx4 %s, v7, %s, %s offen sc1' % (v(YR + 8, 4), s(rWS, 4), s(sYOFF)))
        pend = []
        for t in range(4):
            mf = [mfma(st, t, n) for n in range(5) for st in range(14 - TAIL, 14)]
            self.run(merge(mf, pend, 2))
            pend = ['ds_write_b128 %s, %s offset:%d' % (v(8 + t), v(ACC + 4 * (5 * t + n), 4), 1024 * n) for n in range(5)] if t < 3 else []
        for i in range(3):
            I('ds_write_b128 v12, %s offset:%d' % (v(YR + 4 * i, 4), YB + 32 * 144 * i))
        e.wait_lg(0)
        I('s_barrier')
        self.stamp(12)
        P = HR
        YT = 96
        for n in range(5):
            I('ds_read_b64_tr_b16 %s, v13 offset:%d' % (v(YT + 2 * n, 2), YB + 16 * 144 * n))
            for t in range(3):
                I('ds_read_b128 %s, v11 offset:%d' % (v(P + 12 * n + 4 * t, 4), 5120 * t + 1024 * n))
        for n in range(5):
            o = ACC + 60 + 4 * n
            for h in range(2):
                y = YT + 2 * n + h
                I('v_lshlrev_b32 %s, 16, %s\nv_and_b32 %s, 0xffff0000, %s' % (v(6), v(y), v(7), v(y)))
                I('v_pk_fma_f32 %s, %s, v[6:7], %s' % (v(o + 2 * h, 2), v(XN + 4 * n + 2 * h, 2), v(o + 2 * h, 2)))
            for h in range(2):
                p = P + 12 * n + 2 * h
                I('v_pk_add_f32 %s, %s, %s' % (v(p, 2), v(p, 2), v(p + 4, 2)))
                I('v_pk_add_f32 %s, %s, %s' % (v(o + 2 * h, 2), v(o + 2 * h, 2), v(p + 8, 2)))
            for h in range(2):
                I('v_pk_add_f32 %s, %s, %s' % (v(o + 2 * h, 2), v(o + 2 * h, 2), v(P + 12 * n + 2 * h, 2)))
            for h in range(2):
                I('v_cvt_pk_bf16_f32 %s, %s, %s' % (v(ACC + 2 * n + h), v(o + 2 * h), v(o + 2 * h + 1)))
            I('buffer_store_dwordx2 %s, v2, %s, %s offen offset:%d' % (v(ACC + 2 * n, 2), s(rOUT, 4), s(sT1), 32 * n))
        self.stamp(13)

    def experiments_head(self):
        I = self.I
        for i in range(self.o.get('x_code', 0) * 128):
            I('v_add3_u32 v%d, v0, v0, v0' % (100 + i % 4))
        n = self.o.get('x_lat', 0)
        if n:
            I('s_mul_i32 %s, s2, 10240\nv_mov_b32 v100, %s' % (s(sT0), s(sT0)))
            for i in range(n):
                I('global_load_dword v101, v100, s[20:21]\nv_and_b32 v101, 0, v101\nv_add3_u32 v100, v100, v101, 64\nv_add_u32 v100, 960, v100')

    def experiments_tail(self):
        n = self.o.get('x_alu', 0)
        if n:
            self.I('s_mov_b32 %s, 0' % s(sT0))
            self.e.label('L_xalu')
            for i in range(16):
                self.I('v_add_u32 v%d, v0, v0' % (100 + i % 4))
            self.I('s_add_u32 %s, %s, 1\ns_cmp_lt_u32 %s, %d\ns_cbranch_scc1 L_xalu' % (s(sT0), s(sT0), s(sT0), n))
            self.stamp(14)

    def build(self):
        e = self.e
        k = NAME + '_kernel'
        if self.o.get('x_list'):
            if self.o['x_list'] == 2:
                e.raw('; @launch kernel=nop_kernel grid=(256,1,1) block=(256,1,1) lds=0')
            e.raw('; @launch kernel=%s grid=(256,1,1) block=(256,1,1) lds=%d' % (k, LDS_BYTES))
            if self.o['x_list'] == 1:
                e.raw('; @launch kernel=nop_kernel grid=(256,1,1) block=(256,1,1) lds=0')
        else:
            e.raw('; @launch grid=(256,1,1) block=(256,1,1) lds=%d' % LDS_BYTES)
        e.raw('.amdgcn_target "amdgcn-amd-amdhsa--gfx950"')
        e.raw('.text\n.globl %s\n.p2align 8\n.type %s,@function\n%s:' % (k, k, k))
        self.entry()
        self.experiments_head()
        self.stamp(0)
        self.I('s_cmp_eq_u32 %s, 7\ns_cbranch_scc1 L_roleS' % s(sCC))
        hist = list(e.hist)
        self.role_g()
        e.label('L_roleS')
        e.written = {('v', i) for i in (0, 1, 2, 4, 5, 255)}
        e.forget()
        e.hist = hist
        self.role_s()
        self.conv()
        self.gemm2()
        self.experiments_tail()
        e.label('L_end')
        e.raw('    s_endpgm')
        if self.o.get('x_list'):
            e.raw('.globl nop_kernel\n.p2align 8\n.type nop_kernel,@function\nnop_kernel:\n    s_endpgm')
        e.raw('''.section .rodata,"a"
.p2align 6
.amdhsa_kernel %s
  .amdhsa_next_free_vgpr 512
  .amdhsa_next_free_sgpr 102
  .amdhsa_accum_offset 256
  .amdhsa_group_segment_fixed_size 0
  .amdhsa_kernarg_size 112
  .amdhsa_user_sgpr_count 2
  .amdhsa_user_sgpr_kernarg_segment_ptr 1
  .amdhsa_system_sgpr_workgroup_id_x 1
.end_amdhsa_kernel''' % k)
        if self.o.get('x_list'):
            e.raw('''.p2align 6
.amdhsa_kernel nop_kernel
  .amdhsa_next_free_vgpr 8
  .amdhsa_next_free_sgpr 16
  .amdhsa_accum_offset 8
  .amdhsa_group_segment_fixed_size 0
  .amdhsa_kernarg_size 112
  .amdhsa_user_sgpr_count 2
  .amdhsa_user_sgpr_kernarg_segment_ptr 1
  .amdhsa_system_sgpr_workgroup_id_x 1
.end_amdhsa_kernel''')
        return e.text()


if __name__ == '__main__':
    out = sys.argv[1]
    opt = dict(OPT)
    for kv in sys.argv[2:]:
        key, val = kv.split('=')
        opt[key] = int(val)
    g = Gen(opt)
    open(out, 'w').write(g.build())
    print('written', out, 'nop states', g.e.nops)
    for w in g.e.warn:
        print('WARN', w)
```

```python
import re
import struct
import sys
from emit import Emit, v, a, s, merge

NAME = 'parallel_sum__ssm_conv_h3__dense_activation_gelu__prompt'
OPT = dict(stamps=0, stop=None)

FS, FH, FK, FW, FY = 0x0, 0x800, 0x1000, 0x1800, 0x1C00
STA, STB, STC = 0x8000, 0x10000, 0x18000
STAMPS = 0x40000
UT = 0x100000
YP = 0x400000
W2P = 0x700000
HP = 0xA00000
WS_BYTES = 0x1100000
OOB = 0x40000000
SPIN_MAX = 200000

KV = 131072
KVSZ = 17408
MISC = 148480
CSX = MISC
LCNT = MISC + 512
W2S = 149504
LDS_BYTES = W2S + 12288
HBSZ, UBSZ = 4352, 4352
YB = 0
RED = 16384

sX, sSLOT, sW = 3, 4, 5
sT0, sT1 = 6, 7
pSHIFT, pSSMD, pB1, pB2, pDBG, pWS = 14, 18, 24, 28, 32, 34
rQ, rK, rV, rW1, rW2, rH, rWS, rOUT = 36, 40, 44, 48, 52, 56, 60, 64
sG4, sFH, sMU, sCC, sR, sQ, sTB, sNT0 = 68, 69, 70, 71, 72, 73, 74, 75
sKTB, sKCG = 76, 77
sA, sB, sC, sD = 78, 79, 80, 81
sSPIN, sVAL, sEARLY, sISG = 82, 83, 84, 85
sCH, sHB, sUB, sROUND = 86, 87, 88, 89
sI, sJ = 90, 91
sM = 92
sW2OFF, sST = 100, 101
sDX, sDW = 8, 9
sR2, sNU, sCT = 10, 11, 12
sHOFF = 20
sYOFF = 13
sW2S, sW2Q, sKW = 23, 26, 27
sLO = 16
sH0 = 17

vL = 1
vL16 = 252
vP = 253
vZ = 255


def f2u(x):
    return struct.unpack('<I', struct.pack('<f', x))[0]


def hexf(x):
    return '0x%08x' % f2u(x)


class Gen:
    def __init__(self, opt):
        self.o = opt
        self.e = Emit()
        self.nlab = 0
        self.I = self.e.I
        self.prev = None


    def capture(self, fn, *args):
        out = []
        real = self.I
        self.I = lambda text, tag=None: out.extend((ln.strip(), tag) for ln in text.strip().split('\n') if ln.strip())
        try:
            fn(*args)
        finally:
            self.I = real
        joined = []
        for ln, tag in out:
            if joined and re.match(r's_(cselect|addc|cbranch)', ln):
                joined[-1] = (joined[-1][0] + '\n' + ln, None)
            else:
                joined.append((ln, tag))
        return joined

    def lab(self, p='L'):
        self.nlab += 1
        return '%s_%d' % (p, self.nlab)

    def run(self, seq):
        for it in seq:
            if callable(it):
                it()
            elif isinstance(it, tuple):
                self.I(it[0], it[1])
            else:
                self.I(it)

    def stamp(self, idx, cyc=False):
        if not self.o['stamps']:
            return
        r = self.e.raw
        if self.prev is not None:
            r('    v_writelane_b32 v254, s0, %d' % self.prev)
        r('    %s s[0:1]' % ('s_memtime' if cyc else 's_memrealtime'))
        self.prev = idx
        if cyc or self.o['stamps'] == 2:
            self.stamp_sync()

    def stamp_sync(self):
        if self.o['stamps'] and self.prev is not None:
            self.e.raw('    s_waitcnt lgkmcnt(0)\n    v_writelane_b32 v254, s0, %d' % self.prev)
            self.prev = None

    def stamp_flush(self):
        if not self.o['stamps']:
            return
        self.stamp_sync()
        self.stamp(61, cyc=True)
        r = self.e.raw
        r('    s_lshl_b32 s0, s2, 10\n    s_add_u32 s0, s0, %d\n    v_lshlrev_b32 v253, 2, v0' % STAMPS)
        r('    buffer_store_dword v254, v253, %s, s0 offen' % s(rWS, 4))

    def srd(self, r, p, nbytes):
        self.I('s_mov_b32 %s, %s\ns_mov_b32 %s, %s\ns_mov_b32 %s, %d\ns_mov_b32 %s, 0x20000' % (
            s(r), s(p), s(r + 1), s(p + 1), s(r + 2), nbytes, s(r + 3)))

    def poll_issue(self, vd, soff, tag=None):
        self.I('buffer_load_dword %s, %s, %s, %s offen sc1' % (v(vd), v(vZ), s(rWS, 4), soff), tag)

    def poll_check(self, vd, soff, target, dbg=False):
        ok, again = self.lab('Lok'), self.lab('Lspin')
        self.I('v_readfirstlane_b32 %s, %s' % (s(sVAL), v(vd)))
        self.I('s_mov_b32 %s, 0' % s(sSPIN))
        self.I('s_cmp_ge_u32 %s, %s' % (s(sVAL), target))
        self.I('s_cbranch_scc1 ' + ok)
        self.e.label(again)
        if dbg:
            self.e.raw('    global_load_dword %s, %s, %s sc1' % (v(vd), v(vZ), s(pDBG, 2)))
        else:
            self.e.raw('    buffer_load_dword %s, %s, %s, %s offen sc1' % (v(vd), v(vZ), s(rWS, 4), soff))
        self.e.raw('    s_waitcnt vmcnt(0)')
        self.e.raw('    v_readfirstlane_b32 %s, %s' % (s(sVAL), v(vd)))
        self.e.raw('    s_add_u32 %s, %s, 1' % (s(sSPIN), s(sSPIN)))
        self.e.raw('    s_cmp_ge_u32 %s, %d' % (s(sSPIN), SPIN_MAX))
        self.e.raw('    s_cbranch_scc1 ' + ok)
        self.e.raw('    s_cmp_lt_u32 %s, %s' % (s(sVAL), target))
        self.e.raw('    s_cbranch_scc1 ' + again)
        self.e.label(ok)

    def signal(self, soffs, vt):
        self.I('v_mov_b32 %s, 1' % v(vt))
        self.I('s_mov_b64 exec, 1')
        for so in soffs:
            self.I('buffer_atomic_add %s, %s, %s, %s offen sc1' % (v(vt), v(vZ), s(rWS, 4), so))
        self.I('s_mov_b64 exec, -1')

    def signal_wave0(self, soffs, vt):
        lab = self.lab('Lsig')
        starts = len(self.e.vm)
        self.I('s_cmp_lg_u32 %s, 0' % s(sW))
        self.I('s_cbranch_scc1 ' + lab)
        self.signal(soffs, vt)
        del self.e.vm[starts:]
        self.e.label(lab)

    def arrive(self, cnt_off, vt):
        self.I('v_mov_b32 %s, 1\nv_mov_b32 %s, %d' % (v(vt), v(vt + 1), cnt_off))
        self.I('s_mov_b64 exec, 1')
        self.I('ds_add_rtn_u32 %s, %s, %s' % (v(vt + 1), v(vt + 1), v(vt)))
        self.I('s_mov_b64 exec, -1')

    def arrive_done(self, soff, vt):
        lab = self.lab('Lsig')
        self.I('v_readfirstlane_b32 %s, %s' % (s(sVAL), v(vt + 1)))
        self.I('s_cmp_lg_u32 %s, 3' % s(sVAL))
        self.I('s_cbranch_scc1 ' + lab)
        self.I('s_mov_b64 exec, 1')
        self.I('buffer_atomic_add %s, %s, %s, %s offen sc1' % (v(vt), v(vZ), s(rWS, 4), soff))
        self.I('s_mov_b64 exec, -1')
        self.e.vm.pop()
        self.e.label(lab)

    @staticmethod
    def weave(main, *lists):
        n = len(main)
        gaps = [[] for _ in range(n)]
        for items, start, step in lists:
            pos = float(start)
            held = []
            last = 0
            for it in items:
                txt = it if isinstance(it, str) else (it[0] if isinstance(it, tuple) else '')
                if step >= 2 and txt.startswith('s_'):
                    held.append(it)
                    continue
                g = min(int(pos), n - 1)
                gaps[max(g - 1, last)] += held
                held = []
                gaps[g].append(it)
                last = g
                pos += step
            gaps[min(int(pos), n - 1)] += held
        out = []
        for m, g in zip(main, gaps):
            out.append(m)
            out += g
        return out

    def entry(self):
        I = self.I
        I('s_cmp_ge_u32 s2, 256\ns_cbranch_scc1 L_end')
        I('s_load_dwordx16 s[8:23], s[0:1], 0\ns_load_dwordx8 s[24:31], s[0:1], 64\ns_load_dwordx4 s[32:35], s[0:1], 96')
        I('v_lshrrev_b32 v2, 6, v0\nv_and_b32 %s, 63, v0\nv_mov_b32 %s, 0' % (v(vL), v(vZ)))
        I('v_readfirstlane_b32 %s, v2' % s(sW))
        if self.o.get('x_map'):
            I('s_lshr_b32 %s, s2, 5\ns_and_b32 %s, s2, 31' % (s(sX), s(sSLOT)))
        else:
            I('s_and_b32 %s, s2, 7\ns_lshr_b32 %s, s2, 3' % (s(sX), s(sSLOT)))
        I('s_lshr_b32 %s, %s, 1\ns_and_b32 %s, %s, 1' % (s(sG4), s(sX), s(sFH), s(sX)))
        I('s_lshr_b32 %s, %s, 3\ns_and_b32 %s, %s, 7' % (s(sMU), s(sSLOT), s(sCC), s(sSLOT)))
        I('s_lshl_b32 %s, %s, 2\ns_add_u32 %s, %s, %s' % (s(sR), s(sG4), s(sR), s(sR), s(sMU)))
        I('s_lshl_b32 %s, %s, 3\ns_add_u32 %s, %s, %s' % (s(sQ), s(sFH), s(sQ), s(sQ), s(sCC)))
        I('s_lshl_b32 %s, %s, 9\ns_lshl_b32 %s, %s, 4\ns_add_u32 %s, %s, %s' % (
            s(sTB), s(sG4), s(sT0), s(sMU), s(sTB), s(sTB), s(sT0)))
        I('v_lshrrev_b32 v2, 5, v0\nv_mul_u32_u24 v2, %d, v2\nv_and_b32 v3, 31, v0\nv_lshl_add_u32 v2, v3, 3, v2' % (64 * 1280))
        I('s_add_u32 %s, %s, %s\ns_mul_i32 %s, %s, 1280' % (s(sA), s(sTB), s(sQ), s(sA), s(sA)))
        I('v_lshrrev_b32 v6, 3, %s\nv_lshrrev_b32 v7, 5, %s\nv_lshlrev_b32 v7, 1, v7\nv_and_b32 v8, 7, %s' % (v(vL), v(vL), v(vL)))
        I('v_xor_b32 v8, v8, v7\nv_mul_u32_u24 v6, 1280, v6\nv_lshl_add_u32 v4, v8, 4, v6\nv_xor_b32 v5, 64, v4')
        I('v_lshlrev_b32 %s, 4, %s' % (v(vL16), v(vL)))
        I('s_lshl_b32 %s, %s, 2\ns_add_u32 %s, %s, %s' % (s(sD), s(sX), s(sD), s(sD), s(sMU)))
        self.e.wait_lg(0)
        self.srd(rQ, 8, 2621440)
        self.srd(rWS, pWS, WS_BYTES)

    def code_prefetch(self):
        if not self.o.get('pf', 0):
            return
        I = self.I
        lab = self.lab('Lpc')
        I('s_getpc_b64 %s' % s(sA, 2))
        I(lab + ':')
        I('s_lshl_b32 %s, %s, 10\nv_and_b32 v6, 7, %s\nv_lshl_add_u32 v6, v6, 7, %s' % (s(sT0), s(sSLOT), v(vL), s(sT0)))
        I('v_min_u32 v6, L_end-%s, v6' % lab)
        I('v_mov_b32 v7, %s\nv_add_co_u32 v6, vcc, %s, v6\nv_addc_co_u32 v7, vcc, 0, v7, vcc' % (s(sA + 1), s(sA)))
        I('global_load_dword v9, v[6:7], off')

    def stats_issue(self):
        for i in range(5):
            self.I('buffer_load_dwordx2 %s, v2, %s, %s offen offset:%d' % (v(10 + 2 * i, 2), s(rQ, 4), s(sA), 256 * i))

    def stats_sums(self):
        I = self.I
        I('v_mov_b32 v240, 0\nv_mov_b32 v241, 0\nv_mov_b32 v242, 0x3f803f80')
        for i in range(10):
            I('v_dot2c_f32_bf16 v240, v%d, v242' % (10 + i))
        for i in range(10):
            I('v_dot2c_f32_bf16 v241, v%d, v%d' % (10 + i, 10 + i))

    def stats_finish(self):
        I = self.I
        C0 = -2.0 * 0.7978845608028654 * 1.4426950408889634
        I('s_lshl_b32 %s, %s, 4\ns_add_u32 %s, %s, %s' % (s(sA), s(sR), s(sA), s(sA), s(sQ)))
        for mod in ('quad_perm:[1,0,3,2]', 'quad_perm:[2,3,0,1]', 'row_half_mirror', 'row_mirror'):
            I('v_add_f32_dpp v240, v240, v240 %s row_mask:0xf bank_mask:0xf' % mod)
            I('v_add_f32_dpp v241, v241, v241 %s row_mask:0xf bank_mask:0xf' % mod)
        I('v_mov_b32 v242, v240\nv_mov_b32 v243, v241')
        I('s_lshl_b32 %s, %s, 7\ns_add_u32 %s, %s, %d' % (s(sB), s(sA), s(sB), s(sB), STA))
        I('v_permlane16_swap_b32 v240, v242\nv_permlane16_swap_b32 v241, v243')
        I('v_add_f32 v240, v240, v242\nv_add_f32 v241, v241, v243')
        I('v_mul_f32 v10, %s, v240\nv_mul_f32 v241, %s, v241' % (hexf(1 / 640), hexf(1 / 640)))
        I('v_fma_f32 v241, -v10, v10, v241\nv_cvt_pk_bf16_f32 v12, -v10, -v10\nv_max_f32 v241, 0, v241')
        I('v_add_f32 v241, %s, v241\nv_and_b32 v242, 0xffff0000, v12\nv_rsq_f32 v11, v241' % hexf(1e-5))
        I('v_sub_f32 v242, -v10, v242\nv_lshrrev_b32 v243, 5, v0\nv_mul_f32 v18, v241, v11')
        I('v_mul_f32 v16, %s, v11\nv_cvt_pk_bf16_f32 v13, v242, v18\nv_mul_f32 v17, v11, v11' % hexf(C0))
        I('v_and_b32 v242, 0xffff0000, v13\nv_mul_f32 v17, %s, v17\nv_sub_f32 v242, v18, v242' % hexf(0.044715))
        I('v_mul_f32 v17, v17, v16\nv_cvt_pk_bf16_f32 v14, v242, 0\nv_mov_b32 v15, 0\nv_mov_b32 v19, v11')
        I('v_lshlrev_b32 v242, 4, v243\nv_lshlrev_b32 v243, 3, v243')
        I('s_add_u32 %s, %s, %d\ns_lshl_b32 %s, %s, 6\ns_add_u32 %s, %s, %d' % (s(sC), s(sB), STB - STA, s(sA), s(sA), s(sA), s(sA), STC))
        I('s_mov_b32 exec_lo, 1\ns_mov_b32 exec_hi, 1')
        I('buffer_store_dwordx4 v[12:15], v242, %s, %s offen sc1' % (s(rWS, 4), s(sB)), 'stat')
        I('buffer_store_dwordx4 v[16:19], v242, %s, %s offen sc1' % (s(rWS, 4), s(sC)), 'stat')
        I('buffer_store_dwordx2 v[10:11], v243, %s, %s offen sc1' % (s(rWS, 4), s(sA)), 'stat')
        I('s_mov_b64 exec, -1')

    KA, KSH, KST, KID, KW1, KF, KS, KVT, KPK = 192, 195, 197, 200, 204, 64, 212, 112, 244

    def kv_task(self, kappa):
        self.I('s_and_b32 %s, %s, 31\ns_lshr_b32 %s, %s, 5' % (s(sKTB), s(kappa), s(sKCG), s(kappa)))

    def kv_issue(self, lds, vshift):
        I = self.I
        I('s_lshl_b32 %s, %s, 6\ns_mul_i32 %s, %s, 1280\ns_lshl_b32 %s, %s, 7\ns_add_u32 %s, %s, %s' % (
            s(sA), s(sKTB), s(sA), s(sA), s(sB), s(sKCG), s(sA), s(sA), s(sB)))
        I('s_sub_u32 %s, %s, %d\ns_cmp_eq_u32 %s, 0\ns_cselect_b32 %s, %d, %s' % (s(sB), s(sA), 8 * 1280, s(sKTB), s(sB), 2621440, s(sB)))
        I('s_mov_b32 m0, %d\ns_lshl_b32 %s, %s, 11' % (lds, s(sC), s(sW)))
        I('buffer_load_dwordx4 v4, %s, %s offen nt lds' % (s(rK, 4), s(sB)), 'kv')
        I('s_add_u32 m0, %s, %d' % (s(sC), lds + 1024))
        I('s_mul_i32 %s, %s, %d\ns_add_u32 %s, %s, %s' % (s(sB), s(sW), 16 * 1280, s(sA), s(sA), s(sB)))
        I('buffer_load_dwordx4 v5, %s, %s offen nt lds' % (s(rK, 4), s(sA)), 'kv')
        I('s_add_u32 m0, %s, %d\ns_add_u32 %s, %s, %d' % (s(sC), lds + 2048, s(sB), s(sA), 8 * 1280))
        I('buffer_load_dwordx4 v4, %s, %s offen nt lds' % (s(rK, 4), s(sB)), 'kv')
        I('s_add_u32 m0, %s, %d\nv_and_b32 v6, 15, %s' % (s(sC), lds + 9216, v(vL)))
        I('buffer_load_dwordx4 v4, %s, %s offen nt lds' % (s(rV, 4), s(sA)), 'kv')
        I('s_add_u32 m0, %s, %d\nv_lshlrev_b32 v6, 3, v6' % (s(sC), lds + 9216 + 1024))
        I('buffer_load_dwordx4 v5, %s, %s offen nt lds' % (s(rV, 4), s(sB)), 'kv')
        I('s_lshl_b32 %s, %s, 2\ns_add_u32 %s, %s, %s\ns_lshl_b32 %s, %s, 7' % (s(sA), s(sKCG), s(sA), s(sA), s(sW), s(sA), s(sA)))
        I('v_add_u32 v6, %s, v6' % s(sA))
        I('global_load_dwordx2 %s, v6, %s' % (v(vshift, 2), s(pSHIFT, 2)), 'kv')

    def kv_setup(self, hi):
        I = self.I
        L = v(vL)
        I('v_and_b32 v6, 3, %s\nv_lshlrev_b32 v6, 2, v6\nv_bfe_u32 v7, %s, 2, 2\nv_add_u32 v6, v6, v7' % (L, L))
        I('v_bfe_u32 v7, %s, 4, 1\ns_lshl_b32 %s, %s, 1\nv_add_u32 v7, %s, v7' % (L, s(sA), s(sW), s(sA)))
        I('v_lshrrev_b32 v8, 5, %s' % L)
        for k, (off, sub) in enumerate(((8, True), (6, True), (72, False))):
            I('v_add_u32 v9, %d, v6' % (off + hi // 128))
            if sub:
                I('v_sub_u32 v9, v9, v8')
            I('v_bfe_u32 v3, %s, 2, 2' % ('v9' if sub else 'v6'))
            I('v_lshlrev_b32 v3, 1, v3\nv_xor_b32 v3, v3, v7\nv_lshlrev_b32 v3, 4, v3\nv_lshl_add_u32 %s, v9, 7, v3' % v(self.KA + k))
        I('v_bfe_u32 v6, %s, 3, 1\nv_bfe_u32 v7, %s, 4, 1\nv_bfe_u32 v9, %s, 1, 2\nv_cmp_eq_u32 vcc, v6, v7' % (L, L, L))
        I('v_lshlrev_b32 %s, 4, v8\nv_and_b32 %s, 1, %s' % (v(self.KSH), v(self.KSH + 1), L))
        I('v_cndmask_b32 v9, 7, v9, vcc\nv_lshlrev_b32 %s, 4, %s' % (v(self.KSH + 1), v(self.KSH + 1)))
        for d in range(4):
            I('v_cmp_eq_u32 %s, %d, v9' % (s(sM + 2 * d, 2), d))
        I('v_cmp_gt_u32 vcc, 32, %s\nv_mov_b32 v6, 0x3f80\nv_and_b32 v3, 15, %s' % (L, L))
        I('v_cndmask_b32 v6, 0, v6, vcc\nv_lshlrev_b32 v6, %s, v6' % v(self.KSH + 1))
        for d in range(4):
            I('v_cndmask_b32 %s, 0, v6, %s' % (v(self.KID + d), s(sM + 2 * d, 2)))
        I('v_lshlrev_b32 v3, 12, v3\nv_lshrrev_b32 v7, 4, %s\nv_lshl_add_u32 %s, v7, 4, v3' % (L, v(self.KST)))

    def kv_weights(self, vshift):
        I = self.I
        for j in range(2):
            I('v_lshrrev_b32 v6, %s, %s\nv_and_b32 v6, 0xffff, v6\nv_lshlrev_b32 v6, %s, v6' % (v(self.KSH), v(vshift + j), v(self.KSH + 1)))
            for d in range(4):
                I('v_cndmask_b32 %s, 0, v6, %s' % (v(self.KW1 + 4 * j + d), s(sM + 2 * d, 2)))

    def kv_reads(self, base):
        for b in range(4):
            for i in range(3):
                self.I('ds_read_b128 %s, %s offset:%d' % (v(self.KF + 12 * b + 4 * i, 4), v(self.KA + i), base + 2048 * b))

    def kv_compute(self):
        I = self.I
        F, KS, VT, PK = self.KF, self.KS, self.KVT, self.KPK
        I('s_lshl_b32 %s, %s, 2\ns_add_u32 %s, %s, %s\ns_lshl_b32 %s, %s, 16' % (s(sA), s(sKCG), s(sA), s(sA), s(sW), s(sA), s(sA)))
        I('s_lshl_b32 %s, %s, 7\ns_add_u32 %s, %s, %s\ns_add_u32 %s, %s, %d' % (s(sB), s(sKTB), s(sA), s(sA), s(sB), s(sA), s(sA), UT))
        mf = []
        for b in range(4):
            mf.append('v_mfma_f32_16x16x32_bf16 %s, %s, %s, 0' % (v(KS + 4 * b, 4), v(F + 12 * b, 4), v(self.KW1, 4)))
            mf.append('v_mfma_f32_16x16x32_bf16 %s, %s, %s, 0' % (v(VT + 4 * b, 4), v(F + 12 * b + 8, 4), v(self.KID, 4)))
            mf.append('v_mfma_f32_16x16x32_bf16 %s, %s, %s, %s' % (v(KS + 4 * b, 4), v(F + 12 * b + 4, 4), v(self.KW1 + 4, 4), v(KS + 4 * b, 4)))

        def fin(b):
            out = ['v_mul_f32 %s, %s, %s' % (v(KS + 4 * b + i), v(KS + 4 * b + i), v(VT + 4 * b + i)) for i in range(4)]
            out += ['v_cvt_pk_bf16_f32 %s, %s, %s' % (v(PK + 2 * b + i), v(KS + 4 * b + 2 * i), v(KS + 4 * b + 2 * i + 1)) for i in range(2)]
            if b & 1:
                out.append(('buffer_store_dwordx4 %s, %s, %s, %s offen offset:%d sc1' % (
                    v(PK + 2 * b - 2, 4), v(self.KST), s(rWS, 4), s(sA), 32 * (b - 1)), 'prep'))
            return out
        self.run(mf[:8] + merge(mf[8:], fin(0), 0) + fin(1) + fin(2) + fin(3))

    W2A, W2F = 228, 52

    def w2_setup(self):
        I = self.I
        I('s_lshr_b32 %s, %s, 2\ns_and_b32 %s, %s, 3' % (s(sW2S), s(sT0), s(sW2Q), s(sT0)))
        for i in range(3):
            I('v_add_u32 v6, %d, v0\nv_mul_u32_u24 v7, 3277, v6\nv_lshrrev_b32 v7, 16, v7\nv_mul_u32_u24 v8, 20, v7\nv_sub_u32 v8, v6, v8' % (256 * i))
            I('v_mul_u32_u24 v7, 1280, v7\nv_lshl_add_u32 %s, v8, 4, v7' % v(self.W2A + i))
        I('s_cmp_ge_u32 %s, 2\ns_cselect_b32 %s, %d, 0' % (s(sW), s(sA), OOB))
        I('v_add_u32 %s, %s, %s' % (v(self.W2A + 2), s(sA), v(self.W2A + 2)))
        I('s_mul_i32 %s, %s, %d\ns_mul_i32 %s, %s, 320\ns_add_u32 %s, %s, %s' % (s(sKW), s(sW2S), 32 * 1280, s(sA), s(sW2Q), s(sKW), s(sKW), s(sA)))

    def w2_issue(self):
        I = self.I
        for i in range(3):
            I('s_lshl_b32 %s, %s, 10\ns_add_u32 m0, %s, %d' % (s(sA), s(sW), s(sA), W2S + 4096 * i))
            I('buffer_load_dwordx4 %s, %s, %s offen nt lds' % (v(self.W2A + i), s(rW2, 4), s(sKW)), 'kv')

    def w2_addr(self):
        I = self.I
        L = v(vL)
        I('v_lshrrev_b32 v7, 2, %s\nv_mul_u32_u24 v7, 320, v7\nv_and_b32 v6, 3, %s\nv_lshl_add_u32 v7, v6, 3, v7' % (L, L))
        I('s_lshl_b32 %s, %s, 5\ns_add_u32 %s, %s, %d\nv_add_u32 %s, %s, v7' % (s(sA), s(sW), s(sA), s(sA), W2S, v(self.W2A + 3), s(sA)))
        I('s_mul_i32 %s, %s, 108\ns_add_u32 %s, %s, %s\ns_mul_i32 %s, %s, 5120\ns_lshl_b32 %s, %s, 10\ns_add_u32 %s, %s, %s' % (
            s(sA), s(sW2Q), s(sA), s(sA), s(sW2S), s(sA), s(sA), s(sB), s(sW), s(sA), s(sA), s(sB)))
        I('s_add_u32 %s, %s, %d\ns_cmp_ge_u32 %s, 54\ns_cselect_b32 %s, %d, %s' % (s(sA), s(sA), W2P, s(sW2S), s(sHOFF), WS_BYTES, s(sA)))
        I('s_movk_i32 %s, 4096\ns_cmp_eq_u32 %s, 0\ns_cselect_b32 %s, %s, %d' % (s(sA), s(sW), s(sA), s(sA), 54 * 5120 - 1024))
        I('s_add_u32 %s, %s, %s' % (s(sHOFF + 1), s(sHOFF), s(sA)))
        I('s_mov_b32 %s, %d\ns_cmp_ge_u32 %s, 2\ns_cselect_b32 %s, %s, %d' % (s(sA), WS_BYTES, s(sW), s(sA), s(sA), 54 * 5120 + 3072))
        I('s_add_u32 %s, %s, %s' % (s(sHOFF + 2), s(sHOFF), s(sA)))

    def w2_reads(self):
        for i in range(3):
            for hf in range(2):
                self.I('ds_read_b64_tr_b16 %s, %s offset:%d' % (v(self.W2F + 4 * i + 2 * hf, 2), v(self.W2A + 3), 5120 * hf + 128 * i))

    def w2_stores(self):
        for i in range(3):
            self.I('buffer_store_dwordx4 %s, %s, %s, %s offen sc1' % (v(self.W2F + 4 * i, 4), v(vL16), s(rWS, 4), s(sHOFF + i)), 'prep')

    def lds_init(self):
        self.I('v_mov_b32 v6, %d\nds_write2_b32 v6, v255, v255 offset1:1' % LCNT)

    def gemm2_ids(self):
        I = self.I
        I('s_lshl_b32 %s, %s, 1\ns_lshr_b32 %s, %s, 4\ns_add_u32 %s, %s, %s' % (s(sR2), s(sX), s(sT0), s(sSLOT), s(sR2), s(sR2), s(sT0)))
        I('s_bfe_u32 %s, %s, 0x10003\ns_and_b32 %s, %s, 7' % (s(sNU), s(sSLOT), s(sCT), s(sSLOT)))
        I('s_mul_i32 %s, %s, 13\ns_cmp_lg_u32 %s, 0\ns_addc_u32 %s, %s, 0' % (s(sST), s(sW), s(sW), s(sST), s(sST)))
        I('s_mul_i32 %s, %s, 54\ns_add_u32 %s, %s, %s\ns_mul_i32 %s, %s, 5120\ns_add_u32 %s, %s, %d' % (
            s(sW2OFF), s(sCT), s(sW2OFF), s(sW2OFF), s(sST), s(sW2OFF), s(sW2OFF), s(sW2OFF), s(sW2OFF), W2P))

    def late_setup(self):
        I = self.I
        L = v(vL)
        I('v_bfe_u32 v2, %s, 2, 2\nv_lshrrev_b32 v6, 4, %s\nv_lshlrev_b32 v7, 1, v6\nv_sub_u32 v3, v2, v7\nv_lshlrev_b32 v3, 5, v3' % (L, L))
        I('v_and_b32 v7, 3, %s\nv_sub_u32 v4, v7, v2\nv_lshl_add_u32 v2, v7, 3, v3\ns_add_u32 %s, %s, 224\nv_add_u32 v2, %s, v2' % (L, s(sT0), s(sUB), s(sT0)))
        I('v_add_u32 v3, 2048, v2\nv_lshlrev_b32 v4, 3, v4\nv_lshl_add_u32 v4, v6, 6, v4')
        I('s_add_u32 %s, %s, 32\nv_add_u32 v4, %s, v4' % (s(sT0), s(sHB), s(sT0)))
        I('v_lshlrev_b32 v13, 3, v6')
        I('v_lshrrev_b32 v6, 3, %s\nv_mul_u32_u24 v6, %d, v6\nv_and_b32 v7, 7, %s\nv_lshl_add_u32 v5, v7, 4, v6' % (L, 640 * 128, L))
        I('v_lshlrev_b32 v7, 6, v7\nv_bfe_u32 v6, %s, 3, 1\nv_add_u32 v6, v6, v7\nv_mul_u32_u24 v6, 1280, v6\nv_add_u32 v12, v6, v13' % L)
        I('s_lshr_b32 %s, %s, 2\ns_lshl_b32 %s, %s, 9\ns_and_b32 %s, %s, 3\ns_lshl_b32 %s, %s, 4\ns_add_u32 %s, %s, %s' % (
            s(sT1), s(sR2), s(sT1), s(sT1), s(sT0), s(sR2), s(sT0), s(sT0), s(sT1), s(sT1), s(sT0)))
        I('s_lshl_b32 %s, %s, 3\ns_add_u32 %s, %s, %s\ns_lshl_b32 %s, %s, 1\ns_add_u32 %s, %s, %s' % (
            s(sT0), s(sNU), s(sT1), s(sT1), s(sT0), s(sT0), s(sW), s(sT1), s(sT1), s(sT0)))
        I('s_mul_i32 %s, %s, 1280\ns_mul_i32 %s, %s, 160\ns_add_u32 %s, %s, %s' % (s(sT1), s(sT1), s(sT0), s(sCT), s(sT1), s(sT1), s(sT0)))
        I('v_add_u32 v13, %s, v13' % s(sT0))
        for t in range(4):
            I('s_add_u32 %s, %s, %d\ns_and_b32 %s, %s, 3\ns_lshl_b32 %s, %s, 10\nv_add_u32 %s, %s, %s' % (
                s(sT0), s(sW), t + 1, s(sT0), s(sT0), s(sT0), s(sT0), v(8 + t), s(sT0), v(vL16)))
        I('s_lshl_b32 %s, %s, 1\ns_add_u32 %s, %s, %s\ns_mul_i32 %s, %s, 54\ns_add_u32 %s, %s, %s' % (
            s(sT0), s(sR2), s(sT0), s(sT0), s(sNU), s(sT0), s(sT0), s(sT0), s(sT0), s(sST)))
        I('s_lshl_b32 %s, %s, 12\ns_add_u32 %s, %s, %d' % (s(sT0), s(sT0), s(sHOFF), s(sT0), HP))
        I('s_cmp_ge_u32 %s, 2\ns_cselect_b32 %s, %d, %s' % (s(sW), s(sH0), WS_BYTES, s(sHOFF)))

    def h_issue(self, hb, ch, vD):
        I = self.I
        I('s_add_u32 m0, %s, 32\ns_lshl_b32 %s, %s, 12' % (s(hb), s(sA), s(ch)))
        for i in range(4):
            I('buffer_load_dwordx4 %s, %s, %s offen offset:%d nt lds' % (v(vL16), s(rH, 4), s(sA), 1024 * i), 'h')
        I('s_lshl_b32 %s, %s, 1\nv_mov_b32 v6, %s' % (s(sA), s(ch), s(sA)))
        I('global_load_ushort %s, v6, %s' % (v(vD), s(pSSMD, 2)), 'h')

    def u_issue(self, ch, dst):
        self.I('s_lshl_b32 %s, %s, 12\ns_add_u32 %s, %s, %d' % (s(sA), s(ch), s(sA), s(sA), UT))
        for i in range(4):
            self.I('buffer_load_dwordx4 %s, %s, %s, %s offen offset:%d sc1' % (dst(4 * i, 4), v(vL16), s(rWS, 4), s(sA), 1024 * i), 'u')

    def conv_pads(self, hb, ub):
        I = self.I
        I('v_lshl_add_u32 v6, %s, 2, %s\nds_write_b32 v6, %s' % (v(vL), s(ub), v(vZ)))
        I('v_and_b32 v7, 7, %s\nv_lshl_add_u32 v7, v7, 2, %s\nds_write_b32 v7, %s' % (v(vL), s(hb), v(vZ)))

    def conv_dfix_a(self, hb):
        self.I('v_mov_b32 v14, %s\nds_read_u16 v15, v14 offset:32' % s(hb))

    def conv_dfix_b(self, vD):
        self.I('v_lshlrev_b32 v6, 16, %s\nv_lshlrev_b32 v15, 16, v15\nv_add_f32 v15, v15, v6\nv_cvt_pk_bf16_f32 v15, v15, v15' % v(vD))
        self.I('ds_write_b16 v14, v15 offset:32')

    def conv_ustage(self, ub, src):
        I = self.I
        L = v(vL)
        I('v_lshrrev_b32 v6, 2, %s\nv_lshlrev_b32 v6, 6, v6\nv_and_b32 v7, 3, %s\nv_lshl_add_u32 v6, v7, 3, v6' % (L, L))
        I('s_add_u32 %s, %s, 256\nv_add_u32 v6, %s, v6\nv_add_u32 v7, 2048, v6' % (s(sT0), s(ub), s(sT0)))
        for i in range(4):
            I('ds_write2_b64 %s, %s, %s offset0:%d offset1:%d' % (v(6 + i // 2), src(4 * i, 2), src(4 * i + 2, 2), 128 * (i & 1), 128 * (i & 1) + 4))

    WX = 188

    def w2_loads(self, g):
        out = [('s_add_u32 %s, %s, %d' % (s(sC), s(sW2OFF), 4096 * g), None)]
        for i in range(4 if g < 17 else 2):
            dst = a(16 * g + 4 * i, 4) if g < 16 else v(self.WX + 16 * (g - 16) + 4 * i, 4)
            out.append(('buffer_load_dwordx4 %s, %s, %s, %s offen offset:%d sc1' % (dst, v(vL16), s(rWS, 4), s(sC), 1024 * i), None))
        return out

    XA, WA, DX, DW, ONES, CS, B1 = 20, 24, 32, 36, 40, 44, 248
    ACC, FR = 64, 128
    XB, KK, AX = 192, 208, 224

    def g1_setup(self):
        I = self.I
        L = v(vL)
        I('s_mul_i32 %s, %s, 7\ns_add_u32 %s, %s, %s\ns_lshl_b32 %s, %s, 2\ns_min_u32 %s, %s, 50' % (
            s(sT0), s(sFH), s(sT0), s(sT0), s(sCC), s(sNT0), s(sT0), s(sNT0), s(sNT0)))
        I('v_lshrrev_b32 v6, 3, %s\nv_mul_u32_u24 v6, %d, v6\nv_lshrrev_b32 v7, 4, %s\nv_and_b32 v8, 7, %s\nv_xor_b32 v8, v8, v7' % (L, 64 * 1280, L, L))
        I('v_lshl_add_u32 %s, v8, 4, v6' % v(self.DX))
        I('v_xor_b32 v6, 64, %s' % v(self.DX))
        I('v_add_u32 %s, 256, v6\nv_add_u32 %s, 512, %s\nv_add_u32 %s, 768, v6' % (v(self.DX + 1), v(self.DX + 2), v(self.DX), v(self.DX + 3)))
        I('v_mul_u32_u24 v6, 3456, v7\nv_lshlrev_b32 v7, 2, v7\nv_and_b32 v8, 15, %s\nv_xor_b32 v8, v8, v7\nv_lshl_add_u32 %s, v8, 4, v6' % (L, v(self.DW)))
        I('v_xor_b32 v8, 2, v8\nv_lshl_add_u32 v6, v8, 4, v6')
        step = 4 * 3456 - 1024
        I('v_add_u32 %s, %d, %s\nv_add_u32 %s, %d, v6\nv_add_u32 %s, %d, v6' % (
            v(self.DW + 1), step, v(self.DW), v(self.DW + 2), 2 * step, v(self.DW + 3), 3 * step))
        I('s_lshl_b32 %s, %s, 2\ns_add_u32 %s, %s, %s\ns_mul_i32 %s, %s, 1280' % (s(sT0), s(sW), s(sT0), s(sT0), s(sTB), s(sDX), s(sT0)))
        I('s_mul_i32 %s, %s, %d\ns_lshl_b32 %s, %s, 6\ns_add_u32 %s, %s, %s' % (s(sDW), s(sW), 16 * 3456, s(sT0), s(sNT0), s(sDW), s(sDW), s(sT0)))
        I('s_lshl_b32 %s, %s, 12' % (s(sD), s(sW)))

    def g1_dma(self, c):
        slot = (c % 4) * 32768
        out = [('s_add_u32 m0, %s, %d' % (s(sD), slot), None)]
        for i in range(4):
            out.append(('buffer_load_dwordx4 %s, %s, %s offen offset:%d lds' % (v(self.DX + i), s(rQ, 4), s(sDX), 1024 * i), 'c%d' % c))
        second = [('s_add_u32 m0, %s, %d' % (s(sD), slot + 16384), None), ('s_add_u32 %s, %s, 128' % (s(sDX), s(sDX)), None)]
        for i in range(4):
            second.append(('buffer_load_dwordx4 %s, %s, %s offen offset:%d lds' % (v(self.DW + i), s(rW1, 4), s(sDW), 1024 * i), 'c%d' % c))
        second.append(('s_add_u32 %s, %s, %d' % (s(sDW), s(sDW), 64 * 3456), None))
        return out, second

    def g1_frag_setup(self):
        I = self.I
        L = v(vL)
        I('s_lshr_b32 %s, %s, 1\ns_and_b32 %s, %s, 1' % (s(sI), s(sW), s(sJ), s(sW)))
        I('v_and_b32 v6, 15, %s\nv_lshrrev_b32 v7, 1, v6\nv_lshrrev_b32 v8, 4, %s\nv_xor_b32 v7, v7, v8' % (L, L))
        I('s_lshl_b32 %s, %s, 13\nv_lshlrev_b32 v6, 7, v6\nv_add_u32 v6, %s, v6' % (s(sT0), s(sJ), s(sT0)))
        I('v_lshl_add_u32 %s, v7, 4, v6\nv_xor_b32 %s, 64, %s' % (v(self.XA), v(self.XA + 1), v(self.XA)))
        I('v_add_u32 %s, 0x10000, %s\nv_add_u32 %s, 0x10000, %s' % (v(self.XA + 2), v(self.XA), v(self.XA + 3), v(self.XA + 1)))
        I('v_bfe_u32 v6, %s, 2, 2\nv_lshl_add_u32 v7, v8, 3, v6\nv_lshlrev_b32 v7, 8, v7\nv_and_b32 v9, 3, %s\nv_lshl_add_u32 v7, v9, 3, v7' % (L, L))
        I('v_add_u32 v7, 16384, v7\nv_and_b32 v8, 1, v8\nv_lshl_add_u32 v6, v6, 1, v8\ns_lshl_b32 %s, %s, 1\nv_xor_b32 v6, %s, v6' % (s(sT0), s(sW), s(sT0)))
        I('v_lshl_add_u32 %s, v6, 5, v7' % v(self.WA))
        for k in range(1, 4):
            I('v_xor_b32 %s, %d, %s' % (v(self.WA + k), 32 * k, v(self.WA)))
        for k in range(4):
            I('v_add_u32 %s, 0x10000, %s' % (v(self.WA + 4 + k), v(self.WA + k)))
        for k in range(4):
            I('v_mov_b32 %s, 0x3f803f80' % v(self.ONES + k))

    def b1_issue(self):
        I = self.I
        I('s_add_u32 %s, %s, %s\ns_lshl_b32 %s, %s, 6' % (s(sA), s(sW), s(sNT0), s(sA), s(sA)))
        I('v_and_b32 v6, 15, %s\nv_lshl_add_u32 v6, v6, 1, %s\nv_xor_b32 v7, 64, v6' % (v(vL), s(sA)))
        for k in range(4):
            I('global_load_ushort %s, %s, %s offset:%d' % (v(self.B1 + k), v(6 + k // 2), s(pB1, 2), 32 * (k & 1)))

    def g1_reads(self, c, k, fs):
        slot = c % 4
        hi = slot // 2
        off = (slot % 2) * 32768
        F = self.FR + 32 * fs
        out = []
        for i in range(4):
            for hf in range(2):
                out.append('ds_read_b64_tr_b16 %s, %s offset:%d' % (v(F + 16 + 4 * i + 2 * hf, 2), v(self.WA + 4 * hi + i), off + 8192 * k + 1024 * hf))
            out.append('ds_read_b128 %s, %s offset:%d' % (v(F + 4 * i, 4), v(self.XA + 2 * hi + k), off + 2048 * i))
        return out

    def g1_mfmas(self, fs, first):
        F = self.FR + 32 * fs
        out = []
        for d in range(4):
            for aa, b in [(d, x) for x in range(d)] + [(x, d) for x in range(d + 1)]:
                acc = v(self.ACC + 4 * (4 * aa + b), 4)
                out.append('v_mfma_f32_16x16x32_bf16 %s, %s, %s, %s' % (acc, v(F + 16 + 4 * aa, 4), v(F + 4 * b, 4), '0' if first else acc))
        return out

    def g1_cs(self, fs, first):
        F = self.FR + 32 * fs
        return ['v_mfma_f32_16x16x32_bf16 %s, %s, %s, %s' % (v(self.CS + 4 * k, 4), v(self.ONES, 4), v(F + 16 + 4 * k, 4), '0' if first else v(self.CS + 4 * k, 4))
                for k in range(2)]

    def ax_build(self, aa, cs):
        d = self.AX + 4 * aa
        b1 = v(self.B1 + aa)
        return ['v_cvt_pk_bf16_f32 v6, %s, %s' % (cs, cs), 'v_mov_b32 %s, %s' % (v(d + 2), b1), 'v_and_b32 v7, 0xffff0000, v6',
                'v_sub_f32 v7, %s, v7' % cs, 'v_and_b32 v6, 0xffff, v6', 'v_cvt_pk_bf16_f32 %s, %s, v7' % (v(d), cs),
                'v_lshl_or_b32 %s, %s, 16, v6' % (v(d + 1), b1)]

    def role_g(self):
        I, e, o = self.I, self.e, self.o
        cap = self.capture
        L = v(vL)
        self.stats_issue()
        self.srd(rK, 10, 2621440)
        self.srd(rV, 12, 2621440)
        I('s_mul_i32 %s, %s, 7\ns_add_u32 %s, %s, %s' % (s(sT0), s(sD), s(sT0), s(sT0), s(sCC)))
        self.kv_task(sT0)
        self.kv_issue(KV, 198)
        self.srd(rW1, 22, 640 * 3456)
        self.srd(rW2, 26, 1728 * 1280)
        self.w2_setup()
        self.w2_issue()
        self.g1_setup()
        d0 = self.g1_dma(0)
        self.run(d0[0] + d0[1])
        self.stamp(1)

        def conv_ids():
            I = self.I
            I('s_mul_i32 %s, %s, 7\ns_add_u32 %s, %s, %s\ns_lshl_b32 %s, %s, 1' % (s(sCH), s(sMU), s(sCH), s(sCH), s(sCC), s(sCH), s(sCH)))
            I('s_mul_i32 %s, %s, 80\ns_add_u32 %s, %s, %s\ns_add_u32 %s, %s, %s' % (s(sT0), s(sX), s(sCH), s(sCH), s(sT0), s(sCH), s(sCH), s(sI)))
            I('s_mul_i32 %s, %s, %d\ns_add_u32 %s, %s, %d\ns_add_u32 %s, %s, 65536' % (s(sUB), s(sW), UBSZ, s(sHB), s(sUB), KV, s(sUB), s(sUB)))
        shadow = (cap(self.code_prefetch) + cap(self.lds_init) + cap(self.kv_setup, KV) + cap(self.g1_frag_setup) + cap(self.srd, rH, 16, 2621440)
                  + cap(self.srd, rOUT, 30, 2621440) + cap(conv_ids) + cap(self.gemm2_ids) + cap(self.w2_addr))
        nearly = o.get('nearly', 2)
        dm = []
        for c in range(1, 1 + nearly):
            dm += sum(self.g1_dma(c), [])
        self.run(self.weave(shadow, (dm, 2, max(2.0, (len(shadow) - 4) / (8.0 * nearly)))))
        self.stamp(2)
        self.stats_sums()
        self.kv_weights(198)
        e.wait_tag('kv', and_lg=0)
        I('s_barrier')
        self.w2_reads()
        self.kv_reads(0)
        dm = []
        for c in range(1 + nearly, 4):
            dm += sum(self.g1_dma(c), [])
        fin = cap(self.stats_finish)
        cut = max(i for i, x in enumerate(fin) if x[0].startswith('s_mov_b32 exec_lo'))
        if dm:
            self.run(self.weave(fin[:cut], (dm, 1, max(2.0, cut / (8.0 * (3 - nearly))))) + fin[cut:])
        else:
            self.run(fin)
        self.w2_stores()
        self.kv_compute()
        I('global_load_dword v240, %s, %s sc1' % (v(vZ), s(pDBG, 2)), 'z')
        self.stamp(3)
        e.wait_tag('c0')
        I('s_barrier')
        self.run(self.g1_reads(0, 0, 0))
        self.stamp(4)
        NE = o.get('ne', 9)
        early = [x for g in range(NE) for x in self.w2_loads(g)]

        def take_early(n):
            out = []
            while early and n > 0:
                x = early.pop(0)
                out.append(x)
                n -= x[0].startswith('buffer')
            return out
        late = cap(self.late_setup)
        pFS, cFS = o.get('pfs', 11), o.get('cfs', 13)
        pFK, cFK = o.get('pfk', 14), o.get('cfk', 17)
        second = []
        for c in range(10):
            for k in range(2):
                st = 2 * c + k
                first = st == 0
                mf = self.g1_mfmas(k, first)
                cs = self.g1_cs(k, first)
                mem, extra = [], []
                if k == 1 and c < 9:
                    e.wait_tag('prep' if c == 1 else 'c%d' % (c + 1), and_lg=0)
                    if c == 1:
                        self.poll_check(240, None, 1, dbg=True)
                    if st == cFS:
                        self.poll_check(241, s(sEARLY), 16)
                    if st == cFK:
                        self.poll_check(242, s(sB), 32)
                        self.poll_check(243, s(sD), 56)
                    I('s_barrier')
                    if c == 1:
                        I('s_lshl_b32 %s, %s, 7\ns_lshl_b32 %s, %s, 7\ns_add_u32 %s, %s, %d' % (
                            s(sA), s(sR), s(sB), s(sKCG), s(sB), s(sB), FK))
                        I('s_lshl_b32 %s, %s, 7\ns_add_u32 %s, %s, %d' % (s(sC), s(sW2Q), s(sC), s(sC), FW))
                        self.signal_wave0([s(sA), s(sB), s(sC)], 6)
                    if c + 4 < 10:
                        mem, second = self.g1_dma(c + 4)
                elif k == 0:
                    mem, second = second, []
                reads = self.g1_reads(c, 1, 1) if k == 0 else (self.g1_reads(c + 1, 0, 0) if c < 9 else [])
                if st == pFS:
                    extra += ['s_lshl_b32 %s, %s, 7' % (s(sEARLY), s(sR)), lambda: self.poll_issue(241, s(sEARLY))]
                if st == 13:
                    mem = mem + cap(self.h_issue, sHB, sCH, 244)
                if st == 9:
                    extra += cap(self.b1_issue)
                if st == cFS + 1:
                    def stat_loads():
                        I = self.I
                        I('s_lshl_b32 %s, %s, 1\ns_add_u32 %s, %s, %s\ns_lshl_b32 %s, %s, 10\ns_add_u32 %s, %s, %d\ns_add_u32 %s, %s, %d' % (
                            s(sA), s(sR), s(sA), s(sA), s(sJ), s(sA), s(sA), s(sA), s(sA), STA, s(sEARLY), s(sA), STB - STA))
                        I('v_and_b32 v14, 15, %s\nv_lshlrev_b32 v14, 4, v14\nv_lshrrev_b32 v15, 4, %s\nv_lshl_add_u32 v15, v15, 26, v14' % (L, L))
                        for b in range(4):
                            I('buffer_load_dwordx4 %s, v15, %s, %s offen offset:%d sc1' % (v(self.XB + 4 * b, 4), s(rWS, 4), s(sA), 256 * b))
                            I('buffer_load_dwordx4 %s, v14, %s, %s offen offset:%d sc1' % (v(self.KK + 4 * b, 4), s(rWS, 4), s(sEARLY), 256 * b))
                    extra += cap(stat_loads)
                if st == pFK:
                    extra += ['s_lshr_b32 %s, %s, 6' % (s(sB), s(sCH)), 's_lshl_b32 %s, %s, 7' % (s(sB), s(sB)),
                              's_add_u32 %s, %s, %d' % (s(sB), s(sB), FK), lambda: self.poll_issue(242, s(sB)),
                              's_lshr_b32 %s, %s, 1' % (s(sD), s(sCT)), 's_lshl_b32 %s, %s, 7' % (s(sD), s(sD)),
                              's_add_u32 %s, %s, %d' % (s(sD), s(sD), FW), lambda: self.poll_issue(243, s(sD))]
                if st in (3, 4, 5, 6, 7, 8):
                    n = (len(late) + (8 - st)) // (9 - st)
                    extra += late[:n]
                    late = late[n:]
                if st == 15:
                    extra += cap(self.conv_pads, sHB, sUB) + ['v_mov_b32 %s, 0' % v(self.AX + 4 * q + 3) for q in range(4)]
                if st == 16:
                    extra += [lambda: e.wait_tag('h')] + cap(self.conv_dfix_a, sHB)
                    extra += ['s_lshl_b32 %s, %s, 7' % (s(sT0), s(sW)), 's_add_u32 %s, %s, %d' % (s(sT0), s(sT0), CSX),
                              'v_and_b32 v16, 15, %s' % L, 'v_lshl_add_u32 v16, v16, 2, %s' % s(sT0), 'v_xor_b32 v17, 128, v16']
                if st == 17:
                    extra += cap(self.conv_dfix_b, 244)
                if st == cFK:
                    mem = mem + cap(self.u_issue, sCH, lambda x, n: a(240 + x, n))
                elif st > cFK:
                    mem = mem + take_early(4)
                if st == 18:
                    def h_addr():
                        I = self.I
                        I('s_lshl_b32 %s, %s, 1\ns_add_u32 %s, %s, %s\ns_mul_i32 %s, %s, 54\ns_add_u32 %s, %s, %s' % (
                            s(sA), s(sR), s(sA), s(sA), s(sJ), s(sA), s(sA), s(sA), s(sA), s(sNT0)))
                        I('s_add_u32 %s, %s, %s\ns_xor_b32 %s, %s, 1\ns_add_u32 %s, %s, %s' % (s(sB), s(sA), s(sW), s(sT0), s(sW), s(sA), s(sA), s(sT0)))
                        I('s_lshl_b32 %s, %s, 12\ns_add_u32 %s, %s, %d\ns_lshl_b32 %s, %s, 12\ns_add_u32 %s, %s, %d' % (
                            s(sB), s(sB), s(sB), s(sB), HP, s(sA), s(sA), s(sA), s(sA), HP))
                        I('s_lshl_b32 %s, %s, 4\ns_add_u32 %s, %s, %s\ns_cmp_eq_u32 %s, 14' % (s(sT0), s(sI), s(sT0), s(sT0), s(sQ), s(sT0)))
                        I('s_cselect_b32 %s, %d, %s\ns_cselect_b32 %s, %d, %s' % (s(sA), WS_BYTES, s(sA), s(sB), WS_BYTES, s(sB)))
                    extra += cap(h_addr)
                if st < 19:
                    ne = len(extra)
                    self.run(self.weave(mf + cs, (reads, 0, 1), (mem, 2, 4), (extra, 12 if ne <= 10 else 1, 0.6 if ne <= 10 else 17.0 / ne)))
                else:
                    self.run(cs + self.weave(mf[:5], (mem, 0, 2)))
                    I('ds_write2_b32 v16, %s, %s offset1:16' % (v(self.CS), v(self.CS + 4)))
                    self.run(mf[5:7])
                    e.wait_lg(0)
                    I('s_barrier')
                    I('ds_read2_b32 v[18:19], v17 offset1:16')
                    own = self.ax_build(0, v(self.CS)) + self.ax_build(1, v(self.CS + 4))
                    self.run(self.weave(mf[7:15], (own, 0, 0.55)) + self.ax_build(2, 'v18')[:2] + [mf[15]] + self.ax_build(2, 'v18')[2:] + self.ax_build(3, 'v19'))
                if k == 1:
                    self.stamp(20 + c)
                elif c >= 5:
                    self.stamp(10 + c)
        assert not late
        self.stamp(5)
        self.g1_epilogue(take_early, NE)
        assert not early

    def g1_epilogue(self, take_early, NE):
        I, e = self.I, self.e
        for p in range(2):
            for b in range(4):
                for aa in (2 * p, 2 * p + 1):
                    acc = v(self.ACC + 4 * (4 * aa + b), 4)
                    I('v_mfma_f32_16x16x32_bf16 %s, %s, %s, %s' % (acc, v(self.AX + 4 * aa, 4), v(self.XB + 4 * b, 4), acc))
                if b & 1:
                    self.run(take_early(1))
        self.stamp(6)
        T = 128
        per = self.o.get('gl', 3)
        for p in range(2):
            for b in range(4):
                n = 4 * p + b
                kk, sg = v(self.KK + 4 * b, 2), v(self.KK + 4 * b + 2, 2)
                prs = [self.ACC + 4 * (4 * (2 * p + (j >> 1)) + b) + 2 * (j & 1) for j in range(4)]
                tp = [T + 16 * (n & 1) + 2 * j for j in range(4)]
                tq = [T + 16 * (n & 1) + 8 + 2 * j for j in range(4)]
                out = 160 + 4 * n
                seq = []
                seq += ['v_pk_mul_f32 %s, %s, %s' % (v(t, 2), v(q, 2), v(q, 2)) for q, t in zip(prs, tp)]
                seq += ['v_pk_fma_f32 %s, %s, %s, %s op_sel:[0,1,0] op_sel_hi:[1,1,0]' % (v(t, 2), v(t, 2), kk, kk) for t in tp]
                seq += ['v_pk_mul_f32 %s, %s, %s' % (v(t, 2), v(t, 2), v(q, 2)) for q, t in zip(prs, tp)]
                seq += ['v_exp_f32 %s, %s' % (v(t + h), v(t + h)) for t in tp for h in range(2)]
                seq += ['v_pk_fma_f32 %s, %s, %s, %s op_sel:[0,0,0] op_sel_hi:[1,0,0]' % (v(t, 2), v(t, 2), sg, sg) for t in tp]
                seq += ['v_rcp_f32 %s, %s' % (v(t + h), v(t + h)) for t in tp for h in range(2)]
                seq += ['v_pk_mul_f32 %s, %s, %s' % (v(u, 2), v(t, 2), v(q, 2)) for q, t, u in zip(prs, tp, tq)]
                seq += ['v_cvt_pk_bf16_f32 %s, %s, %s' % (v(out + j), v(u), v(u + 1)) for j, u in enumerate(tq)]
                self.run(self.weave(seq, (take_early(per if n < 7 else 99), 3, 11)))
                I('buffer_store_dwordx4 %s, %s, %s, %s offen offset:%d sc1' % (
                    v(out, 4), v(vL16), s(rWS, 4), s(sB if p == 0 else sA), 1024 * b), 'H')
                if n == 1:
                    self.conv_ustage(sUB, lambda x, n: a(240 + x, n))
        self.stamp(7)
        self.h_tail = list(e.vm)
        I('s_mov_b32 %s, 1' % s(sISG))
        self.stamp_sync()
        I('s_branch L_conv')

    def role_s(self):
        I, e = self.I, self.e
        cap = self.capture
        L = v(vL)
        zwg = 7 if self.o.get('x_map') else 56
        lab = self.lab('Lnoz')
        I('s_cmp_lg_u32 s2, %d\ns_cbranch_scc1 %s\ns_cmp_lg_u32 %s, 0\ns_cbranch_scc1 %s' % (zwg, lab, s(sW), lab))
        I('v_lshlrev_b32 v6, 7, %s\nbuffer_store_dword %s, v6, %s, 0 offen sc1' % (L, v(vZ), s(rWS, 4)))
        e.vm.pop()
        e.label(lab)
        self.stats_issue()
        self.srd(rK, 10, 2621440)
        self.srd(rV, 12, 2621440)

        def task(t):
            self.I('s_mul_i32 %s, %s, 3\ns_add_u32 %s, %s, %d' % (s(sT0), s(sD), s(sT0), s(sT0), 224 + t))
            self.kv_task(sT0)
        KB = 3 * 4 * (HBSZ + UBSZ)
        STEP = 4 * (HBSZ + UBSZ)
        for t in range(3):
            task(t)
            self.kv_issue(KB + t * KVSZ, 228 + 2 * t)
            if t == 0:
                self.code_prefetch()
                self.kv_setup(KB)
        lab = self.lab('Lnoz')
        I('s_cmp_lg_u32 s2, %d\ns_cbranch_scc1 %s\ns_cmp_lg_u32 %s, 0\ns_cbranch_scc1 %s' % (zwg, lab, s(sW), lab))
        e.raw('    s_waitcnt vmcnt(%d)' % len(e.vm))
        I('v_mov_b32 v6, 1\ns_mov_b64 exec, 1\nglobal_store_dword %s, v6, %s sc1\ns_mov_b64 exec, -1' % (v(vZ), s(pDBG, 2)))
        e.vm.pop()
        e.label(lab)
        self.stamp(1)
        self.stats_sums()
        self.stats_finish()
        self.srd(rH, 16, 2621440)
        self.srd(rOUT, 30, 2621440)
        self.gemm2_ids()
        I('s_mul_i32 %s, %s, 80\ns_mul_i32 %s, %s, 6\ns_add_u32 %s, %s, %s\ns_add_u32 %s, %s, 56' % (
            s(sCH), s(sX), s(sT0), s(sMU), s(sCH), s(sCH), s(sT0), s(sCH), s(sCH)))
        I('s_lshr_b32 %s, %s, 6\ns_lshl_b32 %s, %s, 7\ns_add_u32 %s, %s, %d' % (s(sDX), s(sCH), s(sDX), s(sDX), s(sDX), s(sDX), FK))
        I('s_add_u32 %s, %s, 5\ns_lshr_b32 %s, %s, 6\ns_lshl_b32 %s, %s, 7\ns_add_u32 %s, %s, %d' % (
            s(sEARLY), s(sCH), s(sEARLY), s(sEARLY), s(sEARLY), s(sEARLY), s(sEARLY), s(sEARLY), FK))
        I('s_lshr_b32 %s, %s, 1\ns_lshl_b32 %s, %s, 7\ns_add_u32 %s, %s, %d' % (s(sDW), s(sCT), s(sDW), s(sDW), s(sDW), s(sDW), FW))
        I('s_lshr_b32 %s, %s, 1\ns_add_u32 %s, %s, %s' % (s(sT0), s(sW), s(sCH), s(sCH), s(sT0)))
        I('s_mul_i32 %s, %s, %d\ns_add_u32 %s, %s, %d' % (s(sHB), s(sW), HBSZ + UBSZ, s(sUB), s(sHB), HBSZ))
        I('global_load_dword v240, %s, %s sc1' % (v(vZ), s(pDBG, 2)), 'z')
        self.kv_weights(228)
        e.wait_tag('kv', and_lg=0)
        I('s_barrier')
        self.stamp(2)
        for t in range(3):
            self.kv_reads(t * KVSZ)
            task(t)
            if t:
                self.kv_weights(228 + 2 * t)
            self.kv_compute()
            I('s_lshl_b32 %s, %s, 7\ns_add_u32 %s, %s, %d' % (s(sM + t), s(sKCG), s(sM + t), s(sM + t), FK) if t == 2 else
              's_lshl_b32 %s, %s, 7\ns_add_u32 %s, %s, %d' % (s(sW2Q + t), s(sKCG), s(sW2Q + t), s(sW2Q + t), FK))
        self.stamp(3)
        for r in range(3):
            I('s_add_u32 %s, %s, %d\ns_add_u32 %s, %s, %d' % (s(sI), s(sHB), r * STEP, s(sJ), s(sCH), 2 * r))
            self.h_issue(sI, sJ, 244 + r)
            I('s_add_u32 %s, %s, %d' % (s(sJ), s(sUB), r * STEP))
            self.conv_pads(sI, sJ)
        self.late_setup()
        self.poll_check(240, None, 1, dbg=True)
        e.wait_tag('prep')
        I('s_barrier')
        I('s_lshl_b32 %s, %s, 7' % (s(sA), s(sR)))
        self.signal_wave0([s(sA), s(sW2Q), s(sW2Q + 1), s(sM + 2)], 6)
        self.stamp(4)
        e.wait_tag('h')
        self.poll_issue(241, s(sDX))
        self.poll_issue(242, s(sEARLY))
        self.poll_issue(243, s(sDW))
        for r in range(3):
            I('s_add_u32 %s, %s, %d' % (s(sI), s(sHB), r * STEP))
            self.conv_dfix_a(sI)
            self.conv_dfix_b(244 + r)
        self.poll_check(241, s(sDX), 32)
        self.poll_check(242, s(sEARLY), 32)
        for r in range(3):
            I('s_add_u32 %s, %s, %d' % (s(sJ), s(sCH), 2 * r))
            self.u_issue(sJ, lambda x, n: v(64 + 16 * r + x, n))
        self.poll_check(243, s(sDW), 56)
        for r in range(3):
            I('s_add_u32 %s, %s, %d' % (s(sJ), s(sUB), r * STEP))
            self.conv_ustage(sJ, lambda x, n: v(64 + 16 * r + x, n))
        I('s_mov_b32 %s, 0\ns_mov_b32 %s, 0' % (s(sISG), s(sROUND)))
        self.stamp(8)
        self.stamp_sync()
        e.label('L_plain')
        self.conv_pair(True)
        I('s_add_u32 %s, %s, 1\ns_add_u32 %s, %s, 2' % (s(sROUND), s(sROUND), s(sCH), s(sCH)))
        I('v_add_u32 v2, %d, v2\nv_add_u32 v3, %d, v3\nv_add_u32 v4, %d, v4' % (STEP, STEP, STEP))
        I('s_cmp_lt_u32 %s, 2\ns_cbranch_scc1 L_plain' % s(sROUND))

    OWN, XN, RAW = 232, 212, 188

    def conv(self):
        self.e.label('L_conv')
        self.conv_pair(False)

    def conv_pair(self, plain):
        I, e = self.I, self.e
        e.forget()
        if not plain:
            e.vm = [dict(tag=x['tag'], wr=set()) for x in self.h_tail]
            I('s_lshl_b32 %s, %s, 7\ns_add_u32 %s, %s, %d' % (s(sD), s(sR2), s(sD), s(sD), FH))
        I('s_lshl_b32 %s, %s, 7\ns_add_u32 %s, %s, %d' % (s(sYOFF), s(sCH), s(sYOFF), s(sYOFF), YP))
        lb, le = self.lab('LconvB'), self.lab('LconvE')
        I('s_bitcmp1_b32 %s, 0\ns_cbranch_scc1 %s' % (s(sW), lb))
        vm0, hist0 = list(e.vm), list(e.hist)
        keep = {('v', i) for i in (0, 1, 2, 3, 4, 5, 8, 9, 10, 11, 12, 13, 252, 255)} | {('a', i) for i in range(256)}
        e.written = set(keep)
        self.conv_body(list(range(8)) + list(range(23, 32)), (23,), plain)
        I('s_branch ' + le)
        e.label(lb)
        e.vm, e.lg, e.hist = list(vm0), [], list(hist0)
        e.written = set(keep)
        self.conv_body(list(range(7, 24)), (7,), plain)
        e.label(le)

    def conv_body(self, tiles, carry, plain):
        I, e = self.I, self.e
        ACC, HF, UF, NU = 16, 84, 148, 4
        T1, T2, YV, YPK = 164, 166, 168, 172
        NE = self.o.get('ne', 9)
        acc = {t: ACC + 4 * i for i, t in enumerate(tiles)}
        mmax = max(tiles)
        nsig = mmax // 2 + 1

        def uread(m):
            return 'ds_read2_b64 %s, %s offset0:%d offset1:%d' % (v(UF + 4 * (m % NU), 4), v(2 + m // 16), 16 * (m % 16) + 4, 16 * (m % 16))

        def hread(sg):
            return ['ds_read_b64_tr_b16 %s, v4 offset:%d' % (v(HF + 4 * sg + 2 * hf, 2), 256 * sg + 32 * hf) for hf in range(2)]

        steps = [[t for t in tiles if t >= m and (t - m) % 2 == 0] for m in range(mmax + 1)]
        order = []
        for m in range(mmax + 1):
            for t in steps[m]:
                if (t - m) // 2 not in order:
                    order.append((t - m) // 2)
        I(uread(0))
        for sg in order[:3]:
            self.run(hread(sg))
        I(uread(1))
        pend_h = [(sg, x) for sg in order[3:] for x in hread(sg)]

        def post(t):
            z = acc[t]
            cur, prv = t & 1, (t & 1) ^ 1
            out = []
            dpp = ' row_mask:0xf bank_mask:0xf'
            has_prev = (t - 1) in acc and t not in carry
            chain = [(T1 + cur, z + 3, (acc[t - 1] + 3) if has_prev else None, z + 2),
                     (T2 + cur, T1 + cur, T1 + prv, z + 1)]
            if t not in carry:
                chain.append((YV + (t & 1), T2 + cur, T2 + prv, z))
            ror = ['v_add_f32_dpp %s, %s, %s wave_ror:1%s' % (v(d), v(psrc), v(add), dpp) for d, src, psrc, add in chain] if has_prev else []
            shr = ['v_add_f32_dpp %s, %s, %s wave_shr:1%s%s' % (v(d), v(src), v(add), dpp, '' if has_prev else ' bound_ctrl:0')
                   for d, src, psrc, add in chain]
            out = [ror[0], shr[0], ror[1], ror[2], shr[1], shr[2]] if has_prev else shr
            if t not in carry and t & 1:
                out.append('v_cvt_pk_bf16_f32 %s, %s, %s' % (v(YPK + 4 * ((t >> 3) & 1) + ((t & 7) >> 1)), v(YV), v(YV + 1)))
                if t & 7 == 7:
                    g = t >> 3
                    out.append('s_add_u32 %s, %s, %d' % (s(sT0), s(sYOFF), g * 8 * 640 * 128))
                    out.append(('buffer_store_dwordx4 %s, v5, %s, %s offen sc1' % (v(YPK + 4 * (g & 1), 4), s(rWS, 4), s(sT0)), 'y'))
            return out

        def h_arrive():
            lab = self.lab('Lh')
            lg = list(e.lg)
            I('s_cmp_eq_u32 %s, 0\ns_cbranch_scc1 %s' % (s(sISG), lab))
            e.wait_tag('H')
            self.arrive(LCNT, 6)
            e.label(lab)
            e.lg = lg

        def h_done():
            lab = self.lab('Lh')
            I('s_cmp_eq_u32 %s, 0\ns_cbranch_scc1 %s' % (s(sISG), lab))
            I('s_lshl_b32 %s, %s, 7\ns_add_u32 %s, %s, %d' % (s(sT0), s(sR), s(sT0), s(sT0), FH))
            e.raw('    s_waitcnt lgkmcnt(%d)' % min(15, self.ds_since))
            self.arrive_done(s(sT0), 6)
            e.label(lab)

        RAW, XN, OWN = self.RAW, self.XN, self.OWN
        raw = ['buffer_load_dwordx2 %s, v12, %s, %s offen offset:%d' % (v(RAW + 2 * n, 2), s(rQ, 4), s(sT1), 32 * n) for n in range(5)]
        raw += ['global_load_dwordx2 %s, v13, %s offset:%d' % (v(RAW + 10 + 2 * n, 2), s(pB2, 2), 32 * n) for n in range(5)]
        unpack = []
        for i in range(10):
            x, b, d, o = RAW + i, RAW + 10 + i, XN + 2 * i, OWN + 2 * i
            unpack += ['v_lshlrev_b32 %s, 16, %s' % (v(d), v(x)), 'v_and_b32 %s, 0xffff0000, %s' % (v(d + 1), v(x)),
                       'v_lshlrev_b32 %s, 16, %s' % (v(o), v(b)), 'v_and_b32 %s, 0xffff0000, %s' % (v(o + 1), v(b)),
                       'v_add_f32 %s, %s, %s' % (v(o), v(o), v(d)), 'v_add_f32 %s, %s, %s' % (v(o + 1), v(o + 1), v(d + 1))]

        total = sum(len(x) for x in steps)
        jobs = []

        def spread(items, p0, p1):
            n = sum(1 for x in items if not x[0].startswith('s_'))
            k = 0
            for x in items:
                jobs.append((p0 + (k * (p1 - p0)) / max(n, 1), x))
                k += not x[0].startswith('s_')
        if plain:
            spread([x for g in range(NE) for x in self.w2_loads(g)], 16, total - 4)
        else:
            hs = self.o.get('hs_at', 44)
            jobs.append((hs, h_arrive))
            jobs.append((hs + 8, h_done))
            r0 = self.o.get('raw_at', 6)
            spread([(x, None) for x in raw], r0, r0 + 30)
            u0 = self.o.get('unp_at', 84)
            spread([(x, None) for x in unpack], u0, total - 22)
            spread([x for g in range(NE, 16) for x in self.w2_loads(g)], r0 + 30, total - 22)
            spread([x for g in (16, 17) for x in self.w2_loads(g)], total - 21, total - 9)
            jobs.append((total - 8, lambda: self.poll_issue(vP, s(sD), 'poll')))
        jobs.sort(key=lambda j: j[0])

        done = 0
        pending_post = []
        self.ds_since = 0
        counting = False
        for m, ts in enumerate(steps):
            n = len(ts)
            gaps = [[] for _ in range(n)]
            if m + 2 <= mmax:
                gaps[0].append(uread(m + 2))
            for i, x in enumerate(pending_post):
                gaps[min(n - 1, (i * n) // len(pending_post))].append(x)
            pending_post = []
            for i, t in enumerate(ts):
                sg = (t - m) // 2
                while any(q == sg for q, _ in pend_h):
                    I(pend_h.pop(0)[1])
                I('v_mfma_f32_16x16x32_bf16 %s, %s, %s, %s' % (
                    v(acc[t], 4), v(UF + 4 * (m % NU), 4), v(HF + 4 * sg, 4), '0' if m < 2 else v(acc[t], 4)))
                done += 1
                seq = [pend_h.pop(0)[1] for _ in range(min(2, len(pend_h)))] + gaps[i]
                while jobs and jobs[0][0] <= done:
                    seq.append(jobs.pop(0)[1])
                for x in seq:
                    if x is h_arrive:
                        assert not pend_h
                        counting = True
                    elif counting and isinstance(x, str) and x.startswith('ds_'):
                        self.ds_since += 1
                    self.run([x])
            if m % 4 == 1:
                self.stamp((50 if plain else 30) + m // 4)
            if m in acc:
                pending_post = post(m)
        assert not jobs and not pend_h
        self.run(pending_post)
        self.stamp_sync()

    def gemm2(self):
        I, e = self.I, self.e
        L = v(vL)
        ACC, HR, NR, WX, XN, OWN = 16, 76, 7, self.WX, self.XN, self.OWN
        PRE = self.o.get('pre', 3)
        e.forget()
        e.vm = [dict(tag='poll', wr={('v', vP)}), dict(tag='y', wr=set())]
        self.stamp(9)
        self.poll_check(vP, s(sD), 14)
        self.stamp(10)

        def hload(st):
            out = []
            for t in range(4):
                out.append('buffer_load_dwordx4 %s, %s, %s, %s offen sc1' % (
                    v(HR + 16 * (st % NR) + 4 * t, 4), v(8 + t), s(rWS, 4), s(sH0 if st == 0 else sHOFF)))
            out.append('s_add_u32 %s, %s, 4096' % (s(sHOFF), s(sHOFF)))
            return out
        for st in range(PRE):
            self.run(hload(st))
        I('s_lshl_b32 %s, %s, 1\ns_add_u32 %s, %s, %s\ns_lshl_b32 %s, %s, 2\ns_add_u32 %s, %s, %s' % (
            s(sB), s(sR2), s(sB), s(sB), s(sNU), s(sA), s(sB), s(sA), s(sA), s(sW)))
        I('s_lshl_b32 %s, %s, 7\ns_add_u32 %s, %s, %d\nv_and_b32 v14, 15, %s\nv_lshlrev_b32 v14, 3, v14' % (s(sA), s(sA), s(sA), s(sA), STC, L))
        I('buffer_load_dwordx2 v[4:5], v14, %s, %s offen sc1' % (s(rWS, 4), s(sA)))
        I('s_lshl_b32 %s, %s, 3\ns_add_u32 %s, %s, %s\ns_mul_i32 %s, %s, 10240\ns_add_u32 %s, %s, %d' % (
            s(sB), s(sB), s(sB), s(sB), s(sCT), s(sB), s(sB), s(sYOFF), s(sB), YP))
        I('s_lshl_b32 %s, %s, 7\ns_add_u32 %s, %s, %d' % (s(sB), s(sX), s(sB), s(sB), FY))
        I('s_lshl_b32 %s, %s, 7\ns_add_u32 %s, %s, %d' % (s(sD), s(sCT), s(sD), s(sD), FY))
        e.wait_tag('y', and_lg=0)
        I('s_barrier')
        self.signal_wave0([s(sB)], 6)

        def wfrag(st, n):
            fi = 5 * st + n
            return a(4 * fi, 4) if fi < 64 else v(WX + 4 * (fi - 64), 4)

        def tile(t, n):
            return OWN + 4 * n if t == 3 else ACC + 4 * (5 * t + n)

        def mfma(st, t, n):
            c = v(tile(t, n), 4)
            return 'v_mfma_f32_16x16x32_bf16 %s, %s, %s, %s' % (c, wfrag(st, n), v(HR + 16 * (st % NR) + 4 * t, 4), '0' if st == 0 and t < 3 else c)

        TAIL = 3
        pY, cY = self.o.get('pfy', 8), 14 - TAIL
        for st in range(14 - TAIL):
            mf = [mfma(st, t, n) for t in range(4) for n in range(5)]
            mem = hload(st + PRE) if st + PRE < 14 else []
            fill = []
            if st == 3:
                fill += ['v_mul_f32 v4, v4, v5'] + ['v_fma_f32 %s, %s, v5, -v4' % (v(XN + i), v(XN + i)) for i in range(20)]
            if st == 4:
                fill += ['v_lshlrev_b32 v6, 4, v0', 's_cmp_ge_u32 %s, 2\ns_cselect_b32 %s, %d, 8192' % (s(sW), s(sA), OOB),
                         'v_add_u32 v7, %s, v6' % s(sA),
                         'v_lshrrev_b32 v2, 3, v0', 'v_mul_u32_u24 v2, 144, v2', 'v_and_b32 v3, 7, v0', 'v_lshl_add_u32 v2, v3, 4, v2',
                         'v_lshrrev_b32 v13, 2, %s' % L, 'v_mul_u32_u24 v13, 144, v13', 'v_and_b32 v3, 3, %s' % L,
                         'v_lshl_add_u32 v13, v3, 3, v13', 's_lshl_b32 %s, %s, 5' % (s(sA), s(sW)), 'v_add_u32 v13, %s, v13' % s(sA)]
            if st == 5:
                for t, d in enumerate((3, 4, 5)):
                    fill += ['s_add_u32 %s, %s, %d' % (s(sA), s(sW), t + 1), 's_and_b32 %s, %s, 3' % (s(sA), s(sA)),
                             's_mul_i32 %s, %s, 15360' % (s(sA), s(sA)), 's_add_u32 %s, %s, %d' % (s(sA), s(sA), RED + 5120 * t),
                             'v_add_u32 %s, %s, %s' % (v(d), s(sA), v(vL16))]
                fill += ['s_mul_i32 %s, %s, 15360' % (s(sA), s(sW)), 's_add_u32 %s, %s, %d' % (s(sA), s(sA), RED),
                         'v_add_u32 v14, %s, %s' % (s(sA), v(vL16))]
            if st == pY:
                fill.append(lambda: self.poll_issue(vP, s(sD)))
            self.run(self.weave(mf, (mem, 1, 5), (fill, 0, 19.0 / max(len(fill), 1))))
            if st % 2 == 0:
                self.stamp(40 + st // 2)
        YR = HR + 16 * ((14 - TAIL - 1) % NR)
        self.poll_check(vP, s(sD), 32)
        self.stamp(11)
        I('s_add_u32 %s, %s, 4096' % (s(sA), s(sYOFF)))
        pend = ['buffer_load_dwordx4 %s, v6, %s, %s offen sc1' % (v(YR, 4), s(rWS, 4), s(sYOFF)),
                'buffer_load_dwordx4 %s, v6, %s, %s offen sc1' % (v(YR + 4, 4), s(rWS, 4), s(sA)),
                'buffer_load_dwordx4 %s, v7, %s, %s offen sc1' % (v(YR + 8, 4), s(rWS, 4), s(sYOFF))]
        for t in range(4):
            mf = [mfma(st, t, n) for n in range(5) for st in range(14 - TAIL, 14)]
            self.run(self.weave(mf, (pend, 0 if t == 0 else 2, 2 if t == 0 else 3)))
            pend = ['ds_write_b128 %s, %s offset:%d' % (v(3 + t), v(tile(t, n), 4), 1024 * n) for n in range(5)] if t < 3 else []
        for i in range(3):
            I('ds_write_b128 v2, %s offset:%d' % (v(YR + 4 * i, 4), YB + 32 * 144 * i))
        e.wait_lg(0)
        I('s_barrier')
        self.stamp(12)
        P, YT, OUT = HR, 16, 28
        for n in range(5):
            I('ds_read_b64_tr_b16 %s, v13 offset:%d' % (v(YT + 2 * n, 2), YB + 16 * 144 * n))
            for t in range(3):
                I('ds_read_b128 %s, v14 offset:%d' % (v(P + 12 * n + 4 * t, 4), 5120 * t + 1024 * n))
        for n in range(5):
            o = OWN + 4 * n
            for h in range(2):
                y = YT + 2 * n + h
                I('v_lshlrev_b32 %s, 16, %s\nv_and_b32 %s, 0xffff0000, %s' % (v(40 + 2 * h), v(y), v(41 + 2 * h), v(y)))
            for h in range(2):
                I('v_pk_fma_f32 %s, %s, %s, %s' % (v(o + 2 * h, 2), v(XN + 4 * n + 2 * h, 2), v(40 + 2 * h, 2), v(o + 2 * h, 2)))
            for h in range(2):
                p = P + 12 * n + 2 * h
                I('v_pk_add_f32 %s, %s, %s' % (v(p, 2), v(p, 2), v(p + 4, 2)))
                I('v_pk_add_f32 %s, %s, %s' % (v(o + 2 * h, 2), v(o + 2 * h, 2), v(p + 8, 2)))
            for h in range(2):
                I('v_pk_add_f32 %s, %s, %s' % (v(o + 2 * h, 2), v(o + 2 * h, 2), v(P + 12 * n + 2 * h, 2)))
            for h in range(2):
                I('v_cvt_pk_bf16_f32 %s, %s, %s' % (v(OUT + 2 * n + h), v(o + 2 * h), v(o + 2 * h + 1)))
            I('buffer_store_dwordx2 %s, v12, %s, %s offen offset:%d' % (v(OUT + 2 * n, 2), s(rOUT, 4), s(sT1), 32 * n))
        self.stamp(13)

    def experiments_head(self):
        I = self.I
        for i in range(self.o.get('x_code', 0) * 128):
            I('v_add3_u32 v%d, v0, v0, v0' % (100 + i % 4))
        n = self.o.get('x_lat', 0)
        if n:
            I('s_mul_i32 %s, s2, 10240\nv_mov_b32 v100, %s' % (s(sT0), s(sT0)))
            for i in range(n):
                I('global_load_dword v101, v100, s[20:21]\nv_and_b32 v101, 0, v101\nv_add3_u32 v100, v100, v101, 64\nv_add_u32 v100, 960, v100')

    def experiments_tail(self):
        n = self.o.get('x_alu', 0)
        if n:
            self.I('s_mov_b32 %s, 0' % s(sT0))
            self.e.label('L_xalu')
            for i in range(16):
                self.I('v_add_u32 v%d, v0, v0' % (100 + i % 4))
            self.I('s_add_u32 %s, %s, 1\ns_cmp_lt_u32 %s, %d\ns_cbranch_scc1 L_xalu' % (s(sT0), s(sT0), s(sT0), n))
            self.stamp(14)

    def build(self):
        e = self.e
        k = NAME + '_kernel'
        if self.o.get('x_list'):
            if self.o['x_list'] == 2:
                e.raw('; @launch kernel=nop_kernel grid=(256,1,1) block=(256,1,1) lds=0')
            e.raw('; @launch kernel=%s grid=(256,1,1) block=(256,1,1) lds=%d' % (k, LDS_BYTES))
            if self.o['x_list'] == 1:
                e.raw('; @launch kernel=nop_kernel grid=(256,1,1) block=(256,1,1) lds=0')
        else:
            e.raw('; @launch grid=(256,1,1) block=(256,1,1) lds=%d' % LDS_BYTES)
        e.raw('.amdgcn_target "amdgcn-amd-amdhsa--gfx950"')
        e.raw('.text\n.globl %s\n.p2align 8\n.type %s,@function\n%s:' % (k, k, k))
        self.entry()
        self.experiments_head()
        if self.o['stamps']:
            e.raw('    v_mov_b32 v254, 0')
        self.stamp(60, cyc=True)
        self.stamp(0)
        self.stamp_sync()
        self.I('s_cmp_eq_u32 %s, 7\ns_cbranch_scc1 L_roleS' % s(sCC))
        hist = list(e.hist)
        self.role_g()
        e.label('L_roleS')
        e.written = {('v', i) for i in (0, 1, 2, 4, 5, 252, 255)}
        e.forget()
        e.hist = hist
        self.role_s()
        self.conv()
        self.gemm2()
        self.experiments_tail()
        self.stamp_flush()
        e.label('L_end')
        e.raw('    s_endpgm')
        if self.o.get('x_list'):
            e.raw('.globl nop_kernel\n.p2align 8\n.type nop_kernel,@function\nnop_kernel:\n    s_endpgm')
        e.raw('''.section .rodata,"a"
.p2align 6
.amdhsa_kernel %s
  .amdhsa_next_free_vgpr 512
  .amdhsa_next_free_sgpr 102
  .amdhsa_accum_offset 256
  .amdhsa_group_segment_fixed_size 0
  .amdhsa_kernarg_size 112
  .amdhsa_user_sgpr_count 2
  .amdhsa_user_sgpr_kernarg_segment_ptr 1
  .amdhsa_system_sgpr_workgroup_id_x 1
.end_amdhsa_kernel''' % k)
        if self.o.get('x_list'):
            e.raw('''.p2align 6
.amdhsa_kernel nop_kernel
  .amdhsa_next_free_vgpr 8
  .amdhsa_next_free_sgpr 16
  .amdhsa_accum_offset 8
  .amdhsa_group_segment_fixed_size 0
  .amdhsa_kernarg_size 112
  .amdhsa_user_sgpr_count 2
  .amdhsa_user_sgpr_kernarg_segment_ptr 1
  .amdhsa_system_sgpr_workgroup_id_x 1
.end_amdhsa_kernel''')
        return e.text()


if __name__ == '__main__':
    out = sys.argv[1]
    opt = dict(OPT)
    for kv in sys.argv[2:]:
        key, val = kv.split('=')
        opt[key] = int(val)
    g = Gen(opt)
    open(out, 'w').write(g.build())
    print('written', out, 'nop states', g.e.nops)
    for w in g.e.warn:
        print('WARN', w)
```

```python
import re
import struct
import sys
from emit import Emit, v, a, s, merge

NAME = 'parallel_sum__ssm_conv_h3__dense_activation_gelu__prompt'
OPT = dict(stamps=0, stop=None)

FS, FH, FK, FW, FY = 0x0, 0x800, 0x1000, 0x1800, 0x1C00
STA, STB, STC = 0x8000, 0x10000, 0x18000
STAMPS = 0x40000
UT = 0x100000
YP = 0x400000
W2P = 0x700000
HP = 0xA00000
WS_BYTES = 0x1100000
OOB = 0x40000000
SPIN_MAX = 200000

KV = 131072
KVSZ = 17408
MISC = 148480
CSX = MISC
LCNT = MISC + 512
W2S = 149504
LDS_BYTES = W2S + 12288
HBSZ, UBSZ = 4352, 4352
YB = 0
RED = 16384

sX, sSLOT, sW = 3, 4, 5
sT0, sT1 = 6, 7
pSHIFT, pSSMD, pB1, pB2, pDBG, pWS = 14, 18, 24, 28, 32, 34
rQ, rK, rV, rW1, rW2, rH, rWS, rOUT = 36, 40, 44, 48, 52, 56, 60, 64
sG4, sFH, sMU, sCC, sR, sQ, sTB, sNT0 = 68, 69, 70, 71, 72, 73, 74, 75
sKTB, sKCG = 76, 77
sA, sB, sC, sD = 78, 79, 80, 81
sSPIN, sVAL, sEARLY, sISG = 82, 83, 84, 85
sCH, sHB, sUB, sROUND = 86, 87, 88, 89
sI, sJ = 90, 91
sM = 92
sW2OFF, sST = 100, 101
sDX, sDW = 8, 9
sR2, sNU, sCT = 10, 11, 12
sHOFF = 20
sYOFF = 13
sW2S, sW2Q, sKW = 23, 26, 27
sLO = 16
sH0 = 17

vL = 1
vL16 = 252
vP = 253
vZ = 255


def f2u(x):
    return struct.unpack('<I', struct.pack('<f', x))[0]


def hexf(x):
    return '0x%08x' % f2u(x)


class Gen:
    def __init__(self, opt):
        self.o = opt
        self.e = Emit()
        self.nlab = 0
        self.I = self.e.I
        self.prev = None


    def capture(self, fn, *args):
        out = []
        real = self.I
        self.I = lambda text, tag=None: out.extend((ln.strip(), tag) for ln in text.strip().split('\n') if ln.strip())
        try:
            fn(*args)
        finally:
            self.I = real
        joined = []
        for ln, tag in out:
            if joined and re.match(r's_(cselect|addc|cbranch)', ln):
                joined[-1] = (joined[-1][0] + '\n' + ln, None)
            else:
                joined.append((ln, tag))
        return joined

    def lab(self, p='L'):
        self.nlab += 1
        return '%s_%d' % (p, self.nlab)

    def run(self, seq):
        for it in seq:
            if callable(it):
                it()
            elif isinstance(it, tuple):
                self.I(it[0], it[1])
            else:
                self.I(it)

    def stamp(self, idx, cyc=False):
        if not self.o['stamps']:
            return
        r = self.e.raw
        if self.prev is not None:
            r('    v_writelane_b32 v254, s0, %d' % self.prev)
        r('    %s s[0:1]' % ('s_memtime' if cyc else 's_memrealtime'))
        self.prev = idx
        if cyc or self.o['stamps'] == 2:
            self.stamp_sync()

    def stamp_sync(self):
        if self.o['stamps'] and self.prev is not None:
            self.e.raw('    s_waitcnt lgkmcnt(0)\n    v_writelane_b32 v254, s0, %d' % self.prev)
            self.prev = None

    def stamp_flush(self):
        if not self.o['stamps']:
            return
        self.stamp_sync()
        self.stamp(61, cyc=True)
        r = self.e.raw
        r('    s_lshl_b32 s0, s2, 10\n    s_add_u32 s0, s0, %d\n    v_lshlrev_b32 v253, 2, v0' % STAMPS)
        r('    buffer_store_dword v254, v253, %s, s0 offen' % s(rWS, 4))

    def srd(self, r, p, nbytes):
        self.I('s_mov_b32 %s, %s\ns_mov_b32 %s, %s\ns_mov_b32 %s, %d\ns_mov_b32 %s, 0x20000' % (
            s(r), s(p), s(r + 1), s(p + 1), s(r + 2), nbytes, s(r + 3)))

    def poll_issue(self, vd, soff, tag=None):
        self.I('buffer_load_dword %s, %s, %s, %s offen sc1' % (v(vd), v(vZ), s(rWS, 4), soff), tag)

    def poll_check(self, vd, soff, target, dbg=False):
        ok, again = self.lab('Lok'), self.lab('Lspin')
        self.I('v_readfirstlane_b32 %s, %s' % (s(sVAL), v(vd)))
        self.I('s_mov_b32 %s, 0' % s(sSPIN))
        self.I('s_cmp_ge_u32 %s, %s' % (s(sVAL), target))
        self.I('s_cbranch_scc1 ' + ok)
        self.e.label(again)
        if dbg:
            self.e.raw('    global_load_dword %s, %s, %s sc1' % (v(vd), v(vZ), s(pDBG, 2)))
        else:
            self.e.raw('    buffer_load_dword %s, %s, %s, %s offen sc1' % (v(vd), v(vZ), s(rWS, 4), soff))
        self.e.raw('    s_waitcnt vmcnt(0)')
        self.e.raw('    v_readfirstlane_b32 %s, %s' % (s(sVAL), v(vd)))
        self.e.raw('    s_add_u32 %s, %s, 1' % (s(sSPIN), s(sSPIN)))
        self.e.raw('    s_cmp_ge_u32 %s, %d' % (s(sSPIN), SPIN_MAX))
        self.e.raw('    s_cbranch_scc1 ' + ok)
        self.e.raw('    s_cmp_lt_u32 %s, %s' % (s(sVAL), target))
        self.e.raw('    s_cbranch_scc1 ' + again)
        self.e.label(ok)

    def signal(self, soffs, vt):
        self.I('v_mov_b32 %s, 1' % v(vt))
        self.I('s_mov_b64 exec, 1')
        for so in soffs:
            self.I('buffer_atomic_add %s, %s, %s, %s offen sc1' % (v(vt), v(vZ), s(rWS, 4), so))
        self.I('s_mov_b64 exec, -1')

    def signal_wave0(self, soffs, vt):
        lab = self.lab('Lsig')
        starts = len(self.e.vm)
        self.I('s_cmp_lg_u32 %s, 0' % s(sW))
        self.I('s_cbranch_scc1 ' + lab)
        self.signal(soffs, vt)
        del self.e.vm[starts:]
        self.e.label(lab)

    def arrive(self, cnt_off, vt):
        self.I('v_mov_b32 %s, 1\nv_mov_b32 %s, %d' % (v(vt), v(vt + 1), cnt_off))
        self.I('s_mov_b64 exec, 1')
        self.I('ds_add_rtn_u32 %s, %s, %s' % (v(vt + 1), v(vt + 1), v(vt)))
        self.I('s_mov_b64 exec, -1')

    def arrive_done(self, soff, vt):
        lab = self.lab('Lsig')
        self.I('v_readfirstlane_b32 %s, %s' % (s(sVAL), v(vt + 1)))
        self.I('s_cmp_lg_u32 %s, 3' % s(sVAL))
        self.I('s_cbranch_scc1 ' + lab)
        self.I('s_mov_b64 exec, 1')
        self.I('buffer_atomic_add %s, %s, %s, %s offen sc1' % (v(vt), v(vZ), s(rWS, 4), soff))
        self.I('s_mov_b64 exec, -1')
        self.e.vm.pop()
        self.e.label(lab)

    @staticmethod
    def weave(main, *lists):
        n = len(main)
        gaps = [[] for _ in range(n)]
        for items, start, step in lists:
            pos = float(start)
            held = []
            last = 0
            for it in items:
                txt = it if isinstance(it, str) else (it[0] if isinstance(it, tuple) else '')
                if step >= 2 and txt.startswith('s_'):
                    held.append(it)
                    continue
                g = min(int(pos), n - 1)
                gaps[max(g - 1, last)] += held
                held = []
                gaps[g].append(it)
                last = g
                pos += step
            gaps[min(int(pos), n - 1)] += held
        out = []
        for m, g in zip(main, gaps):
            out.append(m)
            out += g
        return out

    def entry(self):
        I = self.I
        I('s_cmp_ge_u32 s2, 256\ns_cbranch_scc1 L_end')
        I('s_load_dwordx16 s[8:23], s[0:1], 0\ns_load_dwordx8 s[24:31], s[0:1], 64\ns_load_dwordx4 s[32:35], s[0:1], 96')
        I('v_lshrrev_b32 v2, 6, v0\nv_and_b32 %s, 63, v0\nv_mov_b32 %s, 0' % (v(vL), v(vZ)))
        I('v_readfirstlane_b32 %s, v2' % s(sW))
        if self.o.get('x_map'):
            I('s_lshr_b32 %s, s2, 5\ns_and_b32 %s, s2, 31' % (s(sX), s(sSLOT)))
        else:
            I('s_and_b32 %s, s2, 7\ns_lshr_b32 %s, s2, 3' % (s(sX), s(sSLOT)))
        I('s_lshr_b32 %s, %s, 1\ns_and_b32 %s, %s, 1' % (s(sG4), s(sX), s(sFH), s(sX)))
        I('s_lshr_b32 %s, %s, 3\ns_and_b32 %s, %s, 7' % (s(sMU), s(sSLOT), s(sCC), s(sSLOT)))
        I('s_lshl_b32 %s, %s, 2\ns_add_u32 %s, %s, %s' % (s(sR), s(sG4), s(sR), s(sR), s(sMU)))
        I('s_lshl_b32 %s, %s, 3\ns_add_u32 %s, %s, %s' % (s(sQ), s(sFH), s(sQ), s(sQ), s(sCC)))
        I('s_lshl_b32 %s, %s, 9\ns_lshl_b32 %s, %s, 4\ns_add_u32 %s, %s, %s' % (
            s(sTB), s(sG4), s(sT0), s(sMU), s(sTB), s(sTB), s(sT0)))
        I('v_lshrrev_b32 v2, 5, v0\nv_mul_u32_u24 v2, %d, v2\nv_and_b32 v3, 31, v0\nv_lshl_add_u32 v2, v3, 3, v2' % (64 * 1280))
        I('s_add_u32 %s, %s, %s\ns_mul_i32 %s, %s, 1280' % (s(sA), s(sTB), s(sQ), s(sA), s(sA)))
        I('v_lshrrev_b32 v6, 3, %s\nv_lshrrev_b32 v7, 5, %s\nv_lshlrev_b32 v7, 1, v7\nv_and_b32 v8, 7, %s' % (v(vL), v(vL), v(vL)))
        I('v_xor_b32 v8, v8, v7\nv_mul_u32_u24 v6, 1280, v6\nv_lshl_add_u32 v4, v8, 4, v6\nv_xor_b32 v5, 64, v4')
        I('v_lshlrev_b32 %s, 4, %s' % (v(vL16), v(vL)))
        I('s_lshl_b32 %s, %s, 2\ns_add_u32 %s, %s, %s' % (s(sD), s(sX), s(sD), s(sD), s(sMU)))
        self.e.wait_lg(0)
        self.srd(rQ, 8, 2621440)
        self.srd(rWS, pWS, WS_BYTES)

    def code_prefetch(self):
        if not self.o.get('pf', 0):
            return
        I = self.I
        lab = self.lab('Lpc')
        I('s_getpc_b64 %s' % s(sA, 2))
        I(lab + ':')
        I('s_lshl_b32 %s, %s, 10\nv_and_b32 v6, 7, %s\nv_lshl_add_u32 v6, v6, 7, %s' % (s(sT0), s(sSLOT), v(vL), s(sT0)))
        I('v_min_u32 v6, L_end-%s, v6' % lab)
        I('v_mov_b32 v7, %s\nv_add_co_u32 v6, vcc, %s, v6\nv_addc_co_u32 v7, vcc, 0, v7, vcc' % (s(sA + 1), s(sA)))
        I('global_load_dword v9, v[6:7], off')

    def stats_issue(self):
        for i in range(5):
            self.I('buffer_load_dwordx2 %s, v2, %s, %s offen offset:%d' % (v(10 + 2 * i, 2), s(rQ, 4), s(sA), 256 * i))

    def stats_sums(self):
        I = self.I
        I('v_mov_b32 v240, 0\nv_mov_b32 v241, 0\nv_mov_b32 v242, 0x3f803f80')
        for i in range(10):
            I('v_dot2c_f32_bf16 v240, v%d, v242' % (10 + i))
        for i in range(10):
            I('v_dot2c_f32_bf16 v241, v%d, v%d' % (10 + i, 10 + i))

    def stats_finish(self):
        I = self.I
        C0 = -2.0 * 0.7978845608028654 * 1.4426950408889634
        I('s_lshl_b32 %s, %s, 4\ns_add_u32 %s, %s, %s' % (s(sA), s(sR), s(sA), s(sA), s(sQ)))
        for mod in ('quad_perm:[1,0,3,2]', 'quad_perm:[2,3,0,1]', 'row_half_mirror', 'row_mirror'):
            I('v_add_f32_dpp v240, v240, v240 %s row_mask:0xf bank_mask:0xf' % mod)
            I('v_add_f32_dpp v241, v241, v241 %s row_mask:0xf bank_mask:0xf' % mod)
        I('v_mov_b32 v242, v240\nv_mov_b32 v243, v241')
        I('s_lshl_b32 %s, %s, 7\ns_add_u32 %s, %s, %d' % (s(sB), s(sA), s(sB), s(sB), STA))
        I('v_permlane16_swap_b32 v240, v242\nv_permlane16_swap_b32 v241, v243')
        I('v_add_f32 v240, v240, v242\nv_add_f32 v241, v241, v243')
        I('v_mul_f32 v10, %s, v240\nv_mul_f32 v241, %s, v241' % (hexf(1 / 640), hexf(1 / 640)))
        I('v_fma_f32 v241, -v10, v10, v241\nv_cvt_pk_bf16_f32 v12, -v10, -v10\nv_max_f32 v241, 0, v241')
        I('v_add_f32 v241, %s, v241\nv_and_b32 v242, 0xffff0000, v12\nv_rsq_f32 v11, v241' % hexf(1e-5))
        I('v_sub_f32 v242, -v10, v242\nv_lshrrev_b32 v243, 5, v0\nv_mul_f32 v18, v241, v11')
        I('v_mul_f32 v16, %s, v11\nv_cvt_pk_bf16_f32 v13, v242, v18\nv_mul_f32 v17, v11, v11' % hexf(C0))
        I('v_and_b32 v242, 0xffff0000, v13\nv_mul_f32 v17, %s, v17\nv_sub_f32 v242, v18, v242' % hexf(0.044715))
        I('v_mul_f32 v17, v17, v16\nv_cvt_pk_bf16_f32 v14, v242, 0\nv_mov_b32 v15, 0\nv_mov_b32 v19, v11')
        I('v_lshlrev_b32 v242, 4, v243\nv_lshlrev_b32 v243, 3, v243')
        I('s_add_u32 %s, %s, %d\ns_lshl_b32 %s, %s, 6\ns_add_u32 %s, %s, %d' % (s(sC), s(sB), STB - STA, s(sA), s(sA), s(sA), s(sA), STC))
        I('s_mov_b32 exec_lo, 1\ns_mov_b32 exec_hi, 1')
        I('buffer_store_dwordx4 v[12:15], v242, %s, %s offen sc1' % (s(rWS, 4), s(sB)), 'stat')
        I('buffer_store_dwordx4 v[16:19], v242, %s, %s offen sc1' % (s(rWS, 4), s(sC)), 'stat')
        I('buffer_store_dwordx2 v[10:11], v243, %s, %s offen sc1' % (s(rWS, 4), s(sA)), 'stat')
        I('s_mov_b64 exec, -1')

    KA, KSH, KST, KID, KW1, KF, KS, KVT, KPK = 192, 195, 197, 200, 204, 64, 212, 112, 244

    def kv_task(self, kappa):
        self.I('s_and_b32 %s, %s, 31\ns_lshr_b32 %s, %s, 5' % (s(sKTB), s(kappa), s(sKCG), s(kappa)))

    def kv_issue(self, lds, vshift):
        I = self.I
        I('s_lshl_b32 %s, %s, 6\ns_mul_i32 %s, %s, 1280\ns_lshl_b32 %s, %s, 7\ns_add_u32 %s, %s, %s' % (
            s(sA), s(sKTB), s(sA), s(sA), s(sB), s(sKCG), s(sA), s(sA), s(sB)))
        I('s_sub_u32 %s, %s, %d\ns_cmp_eq_u32 %s, 0\ns_cselect_b32 %s, %d, %s' % (s(sB), s(sA), 8 * 1280, s(sKTB), s(sB), 2621440, s(sB)))
        I('s_mov_b32 m0, %d\ns_lshl_b32 %s, %s, 11' % (lds, s(sC), s(sW)))
        I('buffer_load_dwordx4 v4, %s, %s offen nt lds' % (s(rK, 4), s(sB)), 'kv')
        I('s_add_u32 m0, %s, %d' % (s(sC), lds + 1024))
        I('s_mul_i32 %s, %s, %d\ns_add_u32 %s, %s, %s' % (s(sB), s(sW), 16 * 1280, s(sA), s(sA), s(sB)))
        I('buffer_load_dwordx4 v5, %s, %s offen nt lds' % (s(rK, 4), s(sA)), 'kv')
        I('s_add_u32 m0, %s, %d\ns_add_u32 %s, %s, %d' % (s(sC), lds + 2048, s(sB), s(sA), 8 * 1280))
        I('buffer_load_dwordx4 v4, %s, %s offen nt lds' % (s(rK, 4), s(sB)), 'kv')
        I('s_add_u32 m0, %s, %d\nv_and_b32 v6, 15, %s' % (s(sC), lds + 9216, v(vL)))
        I('buffer_load_dwordx4 v4, %s, %s offen nt lds' % (s(rV, 4), s(sA)), 'kv')
        I('s_add_u32 m0, %s, %d\nv_lshlrev_b32 v6, 3, v6' % (s(sC), lds + 9216 + 1024))
        I('buffer_load_dwordx4 v5, %s, %s offen nt lds' % (s(rV, 4), s(sB)), 'kv')
        I('s_lshl_b32 %s, %s, 2\ns_add_u32 %s, %s, %s\ns_lshl_b32 %s, %s, 7' % (s(sA), s(sKCG), s(sA), s(sA), s(sW), s(sA), s(sA)))
        I('v_add_u32 v6, %s, v6' % s(sA))
        I('global_load_dwordx2 %s, v6, %s' % (v(vshift, 2), s(pSHIFT, 2)), 'kv')

    def kv_setup(self, hi):
        I = self.I
        L = v(vL)
        I('v_and_b32 v6, 3, %s\nv_lshlrev_b32 v6, 2, v6\nv_bfe_u32 v7, %s, 2, 2\nv_add_u32 v6, v6, v7' % (L, L))
        I('v_bfe_u32 v7, %s, 4, 1\ns_lshl_b32 %s, %s, 1\nv_add_u32 v7, %s, v7' % (L, s(sA), s(sW), s(sA)))
        I('v_lshrrev_b32 v8, 5, %s' % L)
        for k, (off, sub) in enumerate(((8, True), (6, True), (72, False))):
            I('v_add_u32 v9, %d, v6' % (off + hi // 128))
            if sub:
                I('v_sub_u32 v9, v9, v8')
            I('v_bfe_u32 v3, %s, 2, 2' % ('v9' if sub else 'v6'))
            I('v_lshlrev_b32 v3, 1, v3\nv_xor_b32 v3, v3, v7\nv_lshlrev_b32 v3, 4, v3\nv_lshl_add_u32 %s, v9, 7, v3' % v(self.KA + k))
        I('v_bfe_u32 v6, %s, 3, 1\nv_bfe_u32 v7, %s, 4, 1\nv_bfe_u32 v9, %s, 1, 2\nv_cmp_eq_u32 vcc, v6, v7' % (L, L, L))
        I('v_lshlrev_b32 %s, 4, v8\nv_and_b32 %s, 1, %s' % (v(self.KSH), v(self.KSH + 1), L))
        I('v_cndmask_b32 v9, 7, v9, vcc\nv_lshlrev_b32 %s, 4, %s' % (v(self.KSH + 1), v(self.KSH + 1)))
        for d in range(4):
            I('v_cmp_eq_u32 %s, %d, v9' % (s(sM + 2 * d, 2), d))
        I('v_cmp_gt_u32 vcc, 32, %s\nv_mov_b32 v6, 0x3f80\nv_and_b32 v3, 15, %s' % (L, L))
        I('v_cndmask_b32 v6, 0, v6, vcc\nv_lshlrev_b32 v6, %s, v6' % v(self.KSH + 1))
        for d in range(4):
            I('v_cndmask_b32 %s, 0, v6, %s' % (v(self.KID + d), s(sM + 2 * d, 2)))
        I('v_lshlrev_b32 v3, 12, v3\nv_lshrrev_b32 v7, 4, %s\nv_lshl_add_u32 %s, v7, 4, v3' % (L, v(self.KST)))

    def kv_weights(self, vshift):
        I = self.I
        for j in range(2):
            I('v_lshrrev_b32 v6, %s, %s\nv_and_b32 v6, 0xffff, v6\nv_lshlrev_b32 v6, %s, v6' % (v(self.KSH), v(vshift + j), v(self.KSH + 1)))
            for d in range(4):
                I('v_cndmask_b32 %s, 0, v6, %s' % (v(self.KW1 + 4 * j + d), s(sM + 2 * d, 2)))

    def kv_reads(self, base):
        for b in range(4):
            for i in range(3):
                self.I('ds_read_b128 %s, %s offset:%d' % (v(self.KF + 12 * b + 4 * i, 4), v(self.KA + i), base + 2048 * b))

    def kv_compute(self):
        I = self.I
        F, KS, VT, PK = self.KF, self.KS, self.KVT, self.KPK
        I('s_lshl_b32 %s, %s, 2\ns_add_u32 %s, %s, %s\ns_lshl_b32 %s, %s, 16' % (s(sA), s(sKCG), s(sA), s(sA), s(sW), s(sA), s(sA)))
        I('s_lshl_b32 %s, %s, 7\ns_add_u32 %s, %s, %s\ns_add_u32 %s, %s, %d' % (s(sB), s(sKTB), s(sA), s(sA), s(sB), s(sA), s(sA), UT))
        mf = []
        for b in range(4):
            mf.append('v_mfma_f32_16x16x32_bf16 %s, %s, %s, 0' % (v(KS + 4 * b, 4), v(F + 12 * b, 4), v(self.KW1, 4)))
            mf.append('v_mfma_f32_16x16x32_bf16 %s, %s, %s, 0' % (v(VT + 4 * b, 4), v(F + 12 * b + 8, 4), v(self.KID, 4)))
            mf.append('v_mfma_f32_16x16x32_bf16 %s, %s, %s, %s' % (v(KS + 4 * b, 4), v(F + 12 * b + 4, 4), v(self.KW1 + 4, 4), v(KS + 4 * b, 4)))

        def fin(b):
            out = ['v_mul_f32 %s, %s, %s' % (v(KS + 4 * b + i), v(KS + 4 * b + i), v(VT + 4 * b + i)) for i in range(4)]
            out += ['v_cvt_pk_bf16_f32 %s, %s, %s' % (v(PK + 2 * b + i), v(KS + 4 * b + 2 * i), v(KS + 4 * b + 2 * i + 1)) for i in range(2)]
            if b & 1:
                out.append(('buffer_store_dwordx4 %s, %s, %s, %s offen offset:%d sc1' % (
                    v(PK + 2 * b - 2, 4), v(self.KST), s(rWS, 4), s(sA), 32 * (b - 1)), 'prep'))
            return out
        self.run(mf[:8] + merge(mf[8:], fin(0), 0) + fin(1) + fin(2) + fin(3))

    W2A, W2F = 228, 52

    def w2_setup(self):
        I = self.I
        I('s_lshr_b32 %s, %s, 2\ns_and_b32 %s, %s, 3' % (s(sW2S), s(sT0), s(sW2Q), s(sT0)))
        for i in range(3):
            I('v_add_u32 v6, %d, v0\nv_mul_u32_u24 v7, 3277, v6\nv_lshrrev_b32 v7, 16, v7\nv_mul_u32_u24 v8, 20, v7\nv_sub_u32 v8, v6, v8' % (256 * i))
            I('v_mul_u32_u24 v7, 1280, v7\nv_lshl_add_u32 %s, v8, 4, v7' % v(self.W2A + i))
        I('s_cmp_ge_u32 %s, 2\ns_cselect_b32 %s, %d, 0' % (s(sW), s(sA), OOB))
        I('v_add_u32 %s, %s, %s' % (v(self.W2A + 2), s(sA), v(self.W2A + 2)))
        I('s_mul_i32 %s, %s, %d\ns_mul_i32 %s, %s, 320\ns_add_u32 %s, %s, %s' % (s(sKW), s(sW2S), 32 * 1280, s(sA), s(sW2Q), s(sKW), s(sKW), s(sA)))

    def w2_issue(self):
        I = self.I
        for i in range(3):
            I('s_lshl_b32 %s, %s, 10\ns_add_u32 m0, %s, %d' % (s(sA), s(sW), s(sA), W2S + 4096 * i))
            I('buffer_load_dwordx4 %s, %s, %s offen nt lds' % (v(self.W2A + i), s(rW2, 4), s(sKW)), 'kv')

    def w2_addr(self):
        I = self.I
        L = v(vL)
        I('v_lshrrev_b32 v7, 2, %s\nv_mul_u32_u24 v7, 320, v7\nv_and_b32 v6, 3, %s\nv_lshl_add_u32 v7, v6, 3, v7' % (L, L))
        I('s_lshl_b32 %s, %s, 5\ns_add_u32 %s, %s, %d\nv_add_u32 %s, %s, v7' % (s(sA), s(sW), s(sA), s(sA), W2S, v(self.W2A + 3), s(sA)))
        I('s_mul_i32 %s, %s, 108\ns_add_u32 %s, %s, %s\ns_mul_i32 %s, %s, 5120\ns_lshl_b32 %s, %s, 10\ns_add_u32 %s, %s, %s' % (
            s(sA), s(sW2Q), s(sA), s(sA), s(sW2S), s(sA), s(sA), s(sB), s(sW), s(sA), s(sA), s(sB)))
        I('s_add_u32 %s, %s, %d\ns_cmp_ge_u32 %s, 54\ns_cselect_b32 %s, %d, %s' % (s(sA), s(sA), W2P, s(sW2S), s(sHOFF), WS_BYTES, s(sA)))
        I('s_movk_i32 %s, 4096\ns_cmp_eq_u32 %s, 0\ns_cselect_b32 %s, %s, %d' % (s(sA), s(sW), s(sA), s(sA), 54 * 5120 - 1024))
        I('s_add_u32 %s, %s, %s' % (s(sHOFF + 1), s(sHOFF), s(sA)))
        I('s_mov_b32 %s, %d\ns_cmp_ge_u32 %s, 2\ns_cselect_b32 %s, %s, %d' % (s(sA), WS_BYTES, s(sW), s(sA), s(sA), 54 * 5120 + 3072))
        I('s_add_u32 %s, %s, %s' % (s(sHOFF + 2), s(sHOFF), s(sA)))

    def w2_reads(self):
        for i in range(3):
            for hf in range(2):
                self.I('ds_read_b64_tr_b16 %s, %s offset:%d' % (v(self.W2F + 4 * i + 2 * hf, 2), v(self.W2A + 3), 5120 * hf + 128 * i))

    def w2_stores(self):
        for i in range(3):
            self.I('buffer_store_dwordx4 %s, %s, %s, %s offen sc1' % (v(self.W2F + 4 * i, 4), v(vL16), s(rWS, 4), s(sHOFF + i)), 'prep')

    def lds_init(self):
        self.I('v_mov_b32 v6, %d\nds_write2_b32 v6, v255, v255 offset1:1' % LCNT)

    def gemm2_ids(self):
        I = self.I
        I('s_lshl_b32 %s, %s, 1\ns_lshr_b32 %s, %s, 4\ns_add_u32 %s, %s, %s' % (s(sR2), s(sX), s(sT0), s(sSLOT), s(sR2), s(sR2), s(sT0)))
        I('s_bfe_u32 %s, %s, 0x10003\ns_and_b32 %s, %s, 7' % (s(sNU), s(sSLOT), s(sCT), s(sSLOT)))
        I('s_mul_i32 %s, %s, 13\ns_cmp_lg_u32 %s, 0\ns_addc_u32 %s, %s, 0' % (s(sST), s(sW), s(sW), s(sST), s(sST)))
        I('s_mul_i32 %s, %s, 54\ns_add_u32 %s, %s, %s\ns_mul_i32 %s, %s, 5120\ns_add_u32 %s, %s, %d' % (
            s(sW2OFF), s(sCT), s(sW2OFF), s(sW2OFF), s(sST), s(sW2OFF), s(sW2OFF), s(sW2OFF), s(sW2OFF), W2P))

    def late_setup(self):
        I = self.I
        L = v(vL)
        I('v_bfe_u32 v2, %s, 2, 2\nv_lshrrev_b32 v6, 4, %s\nv_lshlrev_b32 v7, 1, v6\nv_sub_u32 v3, v2, v7\nv_lshlrev_b32 v3, 5, v3' % (L, L))
        I('v_and_b32 v7, 3, %s\nv_sub_u32 v4, v7, v2\nv_lshl_add_u32 v2, v7, 3, v3\ns_add_u32 %s, %s, 224\nv_add_u32 v2, %s, v2' % (L, s(sT0), s(sUB), s(sT0)))
        I('v_add_u32 v3, 2048, v2\nv_lshlrev_b32 v4, 3, v4\nv_lshl_add_u32 v4, v6, 6, v4')
        I('s_add_u32 %s, %s, 32\nv_add_u32 v4, %s, v4' % (s(sT0), s(sHB), s(sT0)))
        I('v_lshlrev_b32 v13, 3, v6')
        I('v_lshrrev_b32 v6, 3, %s\nv_mul_u32_u24 v6, %d, v6\nv_and_b32 v7, 7, %s\nv_lshl_add_u32 v5, v7, 4, v6' % (L, 640 * 128, L))
        I('v_lshlrev_b32 v7, 6, v7\nv_bfe_u32 v6, %s, 3, 1\nv_add_u32 v6, v6, v7\nv_mul_u32_u24 v6, 1280, v6\nv_add_u32 v12, v6, v13' % L)
        I('s_lshr_b32 %s, %s, 2\ns_lshl_b32 %s, %s, 9\ns_and_b32 %s, %s, 3\ns_lshl_b32 %s, %s, 4\ns_add_u32 %s, %s, %s' % (
            s(sT1), s(sR2), s(sT1), s(sT1), s(sT0), s(sR2), s(sT0), s(sT0), s(sT1), s(sT1), s(sT0)))
        I('s_lshl_b32 %s, %s, 3\ns_add_u32 %s, %s, %s\ns_lshl_b32 %s, %s, 1\ns_add_u32 %s, %s, %s' % (
            s(sT0), s(sNU), s(sT1), s(sT1), s(sT0), s(sT0), s(sW), s(sT1), s(sT1), s(sT0)))
        I('s_mul_i32 %s, %s, 1280\ns_mul_i32 %s, %s, 160\ns_add_u32 %s, %s, %s' % (s(sT1), s(sT1), s(sT0), s(sCT), s(sT1), s(sT1), s(sT0)))
        I('v_add_u32 v13, %s, v13' % s(sT0))
        for t in range(4):
            I('s_add_u32 %s, %s, %d\ns_and_b32 %s, %s, 3\ns_lshl_b32 %s, %s, 10\nv_add_u32 %s, %s, %s' % (
                s(sT0), s(sW), t + 1, s(sT0), s(sT0), s(sT0), s(sT0), v(8 + t), s(sT0), v(vL16)))
        I('s_lshl_b32 %s, %s, 1\ns_add_u32 %s, %s, %s\ns_mul_i32 %s, %s, 54\ns_add_u32 %s, %s, %s' % (
            s(sT0), s(sR2), s(sT0), s(sT0), s(sNU), s(sT0), s(sT0), s(sT0), s(sT0), s(sST)))
        I('s_lshl_b32 %s, %s, 12\ns_add_u32 %s, %s, %d' % (s(sT0), s(sT0), s(sHOFF), s(sT0), HP))
        I('s_cmp_ge_u32 %s, 2\ns_cselect_b32 %s, %d, %s' % (s(sW), s(sH0), WS_BYTES, s(sHOFF)))

    def h_issue(self, hb, ch, vD):
        I = self.I
        I('s_add_u32 m0, %s, 32\ns_lshl_b32 %s, %s, 12' % (s(hb), s(sA), s(ch)))
        for i in range(4):
            I('buffer_load_dwordx4 %s, %s, %s offen offset:%d nt lds' % (v(vL16), s(rH, 4), s(sA), 1024 * i), 'h')
        I('s_lshl_b32 %s, %s, 1\nv_mov_b32 v6, %s' % (s(sA), s(ch), s(sA)))
        I('global_load_ushort %s, v6, %s' % (v(vD), s(pSSMD, 2)), 'h')

    def u_issue(self, ch, dst):
        self.I('s_lshl_b32 %s, %s, 12\ns_add_u32 %s, %s, %d' % (s(sA), s(ch), s(sA), s(sA), UT))
        for i in range(4):
            self.I('buffer_load_dwordx4 %s, %s, %s, %s offen offset:%d sc1' % (dst(4 * i, 4), v(vL16), s(rWS, 4), s(sA), 1024 * i), 'u')

    def conv_pads(self, hb, ub):
        I = self.I
        I('v_lshl_add_u32 v6, %s, 2, %s\nds_write_b32 v6, %s' % (v(vL), s(ub), v(vZ)))
        I('v_and_b32 v7, 7, %s\nv_lshl_add_u32 v7, v7, 2, %s\nds_write_b32 v7, %s' % (v(vL), s(hb), v(vZ)))

    def conv_dfix_a(self, hb):
        self.I('v_mov_b32 v14, %s\nds_read_u16 v15, v14 offset:32' % s(hb))

    def conv_dfix_b(self, vD):
        self.I('v_lshlrev_b32 v6, 16, %s\nv_lshlrev_b32 v15, 16, v15\nv_add_f32 v15, v15, v6\nv_cvt_pk_bf16_f32 v15, v15, v15' % v(vD))
        self.I('ds_write_b16 v14, v15 offset:32')

    def conv_ustage(self, ub, src):
        I = self.I
        L = v(vL)
        I('v_lshrrev_b32 v6, 2, %s\nv_lshlrev_b32 v6, 6, v6\nv_and_b32 v7, 3, %s\nv_lshl_add_u32 v6, v7, 3, v6' % (L, L))
        I('s_add_u32 %s, %s, 256\nv_add_u32 v6, %s, v6\nv_add_u32 v7, 2048, v6' % (s(sT0), s(ub), s(sT0)))
        for i in range(4):
            I('ds_write2_b64 %s, %s, %s offset0:%d offset1:%d' % (v(6 + i // 2), src(4 * i, 2), src(4 * i + 2, 2), 128 * (i & 1), 128 * (i & 1) + 4))

    WX = 188

    def w2_loads(self, g):
        out = [('s_add_u32 %s, %s, %d' % (s(sC), s(sW2OFF), 4096 * g), None)]
        for i in range(4 if g < 17 else 2):
            dst = a(16 * g + 4 * i, 4) if g < 16 else v(self.WX + 16 * (g - 16) + 4 * i, 4)
            out.append(('buffer_load_dwordx4 %s, %s, %s, %s offen offset:%d sc1' % (dst, v(vL16), s(rWS, 4), s(sC), 1024 * i), None))
        return out

    XA, WA, DX, DW, ONES, CS, B1 = 20, 24, 32, 36, 40, 44, 248
    ACC, FR = 64, 128
    XB, KK, AX = 192, 208, 224

    def g1_setup(self):
        I = self.I
        L = v(vL)
        I('s_mul_i32 %s, %s, 7\ns_add_u32 %s, %s, %s\ns_lshl_b32 %s, %s, 2\ns_min_u32 %s, %s, 50' % (
            s(sT0), s(sFH), s(sT0), s(sT0), s(sCC), s(sNT0), s(sT0), s(sNT0), s(sNT0)))
        I('v_lshrrev_b32 v6, 3, %s\nv_mul_u32_u24 v6, %d, v6\nv_lshrrev_b32 v7, 4, %s\nv_and_b32 v8, 7, %s\nv_xor_b32 v8, v8, v7' % (L, 64 * 1280, L, L))
        I('v_lshl_add_u32 %s, v8, 4, v6' % v(self.DX))
        I('v_xor_b32 v6, 64, %s' % v(self.DX))
        I('v_add_u32 %s, 256, v6\nv_add_u32 %s, 512, %s\nv_add_u32 %s, 768, v6' % (v(self.DX + 1), v(self.DX + 2), v(self.DX), v(self.DX + 3)))
        I('v_mul_u32_u24 v6, 3456, v7\nv_lshlrev_b32 v7, 2, v7\nv_and_b32 v8, 15, %s\nv_xor_b32 v8, v8, v7\nv_lshl_add_u32 %s, v8, 4, v6' % (L, v(self.DW)))
        I('v_xor_b32 v8, 2, v8\nv_lshl_add_u32 v6, v8, 4, v6')
        step = 4 * 3456 - 1024
        I('v_add_u32 %s, %d, %s\nv_add_u32 %s, %d, v6\nv_add_u32 %s, %d, v6' % (
            v(self.DW + 1), step, v(self.DW), v(self.DW + 2), 2 * step, v(self.DW + 3), 3 * step))
        I('s_lshl_b32 %s, %s, 2\ns_add_u32 %s, %s, %s\ns_mul_i32 %s, %s, 1280' % (s(sT0), s(sW), s(sT0), s(sT0), s(sTB), s(sDX), s(sT0)))
        I('s_mul_i32 %s, %s, %d\ns_lshl_b32 %s, %s, 6\ns_add_u32 %s, %s, %s' % (s(sDW), s(sW), 16 * 3456, s(sT0), s(sNT0), s(sDW), s(sDW), s(sT0)))
        I('s_lshl_b32 %s, %s, 12' % (s(sD), s(sW)))

    def g1_dma(self, c):
        slot = (c % 4) * 32768
        out = [('s_add_u32 m0, %s, %d' % (s(sD), slot), None)]
        for i in range(4):
            out.append(('buffer_load_dwordx4 %s, %s, %s offen offset:%d lds' % (v(self.DX + i), s(rQ, 4), s(sDX), 1024 * i), 'c%d' % c))
        second = [('s_add_u32 m0, %s, %d' % (s(sD), slot + 16384), None), ('s_add_u32 %s, %s, 128' % (s(sDX), s(sDX)), None)]
        for i in range(4):
            second.append(('buffer_load_dwordx4 %s, %s, %s offen offset:%d lds' % (v(self.DW + i), s(rW1, 4), s(sDW), 1024 * i), 'c%d' % c))
        second.append(('s_add_u32 %s, %s, %d' % (s(sDW), s(sDW), 64 * 3456), None))
        return out, second

    def g1_frag_setup(self):
        I = self.I
        L = v(vL)
        I('s_lshr_b32 %s, %s, 1\ns_and_b32 %s, %s, 1' % (s(sI), s(sW), s(sJ), s(sW)))
        I('v_and_b32 v6, 15, %s\nv_lshrrev_b32 v7, 1, v6\nv_lshrrev_b32 v8, 4, %s\nv_xor_b32 v7, v7, v8' % (L, L))
        I('s_lshl_b32 %s, %s, 13\nv_lshlrev_b32 v6, 7, v6\nv_add_u32 v6, %s, v6' % (s(sT0), s(sJ), s(sT0)))
        I('v_lshl_add_u32 %s, v7, 4, v6\nv_xor_b32 %s, 64, %s' % (v(self.XA), v(self.XA + 1), v(self.XA)))
        I('v_add_u32 %s, 0x10000, %s\nv_add_u32 %s, 0x10000, %s' % (v(self.XA + 2), v(self.XA), v(self.XA + 3), v(self.XA + 1)))
        I('v_bfe_u32 v6, %s, 2, 2\nv_lshl_add_u32 v7, v8, 3, v6\nv_lshlrev_b32 v7, 8, v7\nv_and_b32 v9, 3, %s\nv_lshl_add_u32 v7, v9, 3, v7' % (L, L))
        I('v_add_u32 v7, 16384, v7\nv_and_b32 v8, 1, v8\nv_lshl_add_u32 v6, v6, 1, v8\ns_lshl_b32 %s, %s, 1\nv_xor_b32 v6, %s, v6' % (s(sT0), s(sW), s(sT0)))
        I('v_lshl_add_u32 %s, v6, 5, v7' % v(self.WA))
        for k in range(1, 4):
            I('v_xor_b32 %s, %d, %s' % (v(self.WA + k), 32 * k, v(self.WA)))
        for k in range(4):
            I('v_add_u32 %s, 0x10000, %s' % (v(self.WA + 4 + k), v(self.WA + k)))
        for k in range(4):
            I('v_mov_b32 %s, 0x3f803f80' % v(self.ONES + k))

    def b1_issue(self):
        I = self.I
        I('s_add_u32 %s, %s, %s\ns_lshl_b32 %s, %s, 6' % (s(sA), s(sW), s(sNT0), s(sA), s(sA)))
        I('v_and_b32 v6, 15, %s\nv_lshl_add_u32 v6, v6, 1, %s\nv_xor_b32 v7, 64, v6' % (v(vL), s(sA)))
        for k in range(4):
            I('global_load_ushort %s, %s, %s offset:%d' % (v(self.B1 + k), v(6 + k // 2), s(pB1, 2), 32 * (k & 1)))

    def g1_reads(self, c, k, fs):
        slot = c % 4
        hi = slot // 2
        off = (slot % 2) * 32768
        F = self.FR + 32 * fs
        out = []
        for i in range(4):
            for hf in range(2):
                out.append('ds_read_b64_tr_b16 %s, %s offset:%d' % (v(F + 16 + 4 * i + 2 * hf, 2), v(self.WA + 4 * hi + i), off + 8192 * k + 1024 * hf))
            out.append('ds_read_b128 %s, %s offset:%d' % (v(F + 4 * i, 4), v(self.XA + 2 * hi + k), off + 2048 * i))
        return out

    def g1_mfmas(self, fs, first):
        F = self.FR + 32 * fs
        out = []
        for d in range(4):
            for aa, b in [(d, x) for x in range(d)] + [(x, d) for x in range(d + 1)]:
                acc = v(self.ACC + 4 * (4 * aa + b), 4)
                out.append('v_mfma_f32_16x16x32_bf16 %s, %s, %s, %s' % (acc, v(F + 16 + 4 * aa, 4), v(F + 4 * b, 4), '0' if first else acc))
        return out

    def g1_cs(self, fs, first):
        F = self.FR + 32 * fs
        return ['v_mfma_f32_16x16x32_bf16 %s, %s, %s, %s' % (v(self.CS + 4 * k, 4), v(self.ONES, 4), v(F + 16 + 4 * k, 4), '0' if first else v(self.CS + 4 * k, 4))
                for k in range(2)]

    def ax_build(self, aa, cs):
        d = self.AX + 4 * aa
        b1 = v(self.B1 + aa)
        return ['v_cvt_pk_bf16_f32 v6, %s, %s' % (cs, cs), 'v_mov_b32 %s, %s' % (v(d + 2), b1), 'v_and_b32 v7, 0xffff0000, v6',
                'v_sub_f32 v7, %s, v7' % cs, 'v_and_b32 v6, 0xffff, v6', 'v_cvt_pk_bf16_f32 %s, %s, v7' % (v(d), cs),
                'v_lshl_or_b32 %s, %s, 16, v6' % (v(d + 1), b1)]

    def role_g(self):
        I, e, o = self.I, self.e, self.o
        cap = self.capture
        L = v(vL)
        self.stats_issue()
        self.srd(rK, 10, 2621440)
        self.srd(rV, 12, 2621440)
        I('s_mul_i32 %s, %s, 7\ns_add_u32 %s, %s, %s' % (s(sT0), s(sD), s(sT0), s(sT0), s(sCC)))
        self.kv_task(sT0)
        self.kv_issue(KV, 198)
        self.srd(rW1, 22, 640 * 3456)
        self.srd(rW2, 26, 1728 * 1280)
        self.w2_setup()
        self.w2_issue()
        self.g1_setup()
        d0 = self.g1_dma(0)
        self.run(d0[0] + d0[1])
        self.stamp(1)

        def conv_ids():
            I = self.I
            I('s_mul_i32 %s, %s, 7\ns_add_u32 %s, %s, %s\ns_lshl_b32 %s, %s, 1' % (s(sCH), s(sMU), s(sCH), s(sCH), s(sCC), s(sCH), s(sCH)))
            I('s_mul_i32 %s, %s, 80\ns_add_u32 %s, %s, %s\ns_add_u32 %s, %s, %s' % (s(sT0), s(sX), s(sCH), s(sCH), s(sT0), s(sCH), s(sCH), s(sI)))
            I('s_mul_i32 %s, %s, %d\ns_add_u32 %s, %s, %d\ns_add_u32 %s, %s, 65536' % (s(sUB), s(sW), UBSZ, s(sHB), s(sUB), KV, s(sUB), s(sUB)))
        shadow = (cap(self.code_prefetch) + cap(self.lds_init) + cap(self.kv_setup, KV) + cap(self.g1_frag_setup) + cap(self.srd, rH, 16, 2621440)
                  + cap(self.srd, rOUT, 30, 2621440) + cap(conv_ids) + cap(self.gemm2_ids) + cap(self.w2_addr))
        nearly = o.get('nearly', 2)
        dm = []
        for c in range(1, 1 + nearly):
            dm += sum(self.g1_dma(c), [])
        self.run(self.weave(shadow, (dm, 2, max(2.0, (len(shadow) - 4) / (8.0 * nearly)))))
        self.stamp(2)
        self.stats_sums()
        self.kv_weights(198)
        e.wait_tag('kv', and_lg=0)
        I('s_barrier')
        self.w2_reads()
        self.kv_reads(0)
        dm = []
        for c in range(1 + nearly, 4):
            dm += sum(self.g1_dma(c), [])
        fin = cap(self.stats_finish)
        cut = max(i for i, x in enumerate(fin) if x[0].startswith('s_mov_b32 exec_lo'))
        if dm:
            self.run(self.weave(fin[:cut], (dm, 1, max(2.0, cut / (8.0 * (3 - nearly))))) + fin[cut:])
        else:
            self.run(fin)
        self.w2_stores()
        self.kv_compute()
        I('global_load_dword v240, %s, %s sc1' % (v(vZ), s(pDBG, 2)), 'z')
        self.stamp(3)
        e.wait_tag('c0')
        I('s_barrier')
        self.run(self.g1_reads(0, 0, 0))
        self.stamp(4)
        NE = o.get('ne', 9)
        early = [x for g in range(NE) for x in self.w2_loads(g)]

        def take_early(n):
            out = []
            while early and n > 0:
                x = early.pop(0)
                out.append(x)
                n -= x[0].startswith('buffer')
            return out
        late = cap(self.late_setup)
        pFS, cFS = o.get('pfs', 11), o.get('cfs', 13)
        pFK, cFK = o.get('pfk', 14), o.get('cfk', 17)
        second = []
        for c in range(10):
            for k in range(2):
                st = 2 * c + k
                first = st == 0
                mf = self.g1_mfmas(k, first)
                cs = self.g1_cs(k, first)
                mem, extra = [], []
                if k == 1 and c < 9:
                    e.wait_tag('prep' if c == 1 else 'c%d' % (c + 1), and_lg=0)
                    if c == 1:
                        self.poll_check(240, None, 1, dbg=True)
                    if st == cFS:
                        self.poll_check(241, s(sEARLY), 16)
                    if st == cFK:
                        self.poll_check(242, s(sB), 32)
                        self.poll_check(243, s(sD), 56)
                    I('s_barrier')
                    if c == 1:
                        I('s_lshl_b32 %s, %s, 7\ns_lshl_b32 %s, %s, 7\ns_add_u32 %s, %s, %d' % (
                            s(sA), s(sR), s(sB), s(sKCG), s(sB), s(sB), FK))
                        I('s_lshl_b32 %s, %s, 7\ns_add_u32 %s, %s, %d' % (s(sC), s(sW2Q), s(sC), s(sC), FW))
                        self.signal_wave0([s(sA), s(sB), s(sC)], 6)
                    if c + 4 < 10:
                        mem, second = self.g1_dma(c + 4)
                elif k == 0:
                    mem, second = second, []
                reads = self.g1_reads(c, 1, 1) if k == 0 else (self.g1_reads(c + 1, 0, 0) if c < 9 else [])
                if st == pFS:
                    extra += ['s_lshl_b32 %s, %s, 7' % (s(sEARLY), s(sR)), lambda: self.poll_issue(241, s(sEARLY))]
                if st == 13:
                    mem = mem + cap(self.h_issue, sHB, sCH, 244)
                if st == 9:
                    extra += cap(self.b1_issue)
                if st == cFS + 1:
                    def stat_loads():
                        I = self.I
                        I('s_lshl_b32 %s, %s, 1\ns_add_u32 %s, %s, %s\ns_lshl_b32 %s, %s, 10\ns_add_u32 %s, %s, %d\ns_add_u32 %s, %s, %d' % (
                            s(sA), s(sR), s(sA), s(sA), s(sJ), s(sA), s(sA), s(sA), s(sA), STA, s(sEARLY), s(sA), STB - STA))
                        I('v_and_b32 v14, 15, %s\nv_lshlrev_b32 v14, 4, v14\nv_lshrrev_b32 v15, 4, %s\nv_lshl_add_u32 v15, v15, 26, v14' % (L, L))
                        for b in range(4):
                            I('buffer_load_dwordx4 %s, v15, %s, %s offen offset:%d sc1' % (v(self.XB + 4 * b, 4), s(rWS, 4), s(sA), 256 * b))
                            I('buffer_load_dwordx4 %s, v14, %s, %s offen offset:%d sc1' % (v(self.KK + 4 * b, 4), s(rWS, 4), s(sEARLY), 256 * b))
                    extra += cap(stat_loads)
                if st == pFK:
                    extra += ['s_lshr_b32 %s, %s, 6' % (s(sB), s(sCH)), 's_lshl_b32 %s, %s, 7' % (s(sB), s(sB)),
                              's_add_u32 %s, %s, %d' % (s(sB), s(sB), FK), lambda: self.poll_issue(242, s(sB)),
                              's_lshr_b32 %s, %s, 1' % (s(sD), s(sCT)), 's_lshl_b32 %s, %s, 7' % (s(sD), s(sD)),
                              's_add_u32 %s, %s, %d' % (s(sD), s(sD), FW), lambda: self.poll_issue(243, s(sD))]
                if st in (3, 4, 5, 6, 7, 8):
                    n = (len(late) + (8 - st)) // (9 - st)
                    extra += late[:n]
                    late = late[n:]
                if st == 15:
                    extra += cap(self.conv_pads, sHB, sUB) + ['v_mov_b32 %s, 0' % v(self.AX + 4 * q + 3) for q in range(4)]
                if st == 16:
                    extra += [lambda: e.wait_tag('h')] + cap(self.conv_dfix_a, sHB)
                    extra += ['s_lshl_b32 %s, %s, 7' % (s(sT0), s(sW)), 's_add_u32 %s, %s, %d' % (s(sT0), s(sT0), CSX),
                              'v_and_b32 v16, 15, %s' % L, 'v_lshl_add_u32 v16, v16, 2, %s' % s(sT0), 'v_xor_b32 v17, 128, v16']
                if st == 17:
                    extra += cap(self.conv_dfix_b, 244)
                if st == cFK:
                    mem = mem + cap(self.u_issue, sCH, lambda x, n: a(240 + x, n))
                elif st > cFK:
                    mem = mem + take_early(4)
                if st == 18:
                    def h_addr():
                        I = self.I
                        I('s_lshl_b32 %s, %s, 1\ns_add_u32 %s, %s, %s\ns_mul_i32 %s, %s, 54\ns_add_u32 %s, %s, %s' % (
                            s(sA), s(sR), s(sA), s(sA), s(sJ), s(sA), s(sA), s(sA), s(sA), s(sNT0)))
                        I('s_add_u32 %s, %s, %s\ns_xor_b32 %s, %s, 1\ns_add_u32 %s, %s, %s' % (s(sB), s(sA), s(sW), s(sT0), s(sW), s(sA), s(sA), s(sT0)))
                        I('s_lshl_b32 %s, %s, 12\ns_add_u32 %s, %s, %d\ns_lshl_b32 %s, %s, 12\ns_add_u32 %s, %s, %d' % (
                            s(sB), s(sB), s(sB), s(sB), HP, s(sA), s(sA), s(sA), s(sA), HP))
                        I('s_lshl_b32 %s, %s, 4\ns_add_u32 %s, %s, %s\ns_cmp_eq_u32 %s, 14' % (s(sT0), s(sI), s(sT0), s(sT0), s(sQ), s(sT0)))
                        I('s_cselect_b32 %s, %d, %s\ns_cselect_b32 %s, %d, %s' % (s(sA), WS_BYTES, s(sA), s(sB), WS_BYTES, s(sB)))
                    extra += cap(h_addr)
                if st < 19:
                    ne = len(extra)
                    self.run(self.weave(mf + cs, (reads, 0, 1), (mem, 2, 4), (extra, 12 if ne <= 10 else 1, 0.6 if ne <= 10 else 17.0 / ne)))
                else:
                    self.run(cs + self.weave(mf[:5], (mem, 0, 2)))
                    I('ds_write2_b32 v16, %s, %s offset1:16' % (v(self.CS), v(self.CS + 4)))
                    self.run(mf[5:7])
                    e.wait_lg(0)
                    I('s_barrier')
                    I('ds_read2_b32 v[18:19], v17 offset1:16')
                    own = self.ax_build(0, v(self.CS)) + self.ax_build(1, v(self.CS + 4))
                    self.run(self.weave(mf[7:15], (own, 0, 0.55)) + self.ax_build(2, 'v18')[:2] + [mf[15]] + self.ax_build(2, 'v18')[2:] + self.ax_build(3, 'v19'))
                if k == 1:
                    self.stamp(20 + c)
                elif c >= 5:
                    self.stamp(10 + c)
        assert not late
        self.stamp(5)
        self.g1_epilogue(take_early, NE)
        assert not early

    def g1_epilogue(self, take_early, NE):
        I, e = self.I, self.e
        for p in range(2):
            for b in range(4):
                for aa in (2 * p, 2 * p + 1):
                    acc = v(self.ACC + 4 * (4 * aa + b), 4)
                    I('v_mfma_f32_16x16x32_bf16 %s, %s, %s, %s' % (acc, v(self.AX + 4 * aa, 4), v(self.XB + 4 * b, 4), acc))
                if b & 1:
                    self.run(take_early(1))
        self.stamp(6)
        T = 128
        per = self.o.get('gl', 3)
        for p in range(2):
            for b in range(4):
                n = 4 * p + b
                kk, sg = v(self.KK + 4 * b, 2), v(self.KK + 4 * b + 2, 2)
                prs = [self.ACC + 4 * (4 * (2 * p + (j >> 1)) + b) + 2 * (j & 1) for j in range(4)]
                tp = [T + 16 * (n & 1) + 2 * j for j in range(4)]
                tq = [T + 16 * (n & 1) + 8 + 2 * j for j in range(4)]
                out = 160 + 4 * n
                seq = []
                seq += ['v_pk_mul_f32 %s, %s, %s' % (v(t, 2), v(q, 2), v(q, 2)) for q, t in zip(prs, tp)]
                seq += ['v_pk_fma_f32 %s, %s, %s, %s op_sel:[0,1,0] op_sel_hi:[1,1,0]' % (v(t, 2), v(t, 2), kk, kk) for t in tp]
                seq += ['v_pk_mul_f32 %s, %s, %s' % (v(t, 2), v(t, 2), v(q, 2)) for q, t in zip(prs, tp)]
                seq += ['v_exp_f32 %s, %s' % (v(t + h), v(t + h)) for t in tp for h in range(2)]
                seq += ['v_pk_fma_f32 %s, %s, %s, %s op_sel:[0,0,0] op_sel_hi:[1,0,0]' % (v(t, 2), v(t, 2), sg, sg) for t in tp]
                seq += ['v_rcp_f32 %s, %s' % (v(t + h), v(t + h)) for t in tp for h in range(2)]
                seq += ['v_pk_mul_f32 %s, %s, %s' % (v(u, 2), v(t, 2), v(q, 2)) for q, t, u in zip(prs, tp, tq)]
                seq += ['v_cvt_pk_bf16_f32 %s, %s, %s' % (v(out + j), v(u), v(u + 1)) for j, u in enumerate(tq)]
                self.run(self.weave(seq, (take_early(per if n < 7 else 99), 3, 11)))
                I('buffer_store_dwordx4 %s, %s, %s, %s offen offset:%d sc1' % (
                    v(out, 4), v(vL16), s(rWS, 4), s(sB if p == 0 else sA), 1024 * b), 'H')
                if n == 1:
                    self.conv_ustage(sUB, lambda x, n: a(240 + x, n))
        self.stamp(7)
        self.h_tail = list(e.vm)
        I('s_mov_b32 %s, 1' % s(sISG))
        self.stamp_sync()
        I('s_branch L_conv')

    def role_s(self):
        I, e = self.I, self.e
        cap = self.capture
        L = v(vL)
        zwg = 7 if self.o.get('x_map') else 56
        lab = self.lab('Lnoz')
        I('s_cmp_lg_u32 s2, %d\ns_cbranch_scc1 %s\ns_cmp_lg_u32 %s, 0\ns_cbranch_scc1 %s' % (zwg, lab, s(sW), lab))
        I('v_lshlrev_b32 v6, 7, %s\nbuffer_store_dword %s, v6, %s, 0 offen sc1' % (L, v(vZ), s(rWS, 4)))
        e.vm.pop()
        e.label(lab)
        self.stats_issue()
        self.srd(rK, 10, 2621440)
        self.srd(rV, 12, 2621440)

        def task(t):
            self.I('s_mul_i32 %s, %s, 3\ns_add_u32 %s, %s, %d' % (s(sT0), s(sD), s(sT0), s(sT0), 224 + t))
            self.kv_task(sT0)
        KB = 3 * 4 * (HBSZ + UBSZ)
        STEP = 4 * (HBSZ + UBSZ)
        for t in range(3):
            task(t)
            self.kv_issue(KB + t * KVSZ, 228 + 2 * t)
            if t == 0:
                self.code_prefetch()
                self.kv_setup(KB)
        lab = self.lab('Lnoz')
        I('s_cmp_lg_u32 s2, %d\ns_cbranch_scc1 %s\ns_cmp_lg_u32 %s, 0\ns_cbranch_scc1 %s' % (zwg, lab, s(sW), lab))
        e.raw('    s_waitcnt vmcnt(%d)' % len(e.vm))
        I('v_mov_b32 v6, 1\ns_mov_b64 exec, 1\nglobal_store_dword %s, v6, %s sc1\ns_mov_b64 exec, -1' % (v(vZ), s(pDBG, 2)))
        e.vm.pop()
        e.label(lab)
        self.stamp(1)
        self.stats_sums()
        self.stats_finish()
        self.srd(rH, 16, 2621440)
        self.srd(rOUT, 30, 2621440)
        self.gemm2_ids()
        I('s_mul_i32 %s, %s, 80\ns_mul_i32 %s, %s, 6\ns_add_u32 %s, %s, %s\ns_add_u32 %s, %s, 56' % (
            s(sCH), s(sX), s(sT0), s(sMU), s(sCH), s(sCH), s(sT0), s(sCH), s(sCH)))
        I('s_lshr_b32 %s, %s, 6\ns_lshl_b32 %s, %s, 7\ns_add_u32 %s, %s, %d' % (s(sDX), s(sCH), s(sDX), s(sDX), s(sDX), s(sDX), FK))
        I('s_add_u32 %s, %s, 5\ns_lshr_b32 %s, %s, 6\ns_lshl_b32 %s, %s, 7\ns_add_u32 %s, %s, %d' % (
            s(sEARLY), s(sCH), s(sEARLY), s(sEARLY), s(sEARLY), s(sEARLY), s(sEARLY), s(sEARLY), FK))
        I('s_lshr_b32 %s, %s, 1\ns_lshl_b32 %s, %s, 7\ns_add_u32 %s, %s, %d' % (s(sDW), s(sCT), s(sDW), s(sDW), s(sDW), s(sDW), FW))
        I('s_lshr_b32 %s, %s, 1\ns_add_u32 %s, %s, %s' % (s(sT0), s(sW), s(sCH), s(sCH), s(sT0)))
        I('s_mul_i32 %s, %s, %d\ns_add_u32 %s, %s, %d' % (s(sHB), s(sW), HBSZ + UBSZ, s(sUB), s(sHB), HBSZ))
        I('global_load_dword v240, %s, %s sc1' % (v(vZ), s(pDBG, 2)), 'z')
        self.kv_weights(228)
        e.wait_tag('kv', and_lg=0)
        I('s_barrier')
        self.stamp(2)
        for t in range(3):
            self.kv_reads(t * KVSZ)
            task(t)
            if t:
                self.kv_weights(228 + 2 * t)
            self.kv_compute()
            I('s_lshl_b32 %s, %s, 7\ns_add_u32 %s, %s, %d' % (s(sM + t), s(sKCG), s(sM + t), s(sM + t), FK) if t == 2 else
              's_lshl_b32 %s, %s, 7\ns_add_u32 %s, %s, %d' % (s(sW2Q + t), s(sKCG), s(sW2Q + t), s(sW2Q + t), FK))
        self.stamp(3)
        for r in range(3):
            I('s_add_u32 %s, %s, %d\ns_add_u32 %s, %s, %d' % (s(sI), s(sHB), r * STEP, s(sJ), s(sCH), 2 * r))
            self.h_issue(sI, sJ, 244 + r)
            I('s_add_u32 %s, %s, %d' % (s(sJ), s(sUB), r * STEP))
            self.conv_pads(sI, sJ)
        self.late_setup()
        self.poll_check(240, None, 1, dbg=True)
        e.wait_tag('prep')
        I('s_barrier')
        I('s_lshl_b32 %s, %s, 7' % (s(sA), s(sR)))
        self.signal_wave0([s(sA), s(sW2Q), s(sW2Q + 1), s(sM + 2)], 6)
        self.stamp(4)
        e.wait_tag('h')
        self.poll_issue(241, s(sDX))
        self.poll_issue(242, s(sEARLY))
        self.poll_issue(243, s(sDW))
        for r in range(3):
            I('s_add_u32 %s, %s, %d' % (s(sI), s(sHB), r * STEP))
            self.conv_dfix_a(sI)
            self.conv_dfix_b(244 + r)
        self.poll_check(241, s(sDX), 32)
        self.poll_check(242, s(sEARLY), 32)
        for r in range(3):
            I('s_add_u32 %s, %s, %d' % (s(sJ), s(sCH), 2 * r))
            self.u_issue(sJ, lambda x, n: v(64 + 16 * r + x, n))
        self.poll_check(243, s(sDW), 56)
        for r in range(3):
            I('s_add_u32 %s, %s, %d' % (s(sJ), s(sUB), r * STEP))
            self.conv_ustage(sJ, lambda x, n: v(64 + 16 * r + x, n))
        I('s_mov_b32 %s, 0\ns_mov_b32 %s, 0' % (s(sISG), s(sROUND)))
        self.stamp(8)
        self.stamp_sync()
        e.label('L_plain')
        self.conv_pair(True)
        I('s_add_u32 %s, %s, 1\ns_add_u32 %s, %s, 2' % (s(sROUND), s(sROUND), s(sCH), s(sCH)))
        I('v_add_u32 v2, %d, v2\nv_add_u32 v3, %d, v3\nv_add_u32 v4, %d, v4' % (STEP, STEP, STEP))
        I('s_cmp_lt_u32 %s, 2\ns_cbranch_scc1 L_plain' % s(sROUND))

    OWN, XN, RAW = 232, 212, 188

    def conv(self):
        self.e.label('L_conv')
        self.conv_pair(False)

    def conv_pair(self, plain):
        I, e = self.I, self.e
        e.forget()
        if not plain:
            e.vm = [dict(tag=x['tag'], wr=set()) for x in self.h_tail]
            I('s_lshl_b32 %s, %s, 7\ns_add_u32 %s, %s, %d' % (s(sD), s(sR2), s(sD), s(sD), FH))
        I('s_lshl_b32 %s, %s, 7\ns_add_u32 %s, %s, %d' % (s(sYOFF), s(sCH), s(sYOFF), s(sYOFF), YP))
        lb, le = self.lab('LconvB'), self.lab('LconvE')
        I('s_bitcmp1_b32 %s, 0\ns_cbranch_scc1 %s' % (s(sW), lb))
        vm0, hist0 = list(e.vm), list(e.hist)
        keep = {('v', i) for i in (0, 1, 2, 3, 4, 5, 8, 9, 10, 11, 12, 13, 252, 255)} | {('a', i) for i in range(256)}
        e.written = set(keep)
        self.conv_body(list(range(8)) + list(range(23, 32)), (23,), plain)
        I('s_branch ' + le)
        e.label(lb)
        e.vm, e.lg, e.hist = list(vm0), [], list(hist0)
        e.written = set(keep)
        self.conv_body(list(range(7, 24)), (7,), plain)
        e.label(le)

    def conv_body(self, tiles, carry, plain):
        I, e = self.I, self.e
        ACC, HF, UF, NU = 16, 84, 148, 4
        T1, T2, YV, YPK = 164, 166, 168, 172
        NE = self.o.get('ne', 9)
        acc = {t: ACC + 4 * i for i, t in enumerate(tiles)}
        mmax = max(tiles)
        nsig = mmax // 2 + 1

        def uread(m):
            return 'ds_read2_b64 %s, %s offset0:%d offset1:%d' % (v(UF + 4 * (m % NU), 4), v(2 + m // 16), 16 * (m % 16) + 4, 16 * (m % 16))

        def hread(sg):
            return ['ds_read_b64_tr_b16 %s, v4 offset:%d' % (v(HF + 4 * sg + 2 * hf, 2), 256 * sg + 32 * hf) for hf in range(2)]

        steps = [[t for t in tiles if t >= m and (t - m) % 2 == 0] for m in range(mmax + 1)]
        order = []
        for m in range(mmax + 1):
            for t in steps[m]:
                if (t - m) // 2 not in order:
                    order.append((t - m) // 2)
        I(uread(0))
        for sg in order[:3]:
            self.run(hread(sg))
        I(uread(1))
        pend_h = [(sg, x) for sg in order[3:] for x in hread(sg)]

        def post(t):
            z = acc[t]
            cur, prv = t & 1, (t & 1) ^ 1
            out = []
            dpp = ' row_mask:0xf bank_mask:0xf'
            has_prev = (t - 1) in acc and t not in carry
            chain = [(T1 + cur, z + 3, (acc[t - 1] + 3) if has_prev else None, z + 2),
                     (T2 + cur, T1 + cur, T1 + prv, z + 1)]
            if t not in carry:
                chain.append((YV + (t & 1), T2 + cur, T2 + prv, z))
            ror = ['v_add_f32_dpp %s, %s, %s wave_ror:1%s' % (v(d), v(psrc), v(add), dpp) for d, src, psrc, add in chain] if has_prev else []
            shr = ['v_add_f32_dpp %s, %s, %s wave_shr:1%s%s' % (v(d), v(src), v(add), dpp, '' if has_prev else ' bound_ctrl:0')
                   for d, src, psrc, add in chain]
            out = [ror[0], shr[0], ror[1], ror[2], shr[1], shr[2]] if has_prev else shr
            if t not in carry and t & 1:
                out.append('v_cvt_pk_bf16_f32 %s, %s, %s' % (v(YPK + 4 * ((t >> 3) & 1) + ((t & 7) >> 1)), v(YV), v(YV + 1)))
                if t & 7 == 7:
                    g = t >> 3
                    out.append('s_add_u32 %s, %s, %d' % (s(sT0), s(sYOFF), g * 8 * 640 * 128))
                    out.append(('buffer_store_dwordx4 %s, v5, %s, %s offen sc1' % (v(YPK + 4 * (g & 1), 4), s(rWS, 4), s(sT0)), 'y'))
            return out

        def h_arrive():
            lab = self.lab('Lh')
            lg = list(e.lg)
            I('s_cmp_eq_u32 %s, 0\ns_cbranch_scc1 %s' % (s(sISG), lab))
            e.wait_tag('H')
            self.arrive(LCNT, 6)
            e.label(lab)
            e.lg = lg

        def h_done():
            lab = self.lab('Lh')
            I('s_cmp_eq_u32 %s, 0\ns_cbranch_scc1 %s' % (s(sISG), lab))
            I('s_lshl_b32 %s, %s, 7\ns_add_u32 %s, %s, %d' % (s(sT0), s(sR), s(sT0), s(sT0), FH))
            e.raw('    s_waitcnt lgkmcnt(%d)' % min(15, self.ds_since))
            self.arrive_done(s(sT0), 6)
            e.label(lab)

        RAW, XN, OWN = self.RAW, self.XN, self.OWN
        raw = ['buffer_load_dwordx2 %s, v12, %s, %s offen offset:%d' % (v(RAW + 2 * n, 2), s(rQ, 4), s(sT1), 32 * n) for n in range(5)]
        raw += ['global_load_dwordx2 %s, v13, %s offset:%d' % (v(RAW + 10 + 2 * n, 2), s(pB2, 2), 32 * n) for n in range(5)]
        unpack = []
        for i in range(10):
            x, b, d, o = RAW + i, RAW + 10 + i, XN + 2 * i, OWN + 2 * i
            unpack += ['v_lshlrev_b32 %s, 16, %s' % (v(d), v(x)), 'v_and_b32 %s, 0xffff0000, %s' % (v(d + 1), v(x)),
                       'v_lshlrev_b32 %s, 16, %s' % (v(o), v(b)), 'v_and_b32 %s, 0xffff0000, %s' % (v(o + 1), v(b)),
                       'v_add_f32 %s, %s, %s' % (v(o), v(o), v(d)), 'v_add_f32 %s, %s, %s' % (v(o + 1), v(o + 1), v(d + 1))]

        total = sum(len(x) for x in steps)
        jobs = []

        def spread(items, p0, p1):
            n = sum(1 for x in items if not x[0].startswith('s_'))
            k = 0
            for x in items:
                jobs.append((p0 + (k * (p1 - p0)) / max(n, 1), x))
                k += not x[0].startswith('s_')
        if plain:
            spread([x for g in range(NE) for x in self.w2_loads(g)], 16, total - 4)
        else:
            hs = self.o.get('hs_at', 44)
            jobs.append((hs, h_arrive))
            jobs.append((hs + 8, h_done))
            r0 = self.o.get('raw_at', 6)
            spread([(x, None) for x in raw], r0, r0 + 30)
            u0 = self.o.get('unp_at', 84)
            spread([(x, None) for x in unpack], u0, total - 22)
            spread([x for g in range(NE, 16) for x in self.w2_loads(g)], r0 + 30, total - 22)
            spread([x for g in (16, 17) for x in self.w2_loads(g)], total - 21, total - 9)
            jobs.append((total - 8, lambda: self.poll_issue(vP, s(sD), 'poll')))
        jobs.sort(key=lambda j: j[0])

        done = 0
        pending_post = []
        self.ds_since = 0
        counting = False
        for m, ts in enumerate(steps):
            n = len(ts)
            gaps = [[] for _ in range(n)]
            if m + 2 <= mmax:
                gaps[0].append(uread(m + 2))
            for i, x in enumerate(pending_post):
                gaps[min(n - 1, (i * n) // len(pending_post))].append(x)
            pending_post = []
            for i, t in enumerate(ts):
                sg = (t - m) // 2
                while any(q == sg for q, _ in pend_h):
                    I(pend_h.pop(0)[1])
                I('v_mfma_f32_16x16x32_bf16 %s, %s, %s, %s' % (
                    v(acc[t], 4), v(UF + 4 * (m % NU), 4), v(HF + 4 * sg, 4), '0' if m < 2 else v(acc[t], 4)))
                done += 1
                seq = [pend_h.pop(0)[1] for _ in range(min(2, len(pend_h)))] + gaps[i]
                while jobs and jobs[0][0] <= done:
                    seq.append(jobs.pop(0)[1])
                for x in seq:
                    if x is h_arrive:
                        assert not pend_h
                        counting = True
                    elif counting and isinstance(x, str) and x.startswith('ds_'):
                        self.ds_since += 1
                    self.run([x])
            if m % 4 == 1:
                self.stamp((50 if plain else 30) + m // 4)
            if m in acc:
                pending_post = post(m)
        assert not jobs and not pend_h
        self.run(pending_post)
        self.stamp_sync()

    def gemm2(self):
        I, e = self.I, self.e
        L = v(vL)
        ACC, HR, NR, WX, XN, OWN = 16, 76, 7, self.WX, self.XN, self.OWN
        PRE = self.o.get('pre', 3)
        e.forget()
        e.vm = [dict(tag='poll', wr={('v', vP)}), dict(tag='y', wr=set())]
        self.stamp(9)
        self.poll_check(vP, s(sD), 14)
        self.stamp(10)

        def hload(st):
            out = []
            for t in range(4):
                out.append('buffer_load_dwordx4 %s, %s, %s, %s offen sc1' % (
                    v(HR + 16 * (st % NR) + 4 * t, 4), v(8 + t), s(rWS, 4), s(sH0 if st == 0 else sHOFF)))
            out.append('s_add_u32 %s, %s, 4096' % (s(sHOFF), s(sHOFF)))
            return out
        for st in range(PRE):
            self.run(hload(st))
        I('s_lshl_b32 %s, %s, 1\ns_add_u32 %s, %s, %s\ns_lshl_b32 %s, %s, 2\ns_add_u32 %s, %s, %s' % (
            s(sB), s(sR2), s(sB), s(sB), s(sNU), s(sA), s(sB), s(sA), s(sA), s(sW)))
        I('s_lshl_b32 %s, %s, 7\ns_add_u32 %s, %s, %d\nv_and_b32 v14, 15, %s\nv_lshlrev_b32 v14, 3, v14' % (s(sA), s(sA), s(sA), s(sA), STC, L))
        I('buffer_load_dwordx2 v[4:5], v14, %s, %s offen sc1' % (s(rWS, 4), s(sA)))
        I('s_lshl_b32 %s, %s, 3\ns_add_u32 %s, %s, %s\ns_mul_i32 %s, %s, 10240\ns_add_u32 %s, %s, %d' % (
            s(sB), s(sB), s(sB), s(sB), s(sCT), s(sB), s(sB), s(sYOFF), s(sB), YP))
        I('s_lshl_b32 %s, %s, 7\ns_add_u32 %s, %s, %d' % (s(sB), s(sX), s(sB), s(sB), FY))
        I('s_lshl_b32 %s, %s, 7\ns_add_u32 %s, %s, %d' % (s(sD), s(sCT), s(sD), s(sD), FY))
        e.wait_tag('y', and_lg=0)
        I('s_barrier')
        self.signal_wave0([s(sB)], 6)

        def wfrag(st, n):
            fi = 5 * st + n
            return a(4 * fi, 4) if fi < 64 else v(WX + 4 * (fi - 64), 4)

        def tile(t, n):
            return OWN + 4 * n if t == 3 else ACC + 4 * (5 * t + n)

        def mfma(st, t, n):
            c = v(tile(t, n), 4)
            return 'v_mfma_f32_16x16x32_bf16 %s, %s, %s, %s' % (c, wfrag(st, n), v(HR + 16 * (st % NR) + 4 * t, 4), '0' if st == 0 and t < 3 else c)

        TAIL = 3
        pY, cY = self.o.get('pfy', 8), 14 - TAIL
        for st in range(14 - TAIL):
            mf = [mfma(st, t, n) for t in range(4) for n in range(5)]
            mem = hload(st + PRE) if st + PRE < 14 else []
            fill = []
            if st == 3:
                fill += ['v_mul_f32 v4, v4, v5'] + ['v_fma_f32 %s, %s, v5, -v4' % (v(XN + i), v(XN + i)) for i in range(20)]
            if st == 4:
                fill += ['v_lshlrev_b32 v6, 4, v0', 's_cmp_ge_u32 %s, 2\ns_cselect_b32 %s, %d, 8192' % (s(sW), s(sA), OOB),
                         'v_add_u32 v7, %s, v6' % s(sA),
                         'v_lshrrev_b32 v2, 3, v0', 'v_mul_u32_u24 v2, 144, v2', 'v_and_b32 v3, 7, v0', 'v_lshl_add_u32 v2, v3, 4, v2',
                         'v_lshrrev_b32 v13, 2, %s' % L, 'v_mul_u32_u24 v13, 144, v13', 'v_and_b32 v3, 3, %s' % L,
                         'v_lshl_add_u32 v13, v3, 3, v13', 's_lshl_b32 %s, %s, 5' % (s(sA), s(sW)), 'v_add_u32 v13, %s, v13' % s(sA)]
            if st == 5:
                for t, d in enumerate((3, 4, 5)):
                    fill += ['s_add_u32 %s, %s, %d' % (s(sA), s(sW), t + 1), 's_and_b32 %s, %s, 3' % (s(sA), s(sA)),
                             's_mul_i32 %s, %s, 15360' % (s(sA), s(sA)), 's_add_u32 %s, %s, %d' % (s(sA), s(sA), RED + 5120 * t),
                             'v_add_u32 %s, %s, %s' % (v(d), s(sA), v(vL16))]
                fill += ['s_mul_i32 %s, %s, 15360' % (s(sA), s(sW)), 's_add_u32 %s, %s, %d' % (s(sA), s(sA), RED),
                         'v_add_u32 v14, %s, %s' % (s(sA), v(vL16))]
            if st == pY:
                fill.append(lambda: self.poll_issue(vP, s(sD)))
            self.run(self.weave(mf, (mem, 1, 5), (fill, 0, 19.0 / max(len(fill), 1))))
            if st % 2 == 0:
                self.stamp(40 + st // 2)
        YR = HR + 16 * ((14 - TAIL - 1) % NR)
        self.poll_check(vP, s(sD), 32)
        self.stamp(11)
        I('s_add_u32 %s, %s, 4096' % (s(sA), s(sYOFF)))
        pend = ['buffer_load_dwordx4 %s, v6, %s, %s offen sc1' % (v(YR, 4), s(rWS, 4), s(sYOFF)),
                'buffer_load_dwordx4 %s, v6, %s, %s offen sc1' % (v(YR + 4, 4), s(rWS, 4), s(sA)),
                'buffer_load_dwordx4 %s, v7, %s, %s offen sc1' % (v(YR + 8, 4), s(rWS, 4), s(sYOFF))]
        for t in range(4):
            mf = [mfma(st, t, n) for n in range(5) for st in range(14 - TAIL, 14)]
            self.run(self.weave(mf, (pend, 0 if t == 0 else 2, 2 if t == 0 else 3)))
            pend = ['ds_write_b128 %s, %s offset:%d' % (v(3 + t), v(tile(t, n), 4), 1024 * n) for n in range(5)] if t < 3 else []
        for i in range(3):
            I('ds_write_b128 v2, %s offset:%d' % (v(YR + 4 * i, 4), YB + 32 * 144 * i))
        e.wait_lg(0)
        I('s_barrier')
        self.stamp(12)
        P, YT, OUT = HR, 16, 28
        for n in range(5):
            I('ds_read_b64_tr_b16 %s, v13 offset:%d' % (v(YT + 2 * n, 2), YB + 16 * 144 * n))
            for t in range(3):
                I('ds_read_b128 %s, v14 offset:%d' % (v(P + 12 * n + 4 * t, 4), 5120 * t + 1024 * n))
        for n in range(5):
            o = OWN + 4 * n
            for h in range(2):
                y = YT + 2 * n + h
                I('v_lshlrev_b32 %s, 16, %s\nv_and_b32 %s, 0xffff0000, %s' % (v(40 + 2 * h), v(y), v(41 + 2 * h), v(y)))
            for h in range(2):
                I('v_pk_fma_f32 %s, %s, %s, %s' % (v(o + 2 * h, 2), v(XN + 4 * n + 2 * h, 2), v(40 + 2 * h, 2), v(o + 2 * h, 2)))
            for h in range(2):
                p = P + 12 * n + 2 * h
                I('v_pk_add_f32 %s, %s, %s' % (v(p, 2), v(p, 2), v(p + 4, 2)))
                I('v_pk_add_f32 %s, %s, %s' % (v(o + 2 * h, 2), v(o + 2 * h, 2), v(p + 8, 2)))
            for h in range(2):
                I('v_pk_add_f32 %s, %s, %s' % (v(o + 2 * h, 2), v(o + 2 * h, 2), v(P + 12 * n + 2 * h, 2)))
            for h in range(2):
                I('v_cvt_pk_bf16_f32 %s, %s, %s' % (v(OUT + 2 * n + h), v(o + 2 * h), v(o + 2 * h + 1)))
            I('buffer_store_dwordx2 %s, v12, %s, %s offen offset:%d' % (v(OUT + 2 * n, 2), s(rOUT, 4), s(sT1), 32 * n))
        self.stamp(13)

    def experiments_head(self):
        I = self.I
        for i in range(self.o.get('x_code', 0) * 128):
            I('v_add3_u32 v%d, v0, v0, v0' % (100 + i % 4))
        n = self.o.get('x_lat', 0)
        if n:
            I('s_mul_i32 %s, s2, 10240\nv_mov_b32 v100, %s' % (s(sT0), s(sT0)))
            for i in range(n):
                I('global_load_dword v101, v100, s[20:21]\nv_and_b32 v101, 0, v101\nv_add3_u32 v100, v100, v101, 64\nv_add_u32 v100, 960, v100')

    def experiments_tail(self):
        I = self.I
        kind, n = self.o.get('x_tail', 0), self.o.get('x_n', 8)
        if kind:
            self.e.wait_all()
            I('s_load_dwordx2 s[20:21], s[0:1], 48')
            I('s_mov_b32 %s, 0x10000000' % s(rWS + 2))
            self.e.wait_lg(0)
            if kind == 1:
                I('s_mul_i32 %s, s2, 10240\nv_mov_b32 v100, %s' % (s(sT0), s(sT0)))
                for i in range(n):
                    I('global_load_dword v101, v100, s[20:21]\nv_and_b32 v101, 0, v101\nv_add3_u32 v100, v100, v101, 64\nv_add_u32 v100, 576, v100')
            else:
                base = {2: 0x2000000, 3: 0x2000000, 4: 0x2000000, 5: 0xF000000, 6: 0x2000000, 7: 0xF000000}[kind]
                step = {2: 0x400000, 3: 0x40000, 4: 0x40000, 5: 0x40000, 6: 0x40000, 7: 0x40000}[kind]
                I('s_lshl_b32 %s, s2, 10\ns_add_u32 %s, %s, %d\nv_lshl_add_u32 v100, v0, 2, %s' % (s(sT0), s(sT0), s(sT0), base, s(sT0)))
                for i in range(n):
                    if kind in (2, 3, 7):
                        I('buffer_load_dword v101, v100, %s, 0 offen' % s(rWS, 4))
                    elif kind in (4, 5):
                        I('buffer_store_dword v0, v100, %s, 0 offen sc1' % s(rWS, 4))
                    else:
                        I('buffer_store_dword v0, v100, %s, 0 offen' % s(rWS, 4))
                    self.e.wait_vm(0)
                    I('v_add_u32 v100, %d, v100' % step)
            self.stamp(14)
        n = self.o.get('x_alu', 0)
        if n:
            self.I('s_mov_b32 %s, 0' % s(sT0))
            self.e.label('L_xalu')
            for i in range(16):
                self.I('v_add_u32 v%d, v0, v0' % (100 + i % 4))
            self.I('s_add_u32 %s, %s, 1\ns_cmp_lt_u32 %s, %d\ns_cbranch_scc1 L_xalu' % (s(sT0), s(sT0), s(sT0), n))
            self.stamp(14)

    def build(self):
        e = self.e
        k = NAME + '_kernel'
        if self.o.get('x_list'):
            if self.o['x_list'] == 2:
                e.raw('; @launch kernel=nop_kernel grid=(256,1,1) block=(256,1,1) lds=0')
            e.raw('; @launch kernel=%s grid=(256,1,1) block=(256,1,1) lds=%d' % (k, LDS_BYTES))
            if self.o['x_list'] == 1:
                e.raw('; @launch kernel=nop_kernel grid=(256,1,1) block=(256,1,1) lds=0')
        else:
            e.raw('; @launch grid=(256,1,1) block=(256,1,1) lds=%d' % LDS_BYTES)
        e.raw('.amdgcn_target "amdgcn-amd-amdhsa--gfx950"')
        e.raw('.text\n.globl %s\n.p2align 8\n.type %s,@function\n%s:' % (k, k, k))
        self.entry()
        self.experiments_head()
        if self.o['stamps']:
            e.raw('    v_mov_b32 v254, 0')
        self.stamp(60, cyc=True)
        self.stamp(0)
        self.stamp_sync()
        self.I('s_cmp_eq_u32 %s, 7\ns_cbranch_scc1 L_roleS' % s(sCC))
        hist = list(e.hist)
        self.role_g()
        e.label('L_roleS')
        e.written = {('v', i) for i in (0, 1, 2, 4, 5, 252, 255)}
        e.forget()
        e.hist = hist
        self.role_s()
        self.conv()
        self.gemm2()
        self.experiments_tail()
        self.stamp_flush()
        e.label('L_end')
        e.raw('    s_endpgm')
        if self.o.get('x_list'):
            e.raw('.globl nop_kernel\n.p2align 8\n.type nop_kernel,@function\nnop_kernel:\n    s_endpgm')
        e.raw('''.section .rodata,"a"
.p2align 6
.amdhsa_kernel %s
  .amdhsa_next_free_vgpr 512
  .amdhsa_next_free_sgpr 102
  .amdhsa_accum_offset 256
  .amdhsa_group_segment_fixed_size 0
  .amdhsa_kernarg_size 112
  .amdhsa_user_sgpr_count 2
  .amdhsa_user_sgpr_kernarg_segment_ptr 1
  .amdhsa_system_sgpr_workgroup_id_x 1
.end_amdhsa_kernel''' % k)
        if self.o.get('x_list'):
            e.raw('''.p2align 6
.amdhsa_kernel nop_kernel
  .amdhsa_next_free_vgpr 8
  .amdhsa_next_free_sgpr 16
  .amdhsa_accum_offset 8
  .amdhsa_group_segment_fixed_size 0
  .amdhsa_kernarg_size 112
  .amdhsa_user_sgpr_count 2
  .amdhsa_user_sgpr_kernarg_segment_ptr 1
  .amdhsa_system_sgpr_workgroup_id_x 1
.end_amdhsa_kernel''')
        return e.text()


if __name__ == '__main__':
    out = sys.argv[1]
    opt = dict(OPT)
    for kv in sys.argv[2:]:
        key, val = kv.split('=')
        opt[key] = int(val)
    g = Gen(opt)
    open(out, 'w').write(g.build())
    print('written', out, 'nop states', g.e.nops)
    for w in g.e.warn:
        print('WARN', w)
```

```python
import re
import struct
import sys
from emit import Emit, v, a, s, merge

NAME = 'parallel_sum__ssm_conv_h3__dense_activation_gelu__prompt'
OPT = dict(stamps=0, stop=None)

FS, FH, FK, FW, FY = 0x0, 0x800, 0x1000, 0x1800, 0x1C00
STA, STB, STC = 0x8000, 0x10000, 0x18000
STAMPS = 0x40000
UT = 0x100000
YP = 0x400000
W2P = 0x700000
HP = 0xA00000
WS_BYTES = 0x1100000
OOB = 0x40000000
SPIN_MAX = 200000

KV = 131072
KVSZ = 17408
MISC = 148480
CSX = MISC
LCNT = MISC + 512
W2S = 149504
LDS_BYTES = W2S + 12288
HBSZ, UBSZ = 4352, 4352
YB = 0
RED = 16384

sX, sSLOT, sW = 3, 4, 5
sT0, sT1 = 6, 7
pSHIFT, pSSMD, pB1, pB2, pDBG, pWS = 14, 18, 24, 28, 32, 34
rQ, rK, rV, rW1, rW2, rH, rWS, rOUT = 36, 40, 44, 48, 52, 56, 60, 64
sG4, sFH, sMU, sCC, sR, sQ, sTB, sNT0 = 68, 69, 70, 71, 72, 73, 74, 75
sKTB, sKCG = 76, 77
sA, sB, sC, sD = 78, 79, 80, 81
sSPIN, sVAL, sEARLY, sISG = 82, 83, 84, 85
sCH, sHB, sUB, sROUND = 86, 87, 88, 89
sI, sJ = 90, 91
sM = 92
sW2OFF, sST = 100, 101
sDX, sDW = 8, 9
sR2, sNU, sCT = 10, 11, 12
sHOFF = 20
sYOFF = 13
sW2S, sW2Q, sKW = 23, 26, 27
sLO = 16
sH0 = 17

vL = 1
vL16 = 252
vP = 253
vZ = 255


def f2u(x):
    return struct.unpack('<I', struct.pack('<f', x))[0]


def hexf(x):
    return '0x%08x' % f2u(x)


class Gen:
    def __init__(self, opt):
        self.o = opt
        self.e = Emit()
        self.nlab = 0
        self.I = self.e.I
        self.prev = None


    def capture(self, fn, *args):
        out = []
        real = self.I
        self.I = lambda text, tag=None: out.extend((ln.strip(), tag) for ln in text.strip().split('\n') if ln.strip())
        try:
            fn(*args)
        finally:
            self.I = real
        joined = []
        for ln, tag in out:
            if joined and re.match(r's_(cselect|addc|cbranch)', ln):
                joined[-1] = (joined[-1][0] + '\n' + ln, None)
            else:
                joined.append((ln, tag))
        return joined

    def lab(self, p='L'):
        self.nlab += 1
        return '%s_%d' % (p, self.nlab)

    def run(self, seq):
        for it in seq:
            if callable(it):
                it()
            elif isinstance(it, tuple):
                self.I(it[0], it[1])
            else:
                self.I(it)

    def stamp(self, idx, cyc=False):
        if 'x_pa' in self.o and not cyc:
            if idx == self.o['x_pa']:
                self.e.raw('    s_memrealtime s[0:1]')
            if idx == self.o['x_pb']:
                self.e.raw('    s_memrealtime s[30:31]')
        if not self.o['stamps']:
            return
        r = self.e.raw
        if self.prev is not None:
            r('    v_writelane_b32 v254, s0, %d' % self.prev)
        r('    %s s[0:1]' % ('s_memtime' if cyc else 's_memrealtime'))
        self.prev = idx
        if cyc or self.o['stamps'] == 2:
            self.stamp_sync()

    def stamp_sync(self):
        if self.o['stamps'] and self.prev is not None:
            self.e.raw('    s_waitcnt lgkmcnt(0)\n    v_writelane_b32 v254, s0, %d' % self.prev)
            self.prev = None

    def stamp_flush(self):
        if not self.o['stamps']:
            return
        self.stamp_sync()
        self.stamp(61, cyc=True)
        r = self.e.raw
        r('    s_lshl_b32 s0, s2, 10\n    s_add_u32 s0, s0, %d\n    v_lshlrev_b32 v253, 2, v0' % STAMPS)
        r('    buffer_store_dword v254, v253, %s, s0 offen' % s(rWS, 4))

    def srd(self, r, p, nbytes):
        self.I('s_mov_b32 %s, %s\ns_mov_b32 %s, %s\ns_mov_b32 %s, %d\ns_mov_b32 %s, 0x20000' % (
            s(r), s(p), s(r + 1), s(p + 1), s(r + 2), nbytes, s(r + 3)))

    def poll_issue(self, vd, soff, tag=None):
        self.I('buffer_load_dword %s, %s, %s, %s offen sc1' % (v(vd), v(vZ), s(rWS, 4), soff), tag)

    def poll_check(self, vd, soff, target, dbg=False):
        ok, again = self.lab('Lok'), self.lab('Lspin')
        self.I('v_readfirstlane_b32 %s, %s' % (s(sVAL), v(vd)))
        self.I('s_mov_b32 %s, 0' % s(sSPIN))
        self.I('s_cmp_ge_u32 %s, %s' % (s(sVAL), target))
        self.I('s_cbranch_scc1 ' + ok)
        self.e.label(again)
        if dbg:
            self.e.raw('    global_load_dword %s, %s, %s sc1' % (v(vd), v(vZ), s(pDBG, 2)))
        else:
            self.e.raw('    buffer_load_dword %s, %s, %s, %s offen sc1' % (v(vd), v(vZ), s(rWS, 4), soff))
        self.e.raw('    s_waitcnt vmcnt(0)')
        self.e.raw('    v_readfirstlane_b32 %s, %s' % (s(sVAL), v(vd)))
        self.e.raw('    s_add_u32 %s, %s, 1' % (s(sSPIN), s(sSPIN)))
        self.e.raw('    s_cmp_ge_u32 %s, %d' % (s(sSPIN), SPIN_MAX))
        self.e.raw('    s_cbranch_scc1 ' + ok)
        self.e.raw('    s_cmp_lt_u32 %s, %s' % (s(sVAL), target))
        self.e.raw('    s_cbranch_scc1 ' + again)
        self.e.label(ok)

    def signal(self, soffs, vt):
        self.I('v_mov_b32 %s, 1' % v(vt))
        self.I('s_mov_b64 exec, 1')
        for so in soffs:
            self.I('buffer_atomic_add %s, %s, %s, %s offen sc1' % (v(vt), v(vZ), s(rWS, 4), so))
        self.I('s_mov_b64 exec, -1')

    def signal_wave0(self, soffs, vt):
        lab = self.lab('Lsig')
        starts = len(self.e.vm)
        self.I('s_cmp_lg_u32 %s, 0' % s(sW))
        self.I('s_cbranch_scc1 ' + lab)
        self.signal(soffs, vt)
        del self.e.vm[starts:]
        self.e.label(lab)

    def arrive(self, cnt_off, vt):
        self.I('v_mov_b32 %s, 1\nv_mov_b32 %s, %d' % (v(vt), v(vt + 1), cnt_off))
        self.I('s_mov_b64 exec, 1')
        self.I('ds_add_rtn_u32 %s, %s, %s' % (v(vt + 1), v(vt + 1), v(vt)))
        self.I('s_mov_b64 exec, -1')

    def arrive_done(self, soff, vt):
        lab = self.lab('Lsig')
        self.I('v_readfirstlane_b32 %s, %s' % (s(sVAL), v(vt + 1)))
        self.I('s_cmp_lg_u32 %s, 3' % s(sVAL))
        self.I('s_cbranch_scc1 ' + lab)
        self.I('s_mov_b64 exec, 1')
        self.I('buffer_atomic_add %s, %s, %s, %s offen sc1' % (v(vt), v(vZ), s(rWS, 4), soff))
        self.I('s_mov_b64 exec, -1')
        self.e.vm.pop()
        self.e.label(lab)

    @staticmethod
    def weave(main, *lists):
        n = len(main)
        gaps = [[] for _ in range(n)]
        for items, start, step in lists:
            pos = float(start)
            held = []
            last = 0
            for it in items:
                txt = it if isinstance(it, str) else (it[0] if isinstance(it, tuple) else '')
                if step >= 2 and txt.startswith('s_'):
                    held.append(it)
                    continue
                g = min(int(pos), n - 1)
                gaps[max(g - 1, last)] += held
                held = []
                gaps[g].append(it)
                last = g
                pos += step
            gaps[min(int(pos), n - 1)] += held
        out = []
        for m, g in zip(main, gaps):
            out.append(m)
            out += g
        return out

    def entry(self):
        I = self.I
        I('s_cmp_ge_u32 s2, 256\ns_cbranch_scc1 L_end')
        I('s_load_dwordx16 s[8:23], s[0:1], 0\ns_load_dwordx8 s[24:31], s[0:1], 64\ns_load_dwordx4 s[32:35], s[0:1], 96')
        I('v_lshrrev_b32 v2, 6, v0\nv_and_b32 %s, 63, v0\nv_mov_b32 %s, 0' % (v(vL), v(vZ)))
        I('v_readfirstlane_b32 %s, v2' % s(sW))
        if self.o.get('x_map'):
            I('s_lshr_b32 %s, s2, 5\ns_and_b32 %s, s2, 31' % (s(sX), s(sSLOT)))
        else:
            I('s_and_b32 %s, s2, 7\ns_lshr_b32 %s, s2, 3' % (s(sX), s(sSLOT)))
        I('s_lshr_b32 %s, %s, 1\ns_and_b32 %s, %s, 1' % (s(sG4), s(sX), s(sFH), s(sX)))
        I('s_lshr_b32 %s, %s, 3\ns_and_b32 %s, %s, 7' % (s(sMU), s(sSLOT), s(sCC), s(sSLOT)))
        I('s_lshl_b32 %s, %s, 2\ns_add_u32 %s, %s, %s' % (s(sR), s(sG4), s(sR), s(sR), s(sMU)))
        I('s_lshl_b32 %s, %s, 3\ns_add_u32 %s, %s, %s' % (s(sQ), s(sFH), s(sQ), s(sQ), s(sCC)))
        I('s_lshl_b32 %s, %s, 9\ns_lshl_b32 %s, %s, 4\ns_add_u32 %s, %s, %s' % (
            s(sTB), s(sG4), s(sT0), s(sMU), s(sTB), s(sTB), s(sT0)))
        I('v_lshrrev_b32 v2, 5, v0\nv_mul_u32_u24 v2, %d, v2\nv_and_b32 v3, 31, v0\nv_lshl_add_u32 v2, v3, 3, v2' % (64 * 1280))
        I('s_add_u32 %s, %s, %s\ns_mul_i32 %s, %s, 1280' % (s(sA), s(sTB), s(sQ), s(sA), s(sA)))
        I('v_lshrrev_b32 v6, 3, %s\nv_lshrrev_b32 v7, 5, %s\nv_lshlrev_b32 v7, 1, v7\nv_and_b32 v8, 7, %s' % (v(vL), v(vL), v(vL)))
        I('v_xor_b32 v8, v8, v7\nv_mul_u32_u24 v6, 1280, v6\nv_lshl_add_u32 v4, v8, 4, v6\nv_xor_b32 v5, 64, v4')
        I('v_lshlrev_b32 %s, 4, %s' % (v(vL16), v(vL)))
        I('s_lshl_b32 %s, %s, 2\ns_add_u32 %s, %s, %s' % (s(sD), s(sX), s(sD), s(sD), s(sMU)))
        self.e.wait_lg(0)
        self.srd(rQ, 8, 2621440)
        self.srd(rWS, pWS, WS_BYTES)

    def code_prefetch(self):
        if not self.o.get('pf', 0):
            return
        I = self.I
        lab = self.lab('Lpc')
        I('s_getpc_b64 %s' % s(sA, 2))
        I(lab + ':')
        I('s_lshl_b32 %s, %s, 10\nv_and_b32 v6, 7, %s\nv_lshl_add_u32 v6, v6, 7, %s' % (s(sT0), s(sSLOT), v(vL), s(sT0)))
        I('v_min_u32 v6, L_end-%s, v6' % lab)
        I('v_mov_b32 v7, %s\nv_add_co_u32 v6, vcc, %s, v6\nv_addc_co_u32 v7, vcc, 0, v7, vcc' % (s(sA + 1), s(sA)))
        I('global_load_dword v9, v[6:7], off')

    def stats_issue(self):
        for i in range(5):
            self.I('buffer_load_dwordx2 %s, v2, %s, %s offen offset:%d' % (v(10 + 2 * i, 2), s(rQ, 4), s(sA), 256 * i))

    def stats_sums(self):
        I = self.I
        I('v_mov_b32 v240, 0\nv_mov_b32 v241, 0\nv_mov_b32 v242, 0x3f803f80')
        for i in range(10):
            I('v_dot2c_f32_bf16 v240, v%d, v242' % (10 + i))
        for i in range(10):
            I('v_dot2c_f32_bf16 v241, v%d, v%d' % (10 + i, 10 + i))

    def stats_finish(self):
        I = self.I
        C0 = -2.0 * 0.7978845608028654 * 1.4426950408889634
        I('s_lshl_b32 %s, %s, 4\ns_add_u32 %s, %s, %s' % (s(sA), s(sR), s(sA), s(sA), s(sQ)))
        for mod in ('quad_perm:[1,0,3,2]', 'quad_perm:[2,3,0,1]', 'row_half_mirror', 'row_mirror'):
            I('v_add_f32_dpp v240, v240, v240 %s row_mask:0xf bank_mask:0xf' % mod)
            I('v_add_f32_dpp v241, v241, v241 %s row_mask:0xf bank_mask:0xf' % mod)
        I('v_mov_b32 v242, v240\nv_mov_b32 v243, v241')
        I('s_lshl_b32 %s, %s, 7\ns_add_u32 %s, %s, %d' % (s(sB), s(sA), s(sB), s(sB), STA))
        I('v_permlane16_swap_b32 v240, v242\nv_permlane16_swap_b32 v241, v243')
        I('v_add_f32 v240, v240, v242\nv_add_f32 v241, v241, v243')
        I('v_mul_f32 v10, %s, v240\nv_mul_f32 v241, %s, v241' % (hexf(1 / 640), hexf(1 / 640)))
        I('v_fma_f32 v241, -v10, v10, v241\nv_cvt_pk_bf16_f32 v12, -v10, -v10\nv_max_f32 v241, 0, v241')
        I('v_add_f32 v241, %s, v241\nv_and_b32 v242, 0xffff0000, v12\nv_rsq_f32 v11, v241' % hexf(1e-5))
        I('v_sub_f32 v242, -v10, v242\nv_lshrrev_b32 v243, 5, v0\nv_mul_f32 v18, v241, v11')
        I('v_mul_f32 v16, %s, v11\nv_cvt_pk_bf16_f32 v13, v242, v18\nv_mul_f32 v17, v11, v11' % hexf(C0))
        I('v_and_b32 v242, 0xffff0000, v13\nv_mul_f32 v17, %s, v17\nv_sub_f32 v242, v18, v242' % hexf(0.044715))
        I('v_mul_f32 v17, v17, v16\nv_cvt_pk_bf16_f32 v14, v242, 0\nv_mov_b32 v15, 0\nv_mov_b32 v19, v11')
        I('v_lshlrev_b32 v242, 4, v243\nv_lshlrev_b32 v243, 3, v243')
        I('s_add_u32 %s, %s, %d\ns_lshl_b32 %s, %s, 6\ns_add_u32 %s, %s, %d' % (s(sC), s(sB), STB - STA, s(sA), s(sA), s(sA), s(sA), STC))
        I('s_mov_b32 exec_lo, 1\ns_mov_b32 exec_hi, 1')
        I('buffer_store_dwordx4 v[12:15], v242, %s, %s offen sc1' % (s(rWS, 4), s(sB)), 'stat')
        I('buffer_store_dwordx4 v[16:19], v242, %s, %s offen sc1' % (s(rWS, 4), s(sC)), 'stat')
        I('buffer_store_dwordx2 v[10:11], v243, %s, %s offen sc1' % (s(rWS, 4), s(sA)), 'stat')
        I('s_mov_b64 exec, -1')

    KA, KSH, KST, KID, KW1, KF, KS, KVT, KPK = 192, 195, 197, 200, 204, 64, 212, 112, 244

    def kv_task(self, kappa):
        self.I('s_and_b32 %s, %s, 31\ns_lshr_b32 %s, %s, 5' % (s(sKTB), s(kappa), s(sKCG), s(kappa)))

    def kv_issue(self, lds, vshift):
        I = self.I
        I('s_lshl_b32 %s, %s, 6\ns_mul_i32 %s, %s, 1280\ns_lshl_b32 %s, %s, 7\ns_add_u32 %s, %s, %s' % (
            s(sA), s(sKTB), s(sA), s(sA), s(sB), s(sKCG), s(sA), s(sA), s(sB)))
        I('s_sub_u32 %s, %s, %d\ns_cmp_eq_u32 %s, 0\ns_cselect_b32 %s, %d, %s' % (s(sB), s(sA), 8 * 1280, s(sKTB), s(sB), 2621440, s(sB)))
        I('s_mov_b32 m0, %d\ns_lshl_b32 %s, %s, 11' % (lds, s(sC), s(sW)))
        I('buffer_load_dwordx4 v4, %s, %s offen nt lds' % (s(rK, 4), s(sB)), 'kv')
        I('s_add_u32 m0, %s, %d' % (s(sC), lds + 1024))
        I('s_mul_i32 %s, %s, %d\ns_add_u32 %s, %s, %s' % (s(sB), s(sW), 16 * 1280, s(sA), s(sA), s(sB)))
        I('buffer_load_dwordx4 v5, %s, %s offen nt lds' % (s(rK, 4), s(sA)), 'kv')
        I('s_add_u32 m0, %s, %d\ns_add_u32 %s, %s, %d' % (s(sC), lds + 2048, s(sB), s(sA), 8 * 1280))
        I('buffer_load_dwordx4 v4, %s, %s offen nt lds' % (s(rK, 4), s(sB)), 'kv')
        I('s_add_u32 m0, %s, %d\nv_and_b32 v6, 15, %s' % (s(sC), lds + 9216, v(vL)))
        I('buffer_load_dwordx4 v4, %s, %s offen nt lds' % (s(rV, 4), s(sA)), 'kv')
        I('s_add_u32 m0, %s, %d\nv_lshlrev_b32 v6, 3, v6' % (s(sC), lds + 9216 + 1024))
        I('buffer_load_dwordx4 v5, %s, %s offen nt lds' % (s(rV, 4), s(sB)), 'kv')
        I('s_lshl_b32 %s, %s, 2\ns_add_u32 %s, %s, %s\ns_lshl_b32 %s, %s, 7' % (s(sA), s(sKCG), s(sA), s(sA), s(sW), s(sA), s(sA)))
        I('v_add_u32 v6, %s, v6' % s(sA))
        I('global_load_dwordx2 %s, v6, %s' % (v(vshift, 2), s(pSHIFT, 2)), 'kv')

    def kv_setup(self, hi):
        I = self.I
        L = v(vL)
        I('v_and_b32 v6, 3, %s\nv_lshlrev_b32 v6, 2, v6\nv_bfe_u32 v7, %s, 2, 2\nv_add_u32 v6, v6, v7' % (L, L))
        I('v_bfe_u32 v7, %s, 4, 1\ns_lshl_b32 %s, %s, 1\nv_add_u32 v7, %s, v7' % (L, s(sA), s(sW), s(sA)))
        I('v_lshrrev_b32 v8, 5, %s' % L)
        for k, (off, sub) in enumerate(((8, True), (6, True), (72, False))):
            I('v_add_u32 v9, %d, v6' % (off + hi // 128))
            if sub:
                I('v_sub_u32 v9, v9, v8')
            I('v_bfe_u32 v3, %s, 2, 2' % ('v9' if sub else 'v6'))
            I('v_lshlrev_b32 v3, 1, v3\nv_xor_b32 v3, v3, v7\nv_lshlrev_b32 v3, 4, v3\nv_lshl_add_u32 %s, v9, 7, v3' % v(self.KA + k))
        I('v_bfe_u32 v6, %s, 3, 1\nv_bfe_u32 v7, %s, 4, 1\nv_bfe_u32 v9, %s, 1, 2\nv_cmp_eq_u32 vcc, v6, v7' % (L, L, L))
        I('v_lshlrev_b32 %s, 4, v8\nv_and_b32 %s, 1, %s' % (v(self.KSH), v(self.KSH + 1), L))
        I('v_cndmask_b32 v9, 7, v9, vcc\nv_lshlrev_b32 %s, 4, %s' % (v(self.KSH + 1), v(self.KSH + 1)))
        for d in range(4):
            I('v_cmp_eq_u32 %s, %d, v9' % (s(sM + 2 * d, 2), d))
        I('v_cmp_gt_u32 vcc, 32, %s\nv_mov_b32 v6, 0x3f80\nv_and_b32 v3, 15, %s' % (L, L))
        I('v_cndmask_b32 v6, 0, v6, vcc\nv_lshlrev_b32 v6, %s, v6' % v(self.KSH + 1))
        for d in range(4):
            I('v_cndmask_b32 %s, 0, v6, %s' % (v(self.KID + d), s(sM + 2 * d, 2)))
        I('v_lshlrev_b32 v3, 12, v3\nv_lshrrev_b32 v7, 4, %s\nv_lshl_add_u32 %s, v7, 4, v3' % (L, v(self.KST)))

    def kv_weights(self, vshift):
        I = self.I
        for j in range(2):
            I('v_lshrrev_b32 v6, %s, %s\nv_and_b32 v6, 0xffff, v6\nv_lshlrev_b32 v6, %s, v6' % (v(self.KSH), v(vshift + j), v(self.KSH + 1)))
            for d in range(4):
                I('v_cndmask_b32 %s, 0, v6, %s' % (v(self.KW1 + 4 * j + d), s(sM + 2 * d, 2)))

    def kv_reads(self, base):
        for b in range(4):
            for i in range(3):
                self.I('ds_read_b128 %s, %s offset:%d' % (v(self.KF + 12 * b + 4 * i, 4), v(self.KA + i), base + 2048 * b))

    def kv_compute(self):
        I = self.I
        F, KS, VT, PK = self.KF, self.KS, self.KVT, self.KPK
        I('s_lshl_b32 %s, %s, 2\ns_add_u32 %s, %s, %s\ns_lshl_b32 %s, %s, 16' % (s(sA), s(sKCG), s(sA), s(sA), s(sW), s(sA), s(sA)))
        I('s_lshl_b32 %s, %s, 7\ns_add_u32 %s, %s, %s\ns_add_u32 %s, %s, %d' % (s(sB), s(sKTB), s(sA), s(sA), s(sB), s(sA), s(sA), UT))
        mf = []
        for b in range(4):
            mf.append('v_mfma_f32_16x16x32_bf16 %s, %s, %s, 0' % (v(KS + 4 * b, 4), v(F + 12 * b, 4), v(self.KW1, 4)))
            mf.append('v_mfma_f32_16x16x32_bf16 %s, %s, %s, 0' % (v(VT + 4 * b, 4), v(F + 12 * b + 8, 4), v(self.KID, 4)))
            mf.append('v_mfma_f32_16x16x32_bf16 %s, %s, %s, %s' % (v(KS + 4 * b, 4), v(F + 12 * b + 4, 4), v(self.KW1 + 4, 4), v(KS + 4 * b, 4)))

        def fin(b):
            out = ['v_mul_f32 %s, %s, %s' % (v(KS + 4 * b + i), v(KS + 4 * b + i), v(VT + 4 * b + i)) for i in range(4)]
            out += ['v_cvt_pk_bf16_f32 %s, %s, %s' % (v(PK + 2 * b + i), v(KS + 4 * b + 2 * i), v(KS + 4 * b + 2 * i + 1)) for i in range(2)]
            if b & 1:
                out.append(('buffer_store_dwordx4 %s, %s, %s, %s offen offset:%d sc1' % (
                    v(PK + 2 * b - 2, 4), v(self.KST), s(rWS, 4), s(sA), 32 * (b - 1)), 'prep'))
            return out
        self.run(mf[:8] + merge(mf[8:], fin(0), 0) + fin(1) + fin(2) + fin(3))

    W2A, W2F = 228, 52

    def w2_setup(self):
        I = self.I
        I('s_lshr_b32 %s, %s, 2\ns_and_b32 %s, %s, 3' % (s(sW2S), s(sT0), s(sW2Q), s(sT0)))
        for i in range(3):
            I('v_add_u32 v6, %d, v0\nv_mul_u32_u24 v7, 3277, v6\nv_lshrrev_b32 v7, 16, v7\nv_mul_u32_u24 v8, 20, v7\nv_sub_u32 v8, v6, v8' % (256 * i))
            I('v_mul_u32_u24 v7, 1280, v7\nv_lshl_add_u32 %s, v8, 4, v7' % v(self.W2A + i))
        I('s_cmp_ge_u32 %s, 2\ns_cselect_b32 %s, %d, 0' % (s(sW), s(sA), OOB))
        I('v_add_u32 %s, %s, %s' % (v(self.W2A + 2), s(sA), v(self.W2A + 2)))
        I('s_mul_i32 %s, %s, %d\ns_mul_i32 %s, %s, 320\ns_add_u32 %s, %s, %s' % (s(sKW), s(sW2S), 32 * 1280, s(sA), s(sW2Q), s(sKW), s(sKW), s(sA)))

    def w2_issue(self):
        I = self.I
        for i in range(3):
            I('s_lshl_b32 %s, %s, 10\ns_add_u32 m0, %s, %d' % (s(sA), s(sW), s(sA), W2S + 4096 * i))
            I('buffer_load_dwordx4 %s, %s, %s offen nt lds' % (v(self.W2A + i), s(rW2, 4), s(sKW)), 'kv')

    def w2_addr(self):
        I = self.I
        L = v(vL)
        I('v_lshrrev_b32 v7, 2, %s\nv_mul_u32_u24 v7, 320, v7\nv_and_b32 v6, 3, %s\nv_lshl_add_u32 v7, v6, 3, v7' % (L, L))
        I('s_lshl_b32 %s, %s, 5\ns_add_u32 %s, %s, %d\nv_add_u32 %s, %s, v7' % (s(sA), s(sW), s(sA), s(sA), W2S, v(self.W2A + 3), s(sA)))
        I('s_mul_i32 %s, %s, 108\ns_add_u32 %s, %s, %s\ns_mul_i32 %s, %s, 5120\ns_lshl_b32 %s, %s, 10\ns_add_u32 %s, %s, %s' % (
            s(sA), s(sW2Q), s(sA), s(sA), s(sW2S), s(sA), s(sA), s(sB), s(sW), s(sA), s(sA), s(sB)))
        I('s_add_u32 %s, %s, %d\ns_cmp_ge_u32 %s, 54\ns_cselect_b32 %s, %d, %s' % (s(sA), s(sA), W2P, s(sW2S), s(sHOFF), WS_BYTES, s(sA)))
        I('s_movk_i32 %s, 4096\ns_cmp_eq_u32 %s, 0\ns_cselect_b32 %s, %s, %d' % (s(sA), s(sW), s(sA), s(sA), 54 * 5120 - 1024))
        I('s_add_u32 %s, %s, %s' % (s(sHOFF + 1), s(sHOFF), s(sA)))
        I('s_mov_b32 %s, %d\ns_cmp_ge_u32 %s, 2\ns_cselect_b32 %s, %s, %d' % (s(sA), WS_BYTES, s(sW), s(sA), s(sA), 54 * 5120 + 3072))
        I('s_add_u32 %s, %s, %s' % (s(sHOFF + 2), s(sHOFF), s(sA)))

    def w2_reads(self):
        for i in range(3):
            for hf in range(2):
                self.I('ds_read_b64_tr_b16 %s, %s offset:%d' % (v(self.W2F + 4 * i + 2 * hf, 2), v(self.W2A + 3), 5120 * hf + 128 * i))

    def w2_stores(self):
        for i in range(3):
            self.I('buffer_store_dwordx4 %s, %s, %s, %s offen sc1' % (v(self.W2F + 4 * i, 4), v(vL16), s(rWS, 4), s(sHOFF + i)), 'prep')

    def lds_init(self):
        self.I('v_mov_b32 v6, %d\nds_write2_b32 v6, v255, v255 offset1:1' % LCNT)

    def gemm2_ids(self):
        I = self.I
        I('s_lshl_b32 %s, %s, 1\ns_lshr_b32 %s, %s, 4\ns_add_u32 %s, %s, %s' % (s(sR2), s(sX), s(sT0), s(sSLOT), s(sR2), s(sR2), s(sT0)))
        I('s_bfe_u32 %s, %s, 0x10003\ns_and_b32 %s, %s, 7' % (s(sNU), s(sSLOT), s(sCT), s(sSLOT)))
        I('s_mul_i32 %s, %s, 13\ns_cmp_lg_u32 %s, 0\ns_addc_u32 %s, %s, 0' % (s(sST), s(sW), s(sW), s(sST), s(sST)))
        I('s_mul_i32 %s, %s, 54\ns_add_u32 %s, %s, %s\ns_mul_i32 %s, %s, 5120\ns_add_u32 %s, %s, %d' % (
            s(sW2OFF), s(sCT), s(sW2OFF), s(sW2OFF), s(sST), s(sW2OFF), s(sW2OFF), s(sW2OFF), s(sW2OFF), W2P))

    def late_setup(self):
        I = self.I
        L = v(vL)
        I('v_bfe_u32 v2, %s, 2, 2\nv_lshrrev_b32 v6, 4, %s\nv_lshlrev_b32 v7, 1, v6\nv_sub_u32 v3, v2, v7\nv_lshlrev_b32 v3, 5, v3' % (L, L))
        I('v_and_b32 v7, 3, %s\nv_sub_u32 v4, v7, v2\nv_lshl_add_u32 v2, v7, 3, v3\ns_add_u32 %s, %s, 224\nv_add_u32 v2, %s, v2' % (L, s(sT0), s(sUB), s(sT0)))
        I('v_add_u32 v3, 2048, v2\nv_lshlrev_b32 v4, 3, v4\nv_lshl_add_u32 v4, v6, 6, v4')
        I('s_add_u32 %s, %s, 32\nv_add_u32 v4, %s, v4' % (s(sT0), s(sHB), s(sT0)))
        I('v_lshlrev_b32 v13, 3, v6')
        I('v_lshrrev_b32 v6, 3, %s\nv_mul_u32_u24 v6, %d, v6\nv_and_b32 v7, 7, %s\nv_lshl_add_u32 v5, v7, 4, v6' % (L, 640 * 128, L))
        I('v_lshlrev_b32 v7, 6, v7\nv_bfe_u32 v6, %s, 3, 1\nv_add_u32 v6, v6, v7\nv_mul_u32_u24 v6, 1280, v6\nv_add_u32 v12, v6, v13' % L)
        I('s_lshr_b32 %s, %s, 2\ns_lshl_b32 %s, %s, 9\ns_and_b32 %s, %s, 3\ns_lshl_b32 %s, %s, 4\ns_add_u32 %s, %s, %s' % (
            s(sT1), s(sR2), s(sT1), s(sT1), s(sT0), s(sR2), s(sT0), s(sT0), s(sT1), s(sT1), s(sT0)))
        I('s_lshl_b32 %s, %s, 3\ns_add_u32 %s, %s, %s\ns_lshl_b32 %s, %s, 1\ns_add_u32 %s, %s, %s' % (
            s(sT0), s(sNU), s(sT1), s(sT1), s(sT0), s(sT0), s(sW), s(sT1), s(sT1), s(sT0)))
        I('s_mul_i32 %s, %s, 1280\ns_mul_i32 %s, %s, 160\ns_add_u32 %s, %s, %s' % (s(sT1), s(sT1), s(sT0), s(sCT), s(sT1), s(sT1), s(sT0)))
        I('v_add_u32 v13, %s, v13' % s(sT0))
        for t in range(4):
            I('s_add_u32 %s, %s, %d\ns_and_b32 %s, %s, 3\ns_lshl_b32 %s, %s, 10\nv_add_u32 %s, %s, %s' % (
                s(sT0), s(sW), t + 1, s(sT0), s(sT0), s(sT0), s(sT0), v(8 + t), s(sT0), v(vL16)))
        I('s_lshl_b32 %s, %s, 1\ns_add_u32 %s, %s, %s\ns_mul_i32 %s, %s, 54\ns_add_u32 %s, %s, %s' % (
            s(sT0), s(sR2), s(sT0), s(sT0), s(sNU), s(sT0), s(sT0), s(sT0), s(sT0), s(sST)))
        I('s_lshl_b32 %s, %s, 12\ns_add_u32 %s, %s, %d' % (s(sT0), s(sT0), s(sHOFF), s(sT0), HP))
        I('s_cmp_ge_u32 %s, 2\ns_cselect_b32 %s, %d, %s' % (s(sW), s(sH0), WS_BYTES, s(sHOFF)))

    def h_issue(self, hb, ch, vD):
        I = self.I
        I('s_add_u32 m0, %s, 32\ns_lshl_b32 %s, %s, 12' % (s(hb), s(sA), s(ch)))
        for i in range(4):
            I('buffer_load_dwordx4 %s, %s, %s offen offset:%d nt lds' % (v(vL16), s(rH, 4), s(sA), 1024 * i), 'h')
        I('s_lshl_b32 %s, %s, 1\nv_mov_b32 v6, %s' % (s(sA), s(ch), s(sA)))
        I('global_load_ushort %s, v6, %s' % (v(vD), s(pSSMD, 2)), 'h')

    def u_issue(self, ch, dst):
        self.I('s_lshl_b32 %s, %s, 12\ns_add_u32 %s, %s, %d' % (s(sA), s(ch), s(sA), s(sA), UT))
        for i in range(4):
            self.I('buffer_load_dwordx4 %s, %s, %s, %s offen offset:%d sc1' % (dst(4 * i, 4), v(vL16), s(rWS, 4), s(sA), 1024 * i), 'u')

    def conv_pads(self, hb, ub):
        I = self.I
        I('v_lshl_add_u32 v6, %s, 2, %s\nds_write_b32 v6, %s' % (v(vL), s(ub), v(vZ)))
        I('v_and_b32 v7, 7, %s\nv_lshl_add_u32 v7, v7, 2, %s\nds_write_b32 v7, %s' % (v(vL), s(hb), v(vZ)))

    def conv_dfix_a(self, hb):
        self.I('v_mov_b32 v14, %s\nds_read_u16 v15, v14 offset:32' % s(hb))

    def conv_dfix_b(self, vD):
        self.I('v_lshlrev_b32 v6, 16, %s\nv_lshlrev_b32 v15, 16, v15\nv_add_f32 v15, v15, v6\nv_cvt_pk_bf16_f32 v15, v15, v15' % v(vD))
        self.I('ds_write_b16 v14, v15 offset:32')

    def conv_ustage(self, ub, src):
        I = self.I
        L = v(vL)
        I('v_lshrrev_b32 v6, 2, %s\nv_lshlrev_b32 v6, 6, v6\nv_and_b32 v7, 3, %s\nv_lshl_add_u32 v6, v7, 3, v6' % (L, L))
        I('s_add_u32 %s, %s, 256\nv_add_u32 v6, %s, v6\nv_add_u32 v7, 2048, v6' % (s(sT0), s(ub), s(sT0)))
        for i in range(4):
            I('ds_write2_b64 %s, %s, %s offset0:%d offset1:%d' % (v(6 + i // 2), src(4 * i, 2), src(4 * i + 2, 2), 128 * (i & 1), 128 * (i & 1) + 4))

    WX = 188

    def w2_loads(self, g):
        out = [('s_add_u32 %s, %s, %d' % (s(sC), s(sW2OFF), 4096 * g), None)]
        for i in range(4 if g < 17 else 2):
            dst = a(16 * g + 4 * i, 4) if g < 16 else v(self.WX + 16 * (g - 16) + 4 * i, 4)
            out.append(('buffer_load_dwordx4 %s, %s, %s, %s offen offset:%d sc1' % (dst, v(vL16), s(rWS, 4), s(sC), 1024 * i), None))
        return out

    XA, WA, DX, DW, ONES, CS, B1 = 20, 24, 32, 36, 40, 44, 248
    ACC, FR = 64, 128
    XB, KK, AX = 192, 208, 224

    def g1_setup(self):
        I = self.I
        L = v(vL)
        I('s_mul_i32 %s, %s, 7\ns_add_u32 %s, %s, %s\ns_lshl_b32 %s, %s, 2\ns_min_u32 %s, %s, 50' % (
            s(sT0), s(sFH), s(sT0), s(sT0), s(sCC), s(sNT0), s(sT0), s(sNT0), s(sNT0)))
        I('v_lshrrev_b32 v6, 3, %s\nv_mul_u32_u24 v6, %d, v6\nv_lshrrev_b32 v7, 4, %s\nv_and_b32 v8, 7, %s\nv_xor_b32 v8, v8, v7' % (L, 64 * 1280, L, L))
        I('v_lshl_add_u32 %s, v8, 4, v6' % v(self.DX))
        I('v_xor_b32 v6, 64, %s' % v(self.DX))
        I('v_add_u32 %s, 256, v6\nv_add_u32 %s, 512, %s\nv_add_u32 %s, 768, v6' % (v(self.DX + 1), v(self.DX + 2), v(self.DX), v(self.DX + 3)))
        I('v_mul_u32_u24 v6, 3456, v7\nv_lshlrev_b32 v7, 2, v7\nv_and_b32 v8, 15, %s\nv_xor_b32 v8, v8, v7\nv_lshl_add_u32 %s, v8, 4, v6' % (L, v(self.DW)))
        I('v_xor_b32 v8, 2, v8\nv_lshl_add_u32 v6, v8, 4, v6')
        step = 4 * 3456 - 1024
        I('v_add_u32 %s, %d, %s\nv_add_u32 %s, %d, v6\nv_add_u32 %s, %d, v6' % (
            v(self.DW + 1), step, v(self.DW), v(self.DW + 2), 2 * step, v(self.DW + 3), 3 * step))
        I('s_lshl_b32 %s, %s, 2\ns_add_u32 %s, %s, %s\ns_mul_i32 %s, %s, 1280' % (s(sT0), s(sW), s(sT0), s(sT0), s(sTB), s(sDX), s(sT0)))
        I('s_mul_i32 %s, %s, %d\ns_lshl_b32 %s, %s, 6\ns_add_u32 %s, %s, %s' % (s(sDW), s(sW), 16 * 3456, s(sT0), s(sNT0), s(sDW), s(sDW), s(sT0)))
        I('s_lshl_b32 %s, %s, 12' % (s(sD), s(sW)))

    def g1_dma(self, c):
        slot = (c % 4) * 32768
        out = [('s_add_u32 m0, %s, %d' % (s(sD), slot), None)]
        for i in range(4):
            out.append(('buffer_load_dwordx4 %s, %s, %s offen offset:%d lds' % (v(self.DX + i), s(rQ, 4), s(sDX), 1024 * i), 'c%d' % c))
        second = [('s_add_u32 m0, %s, %d' % (s(sD), slot + 16384), None), ('s_add_u32 %s, %s, 128' % (s(sDX), s(sDX)), None)]
        for i in range(4):
            second.append(('buffer_load_dwordx4 %s, %s, %s offen offset:%d lds' % (v(self.DW + i), s(rW1, 4), s(sDW), 1024 * i), 'c%d' % c))
        second.append(('s_add_u32 %s, %s, %d' % (s(sDW), s(sDW), 64 * 3456), None))
        return out, second

    def g1_frag_setup(self):
        I = self.I
        L = v(vL)
        I('s_lshr_b32 %s, %s, 1\ns_and_b32 %s, %s, 1' % (s(sI), s(sW), s(sJ), s(sW)))
        I('v_and_b32 v6, 15, %s\nv_lshrrev_b32 v7, 1, v6\nv_lshrrev_b32 v8, 4, %s\nv_xor_b32 v7, v7, v8' % (L, L))
        I('s_lshl_b32 %s, %s, 13\nv_lshlrev_b32 v6, 7, v6\nv_add_u32 v6, %s, v6' % (s(sT0), s(sJ), s(sT0)))
        I('v_lshl_add_u32 %s, v7, 4, v6\nv_xor_b32 %s, 64, %s' % (v(self.XA), v(self.XA + 1), v(self.XA)))
        I('v_add_u32 %s, 0x10000, %s\nv_add_u32 %s, 0x10000, %s' % (v(self.XA + 2), v(self.XA), v(self.XA + 3), v(self.XA + 1)))
        I('v_bfe_u32 v6, %s, 2, 2\nv_lshl_add_u32 v7, v8, 3, v6\nv_lshlrev_b32 v7, 8, v7\nv_and_b32 v9, 3, %s\nv_lshl_add_u32 v7, v9, 3, v7' % (L, L))
        I('v_add_u32 v7, 16384, v7\nv_and_b32 v8, 1, v8\nv_lshl_add_u32 v6, v6, 1, v8\ns_lshl_b32 %s, %s, 1\nv_xor_b32 v6, %s, v6' % (s(sT0), s(sW), s(sT0)))
        I('v_lshl_add_u32 %s, v6, 5, v7' % v(self.WA))
        for k in range(1, 4):
            I('v_xor_b32 %s, %d, %s' % (v(self.WA + k), 32 * k, v(self.WA)))
        for k in range(4):
            I('v_add_u32 %s, 0x10000, %s' % (v(self.WA + 4 + k), v(self.WA + k)))
        for k in range(4):
            I('v_mov_b32 %s, 0x3f803f80' % v(self.ONES + k))

    def b1_issue(self):
        I = self.I
        I('s_add_u32 %s, %s, %s\ns_lshl_b32 %s, %s, 6' % (s(sA), s(sW), s(sNT0), s(sA), s(sA)))
        I('v_and_b32 v6, 15, %s\nv_lshl_add_u32 v6, v6, 1, %s\nv_xor_b32 v7, 64, v6' % (v(vL), s(sA)))
        for k in range(4):
            I('global_load_ushort %s, %s, %s offset:%d' % (v(self.B1 + k), v(6 + k // 2), s(pB1, 2), 32 * (k & 1)))

    def g1_reads(self, c, k, fs):
        slot = c % 4
        hi = slot // 2
        off = (slot % 2) * 32768
        F = self.FR + 32 * fs
        out = []
        for i in range(4):
            for hf in range(2):
                out.append('ds_read_b64_tr_b16 %s, %s offset:%d' % (v(F + 16 + 4 * i + 2 * hf, 2), v(self.WA + 4 * hi + i), off + 8192 * k + 1024 * hf))
            out.append('ds_read_b128 %s, %s offset:%d' % (v(F + 4 * i, 4), v(self.XA + 2 * hi + k), off + 2048 * i))
        return out

    def g1_mfmas(self, fs, first):
        F = self.FR + 32 * fs
        out = []
        for d in range(4):
            for aa, b in [(d, x) for x in range(d)] + [(x, d) for x in range(d + 1)]:
                acc = v(self.ACC + 4 * (4 * aa + b), 4)
                out.append('v_mfma_f32_16x16x32_bf16 %s, %s, %s, %s' % (acc, v(F + 16 + 4 * aa, 4), v(F + 4 * b, 4), '0' if first else acc))
        return out

    def g1_cs(self, fs, first):
        F = self.FR + 32 * fs
        return ['v_mfma_f32_16x16x32_bf16 %s, %s, %s, %s' % (v(self.CS + 4 * k, 4), v(self.ONES, 4), v(F + 16 + 4 * k, 4), '0' if first else v(self.CS + 4 * k, 4))
                for k in range(2)]

    def ax_build(self, aa, cs):
        d = self.AX + 4 * aa
        b1 = v(self.B1 + aa)
        return ['v_cvt_pk_bf16_f32 v6, %s, %s' % (cs, cs), 'v_mov_b32 %s, %s' % (v(d + 2), b1), 'v_and_b32 v7, 0xffff0000, v6',
                'v_sub_f32 v7, %s, v7' % cs, 'v_and_b32 v6, 0xffff, v6', 'v_cvt_pk_bf16_f32 %s, %s, v7' % (v(d), cs),
                'v_lshl_or_b32 %s, %s, 16, v6' % (v(d + 1), b1)]

    def role_g(self):
        I, e, o = self.I, self.e, self.o
        cap = self.capture
        L = v(vL)
        self.stats_issue()
        self.srd(rK, 10, 2621440)
        self.srd(rV, 12, 2621440)
        I('s_mul_i32 %s, %s, 7\ns_add_u32 %s, %s, %s' % (s(sT0), s(sD), s(sT0), s(sT0), s(sCC)))
        self.kv_task(sT0)
        self.kv_issue(KV, 198)
        self.srd(rW1, 22, 640 * 3456)
        self.srd(rW2, 26, 1728 * 1280)
        self.w2_setup()
        self.w2_issue()
        self.g1_setup()
        d0 = self.g1_dma(0)
        self.run(d0[0] + d0[1])
        self.stamp(1)

        def conv_ids():
            I = self.I
            I('s_mul_i32 %s, %s, 7\ns_add_u32 %s, %s, %s\ns_lshl_b32 %s, %s, 1' % (s(sCH), s(sMU), s(sCH), s(sCH), s(sCC), s(sCH), s(sCH)))
            I('s_mul_i32 %s, %s, 80\ns_add_u32 %s, %s, %s\ns_add_u32 %s, %s, %s' % (s(sT0), s(sX), s(sCH), s(sCH), s(sT0), s(sCH), s(sCH), s(sI)))
            I('s_mul_i32 %s, %s, %d\ns_add_u32 %s, %s, %d\ns_add_u32 %s, %s, 65536' % (s(sUB), s(sW), UBSZ, s(sHB), s(sUB), KV, s(sUB), s(sUB)))
        shadow = (cap(self.code_prefetch) + cap(self.lds_init) + cap(self.kv_setup, KV) + cap(self.g1_frag_setup) + cap(self.srd, rH, 16, 2621440)
                  + cap(self.srd, rOUT, 30, 2621440) + cap(conv_ids) + cap(self.gemm2_ids) + cap(self.w2_addr))
        nearly = o.get('nearly', 2)
        dm = []
        for c in range(1, 1 + nearly):
            dm += sum(self.g1_dma(c), [])
        self.run(self.weave(shadow, (dm, 2, max(2.0, (len(shadow) - 4) / (8.0 * nearly)))))
        self.stamp(2)
        self.stats_sums()
        self.kv_weights(198)
        e.wait_tag('kv', and_lg=0)
        I('s_barrier')
        self.w2_reads()
        self.kv_reads(0)
        dm = []
        for c in range(1 + nearly, 4):
            dm += sum(self.g1_dma(c), [])
        fin = cap(self.stats_finish)
        cut = max(i for i, x in enumerate(fin) if x[0].startswith('s_mov_b32 exec_lo'))
        if dm:
            self.run(self.weave(fin[:cut], (dm, 1, max(2.0, cut / (8.0 * (3 - nearly))))) + fin[cut:])
        else:
            self.run(fin)
        self.w2_stores()
        self.kv_compute()
        I('global_load_dword v240, %s, %s sc1' % (v(vZ), s(pDBG, 2)), 'z')
        self.stamp(3)
        e.wait_tag('c0')
        I('s_barrier')
        self.run(self.g1_reads(0, 0, 0))
        self.stamp(4)
        NE = o.get('ne', 9)
        early = [x for g in range(NE) for x in self.w2_loads(g)]

        def take_early(n):
            out = []
            while early and n > 0:
                x = early.pop(0)
                out.append(x)
                n -= x[0].startswith('buffer')
            return out
        late = cap(self.late_setup)
        pFS, cFS = o.get('pfs', 11), o.get('cfs', 13)
        pFK, cFK = o.get('pfk', 14), o.get('cfk', 17)
        second = []
        for c in range(10):
            for k in range(2):
                st = 2 * c + k
                first = st == 0
                mf = self.g1_mfmas(k, first)
                cs = self.g1_cs(k, first)
                mem, extra = [], []
                if k == 1 and c < 9:
                    e.wait_tag('prep' if c == 1 else 'c%d' % (c + 1), and_lg=0)
                    if c == 1:
                        self.poll_check(240, None, 1, dbg=True)
                    if st == cFS:
                        self.poll_check(241, s(sEARLY), 16)
                    if st == cFK:
                        self.poll_check(242, s(sB), 32)
                        self.poll_check(243, s(sD), 56)
                    I('s_barrier')
                    if c == 1:
                        I('s_lshl_b32 %s, %s, 7\ns_lshl_b32 %s, %s, 7\ns_add_u32 %s, %s, %d' % (
                            s(sA), s(sR), s(sB), s(sKCG), s(sB), s(sB), FK))
                        I('s_lshl_b32 %s, %s, 7\ns_add_u32 %s, %s, %d' % (s(sC), s(sW2Q), s(sC), s(sC), FW))
                        self.signal_wave0([s(sA), s(sB), s(sC)], 6)
                    if c + 4 < 10:
                        mem, second = self.g1_dma(c + 4)
                elif k == 0:
                    mem, second = second, []
                reads = self.g1_reads(c, 1, 1) if k == 0 else (self.g1_reads(c + 1, 0, 0) if c < 9 else [])
                if st == pFS:
                    extra += ['s_lshl_b32 %s, %s, 7' % (s(sEARLY), s(sR)), lambda: self.poll_issue(241, s(sEARLY))]
                if st == 13:
                    mem = mem + cap(self.h_issue, sHB, sCH, 244)
                if st == 9:
                    extra += cap(self.b1_issue)
                if st == cFS + 1:
                    def stat_loads():
                        I = self.I
                        I('s_lshl_b32 %s, %s, 1\ns_add_u32 %s, %s, %s\ns_lshl_b32 %s, %s, 10\ns_add_u32 %s, %s, %d\ns_add_u32 %s, %s, %d' % (
                            s(sA), s(sR), s(sA), s(sA), s(sJ), s(sA), s(sA), s(sA), s(sA), STA, s(sEARLY), s(sA), STB - STA))
                        I('v_and_b32 v14, 15, %s\nv_lshlrev_b32 v14, 4, v14\nv_lshrrev_b32 v15, 4, %s\nv_lshl_add_u32 v15, v15, 26, v14' % (L, L))
                        for b in range(4):
                            I('buffer_load_dwordx4 %s, v15, %s, %s offen offset:%d sc1' % (v(self.XB + 4 * b, 4), s(rWS, 4), s(sA), 256 * b))
                            I('buffer_load_dwordx4 %s, v14, %s, %s offen offset:%d sc1' % (v(self.KK + 4 * b, 4), s(rWS, 4), s(sEARLY), 256 * b))
                    extra += cap(stat_loads)
                if st == pFK:
                    extra += ['s_lshr_b32 %s, %s, 6' % (s(sB), s(sCH)), 's_lshl_b32 %s, %s, 7' % (s(sB), s(sB)),
                              's_add_u32 %s, %s, %d' % (s(sB), s(sB), FK), lambda: self.poll_issue(242, s(sB)),
                              's_lshr_b32 %s, %s, 1' % (s(sD), s(sCT)), 's_lshl_b32 %s, %s, 7' % (s(sD), s(sD)),
                              's_add_u32 %s, %s, %d' % (s(sD), s(sD), FW), lambda: self.poll_issue(243, s(sD))]
                if st in (3, 4, 5, 6, 7, 8):
                    n = (len(late) + (8 - st)) // (9 - st)
                    extra += late[:n]
                    late = late[n:]
                if st == 15:
                    extra += cap(self.conv_pads, sHB, sUB) + ['v_mov_b32 %s, 0' % v(self.AX + 4 * q + 3) for q in range(4)]
                if st == 16:
                    extra += [lambda: e.wait_tag('h')] + cap(self.conv_dfix_a, sHB)
                    extra += ['s_lshl_b32 %s, %s, 7' % (s(sT0), s(sW)), 's_add_u32 %s, %s, %d' % (s(sT0), s(sT0), CSX),
                              'v_and_b32 v16, 15, %s' % L, 'v_lshl_add_u32 v16, v16, 2, %s' % s(sT0), 'v_xor_b32 v17, 128, v16']
                if st == 17:
                    extra += cap(self.conv_dfix_b, 244)
                if st == cFK:
                    mem = mem + cap(self.u_issue, sCH, lambda x, n: a(240 + x, n))
                elif st > cFK:
                    mem = mem + take_early(4)
                if st == 18:
                    def h_addr():
                        I = self.I
                        I('s_lshl_b32 %s, %s, 1\ns_add_u32 %s, %s, %s\ns_mul_i32 %s, %s, 54\ns_add_u32 %s, %s, %s' % (
                            s(sA), s(sR), s(sA), s(sA), s(sJ), s(sA), s(sA), s(sA), s(sA), s(sNT0)))
                        I('s_add_u32 %s, %s, %s\ns_xor_b32 %s, %s, 1\ns_add_u32 %s, %s, %s' % (s(sB), s(sA), s(sW), s(sT0), s(sW), s(sA), s(sA), s(sT0)))
                        I('s_lshl_b32 %s, %s, 12\ns_add_u32 %s, %s, %d\ns_lshl_b32 %s, %s, 12\ns_add_u32 %s, %s, %d' % (
                            s(sB), s(sB), s(sB), s(sB), HP, s(sA), s(sA), s(sA), s(sA), HP))
                        I('s_lshl_b32 %s, %s, 4\ns_add_u32 %s, %s, %s\ns_cmp_eq_u32 %s, 14' % (s(sT0), s(sI), s(sT0), s(sT0), s(sQ), s(sT0)))
                        I('s_cselect_b32 %s, %d, %s\ns_cselect_b32 %s, %d, %s' % (s(sA), WS_BYTES, s(sA), s(sB), WS_BYTES, s(sB)))
                    extra += cap(h_addr)
                if st < 19:
                    ne = len(extra)
                    self.run(self.weave(mf + cs, (reads, 0, 1), (mem, 2, 4), (extra, 12 if ne <= 10 else 1, 0.6 if ne <= 10 else 17.0 / ne)))
                else:
                    self.run(cs + self.weave(mf[:5], (mem, 0, 2)))
                    I('ds_write2_b32 v16, %s, %s offset1:16' % (v(self.CS), v(self.CS + 4)))
                    self.run(mf[5:7])
                    e.wait_lg(0)
                    I('s_barrier')
                    I('ds_read2_b32 v[18:19], v17 offset1:16')
                    own = self.ax_build(0, v(self.CS)) + self.ax_build(1, v(self.CS + 4))
                    self.run(self.weave(mf[7:15], (own, 0, 0.55)) + self.ax_build(2, 'v18')[:2] + [mf[15]] + self.ax_build(2, 'v18')[2:] + self.ax_build(3, 'v19'))
                if k == 1:
                    self.stamp(20 + c)
                elif c >= 5:
                    self.stamp(10 + c)
        assert not late
        self.stamp(5)
        self.g1_epilogue(take_early, NE)
        assert not early

    def g1_epilogue(self, take_early, NE):
        I, e = self.I, self.e
        for p in range(2):
            for b in range(4):
                for aa in (2 * p, 2 * p + 1):
                    acc = v(self.ACC + 4 * (4 * aa + b), 4)
                    I('v_mfma_f32_16x16x32_bf16 %s, %s, %s, %s' % (acc, v(self.AX + 4 * aa, 4), v(self.XB + 4 * b, 4), acc))
                if b & 1:
                    self.run(take_early(1))
        self.stamp(6)
        T = 128
        per = self.o.get('gl', 3)
        for p in range(2):
            for b in range(4):
                n = 4 * p + b
                kk, sg = v(self.KK + 4 * b, 2), v(self.KK + 4 * b + 2, 2)
                prs = [self.ACC + 4 * (4 * (2 * p + (j >> 1)) + b) + 2 * (j & 1) for j in range(4)]
                tp = [T + 16 * (n & 1) + 2 * j for j in range(4)]
                tq = [T + 16 * (n & 1) + 8 + 2 * j for j in range(4)]
                out = 160 + 4 * n
                seq = []
                seq += ['v_pk_mul_f32 %s, %s, %s' % (v(t, 2), v(q, 2), v(q, 2)) for q, t in zip(prs, tp)]
                seq += ['v_pk_fma_f32 %s, %s, %s, %s op_sel:[0,1,0] op_sel_hi:[1,1,0]' % (v(t, 2), v(t, 2), kk, kk) for t in tp]
                seq += ['v_pk_mul_f32 %s, %s, %s' % (v(t, 2), v(t, 2), v(q, 2)) for q, t in zip(prs, tp)]
                seq += ['v_exp_f32 %s, %s' % (v(t + h), v(t + h)) for t in tp for h in range(2)]
                seq += ['v_pk_fma_f32 %s, %s, %s, %s op_sel:[0,0,0] op_sel_hi:[1,0,0]' % (v(t, 2), v(t, 2), sg, sg) for t in tp]
                seq += ['v_rcp_f32 %s, %s' % (v(t + h), v(t + h)) for t in tp for h in range(2)]
                seq += ['v_pk_mul_f32 %s, %s, %s' % (v(u, 2), v(t, 2), v(q, 2)) for q, t, u in zip(prs, tp, tq)]
                seq += ['v_cvt_pk_bf16_f32 %s, %s, %s' % (v(out + j), v(u), v(u + 1)) for j, u in enumerate(tq)]
                self.run(self.weave(seq, (take_early(per if n < 7 else 99), 3, 11)))
                I('buffer_store_dwordx4 %s, %s, %s, %s offen offset:%d sc1' % (
                    v(out, 4), v(vL16), s(rWS, 4), s(sB if p == 0 else sA), 1024 * b), 'H')
                if n == 1:
                    self.conv_ustage(sUB, lambda x, n: a(240 + x, n))
        self.stamp(7)
        self.h_tail = list(e.vm)
        I('s_mov_b32 %s, 1' % s(sISG))
        self.stamp_sync()
        I('s_branch L_conv')

    def role_s(self):
        I, e = self.I, self.e
        cap = self.capture
        L = v(vL)
        zwg = 7 if self.o.get('x_map') else 56
        lab = self.lab('Lnoz')
        I('s_cmp_lg_u32 s2, %d\ns_cbranch_scc1 %s\ns_cmp_lg_u32 %s, 0\ns_cbranch_scc1 %s' % (zwg, lab, s(sW), lab))
        I('v_lshlrev_b32 v6, 7, %s\nbuffer_store_dword %s, v6, %s, 0 offen sc1' % (L, v(vZ), s(rWS, 4)))
        e.vm.pop()
        e.label(lab)
        self.stats_issue()
        self.srd(rK, 10, 2621440)
        self.srd(rV, 12, 2621440)

        def task(t):
            self.I('s_mul_i32 %s, %s, 3\ns_add_u32 %s, %s, %d' % (s(sT0), s(sD), s(sT0), s(sT0), 224 + t))
            self.kv_task(sT0)
        KB = 3 * 4 * (HBSZ + UBSZ)
        STEP = 4 * (HBSZ + UBSZ)
        for t in range(3):
            task(t)
            self.kv_issue(KB + t * KVSZ, 228 + 2 * t)
            if t == 0:
                self.code_prefetch()
                self.kv_setup(KB)
        lab = self.lab('Lnoz')
        I('s_cmp_lg_u32 s2, %d\ns_cbranch_scc1 %s\ns_cmp_lg_u32 %s, 0\ns_cbranch_scc1 %s' % (zwg, lab, s(sW), lab))
        e.raw('    s_waitcnt vmcnt(%d)' % len(e.vm))
        I('v_mov_b32 v6, 1\ns_mov_b64 exec, 1\nglobal_store_dword %s, v6, %s sc1\ns_mov_b64 exec, -1' % (v(vZ), s(pDBG, 2)))
        e.vm.pop()
        e.label(lab)
        self.stamp(1)
        self.stats_sums()
        self.stats_finish()
        self.srd(rH, 16, 2621440)
        self.srd(rOUT, 30, 2621440)
        self.gemm2_ids()
        I('s_mul_i32 %s, %s, 80\ns_mul_i32 %s, %s, 6\ns_add_u32 %s, %s, %s\ns_add_u32 %s, %s, 56' % (
            s(sCH), s(sX), s(sT0), s(sMU), s(sCH), s(sCH), s(sT0), s(sCH), s(sCH)))
        I('s_lshr_b32 %s, %s, 6\ns_lshl_b32 %s, %s, 7\ns_add_u32 %s, %s, %d' % (s(sDX), s(sCH), s(sDX), s(sDX), s(sDX), s(sDX), FK))
        I('s_add_u32 %s, %s, 5\ns_lshr_b32 %s, %s, 6\ns_lshl_b32 %s, %s, 7\ns_add_u32 %s, %s, %d' % (
            s(sEARLY), s(sCH), s(sEARLY), s(sEARLY), s(sEARLY), s(sEARLY), s(sEARLY), s(sEARLY), FK))
        I('s_lshr_b32 %s, %s, 1\ns_lshl_b32 %s, %s, 7\ns_add_u32 %s, %s, %d' % (s(sDW), s(sCT), s(sDW), s(sDW), s(sDW), s(sDW), FW))
        I('s_lshr_b32 %s, %s, 1\ns_add_u32 %s, %s, %s' % (s(sT0), s(sW), s(sCH), s(sCH), s(sT0)))
        I('s_mul_i32 %s, %s, %d\ns_add_u32 %s, %s, %d' % (s(sHB), s(sW), HBSZ + UBSZ, s(sUB), s(sHB), HBSZ))
        I('global_load_dword v240, %s, %s sc1' % (v(vZ), s(pDBG, 2)), 'z')
        self.kv_weights(228)
        e.wait_tag('kv', and_lg=0)
        I('s_barrier')
        self.stamp(2)
        for t in range(3):
            self.kv_reads(t * KVSZ)
            task(t)
            if t:
                self.kv_weights(228 + 2 * t)
            self.kv_compute()
            I('s_lshl_b32 %s, %s, 7\ns_add_u32 %s, %s, %d' % (s(sM + t), s(sKCG), s(sM + t), s(sM + t), FK) if t == 2 else
              's_lshl_b32 %s, %s, 7\ns_add_u32 %s, %s, %d' % (s(sW2Q + t), s(sKCG), s(sW2Q + t), s(sW2Q + t), FK))
        self.stamp(3)
        for r in range(3):
            I('s_add_u32 %s, %s, %d\ns_add_u32 %s, %s, %d' % (s(sI), s(sHB), r * STEP, s(sJ), s(sCH), 2 * r))
            self.h_issue(sI, sJ, 244 + r)
            I('s_add_u32 %s, %s, %d' % (s(sJ), s(sUB), r * STEP))
            self.conv_pads(sI, sJ)
        self.late_setup()
        self.poll_check(240, None, 1, dbg=True)
        e.wait_tag('prep')
        I('s_barrier')
        I('s_lshl_b32 %s, %s, 7' % (s(sA), s(sR)))
        self.signal_wave0([s(sA), s(sW2Q), s(sW2Q + 1), s(sM + 2)], 6)
        self.stamp(4)
        e.wait_tag('h')
        self.poll_issue(241, s(sDX))
        self.poll_issue(242, s(sEARLY))
        self.poll_issue(243, s(sDW))
        for r in range(3):
            I('s_add_u32 %s, %s, %d' % (s(sI), s(sHB), r * STEP))
            self.conv_dfix_a(sI)
            self.conv_dfix_b(244 + r)
        self.poll_check(241, s(sDX), 32)
        self.poll_check(242, s(sEARLY), 32)
        for r in range(3):
            I('s_add_u32 %s, %s, %d' % (s(sJ), s(sCH), 2 * r))
            self.u_issue(sJ, lambda x, n: v(64 + 16 * r + x, n))
        self.poll_check(243, s(sDW), 56)
        for r in range(3):
            I('s_add_u32 %s, %s, %d' % (s(sJ), s(sUB), r * STEP))
            self.conv_ustage(sJ, lambda x, n: v(64 + 16 * r + x, n))
        I('s_mov_b32 %s, 0\ns_mov_b32 %s, 0' % (s(sISG), s(sROUND)))
        self.stamp(8)
        self.stamp_sync()
        e.label('L_plain')
        self.conv_pair(True)
        I('s_add_u32 %s, %s, 1\ns_add_u32 %s, %s, 2' % (s(sROUND), s(sROUND), s(sCH), s(sCH)))
        I('v_add_u32 v2, %d, v2\nv_add_u32 v3, %d, v3\nv_add_u32 v4, %d, v4' % (STEP, STEP, STEP))
        I('s_cmp_lt_u32 %s, 2\ns_cbranch_scc1 L_plain' % s(sROUND))

    OWN, XN, RAW = 232, 212, 188

    def conv(self):
        self.e.label('L_conv')
        self.conv_pair(False)

    def conv_pair(self, plain):
        I, e = self.I, self.e
        e.forget()
        if not plain:
            e.vm = [dict(tag=x['tag'], wr=set()) for x in self.h_tail]
            I('s_lshl_b32 %s, %s, 7\ns_add_u32 %s, %s, %d' % (s(sD), s(sR2), s(sD), s(sD), FH))
        I('s_lshl_b32 %s, %s, 7\ns_add_u32 %s, %s, %d' % (s(sYOFF), s(sCH), s(sYOFF), s(sYOFF), YP))
        lb, le = self.lab('LconvB'), self.lab('LconvE')
        I('s_bitcmp1_b32 %s, 0\ns_cbranch_scc1 %s' % (s(sW), lb))
        vm0, hist0 = list(e.vm), list(e.hist)
        keep = {('v', i) for i in (0, 1, 2, 3, 4, 5, 8, 9, 10, 11, 12, 13, 252, 255)} | {('a', i) for i in range(256)}
        e.written = set(keep)
        self.conv_body(list(range(8)) + list(range(23, 32)), (23,), plain)
        I('s_branch ' + le)
        e.label(lb)
        e.vm, e.lg, e.hist = list(vm0), [], list(hist0)
        e.written = set(keep)
        self.conv_body(list(range(7, 24)), (7,), plain)
        e.label(le)

    def conv_body(self, tiles, carry, plain):
        I, e = self.I, self.e
        ACC, HF, UF, NU = 16, 84, 148, 4
        T1, T2, YV, YPK = 164, 166, 168, 172
        NE = self.o.get('ne', 9)
        acc = {t: ACC + 4 * i for i, t in enumerate(tiles)}
        mmax = max(tiles)
        nsig = mmax // 2 + 1

        def uread(m):
            return 'ds_read2_b64 %s, %s offset0:%d offset1:%d' % (v(UF + 4 * (m % NU), 4), v(2 + m // 16), 16 * (m % 16) + 4, 16 * (m % 16))

        def hread(sg):
            return ['ds_read_b64_tr_b16 %s, v4 offset:%d' % (v(HF + 4 * sg + 2 * hf, 2), 256 * sg + 32 * hf) for hf in range(2)]

        steps = [[t for t in tiles if t >= m and (t - m) % 2 == 0] for m in range(mmax + 1)]
        order = []
        for m in range(mmax + 1):
            for t in steps[m]:
                if (t - m) // 2 not in order:
                    order.append((t - m) // 2)
        I(uread(0))
        for sg in order[:3]:
            self.run(hread(sg))
        I(uread(1))
        pend_h = [(sg, x) for sg in order[3:] for x in hread(sg)]

        def post(t):
            z = acc[t]
            cur, prv = t & 1, (t & 1) ^ 1
            out = []
            dpp = ' row_mask:0xf bank_mask:0xf'
            has_prev = (t - 1) in acc and t not in carry
            chain = [(T1 + cur, z + 3, (acc[t - 1] + 3) if has_prev else None, z + 2),
                     (T2 + cur, T1 + cur, T1 + prv, z + 1)]
            if t not in carry:
                chain.append((YV + (t & 1), T2 + cur, T2 + prv, z))
            ror = ['v_add_f32_dpp %s, %s, %s wave_ror:1%s' % (v(d), v(psrc), v(add), dpp) for d, src, psrc, add in chain] if has_prev else []
            shr = ['v_add_f32_dpp %s, %s, %s wave_shr:1%s%s' % (v(d), v(src), v(add), dpp, '' if has_prev else ' bound_ctrl:0')
                   for d, src, psrc, add in chain]
            out = [ror[0], shr[0], ror[1], ror[2], shr[1], shr[2]] if has_prev else shr
            if t not in carry and t & 1:
                out.append('v_cvt_pk_bf16_f32 %s, %s, %s' % (v(YPK + 4 * ((t >> 3) & 1) + ((t & 7) >> 1)), v(YV), v(YV + 1)))
                if t & 7 == 7:
                    g = t >> 3
                    out.append('s_add_u32 %s, %s, %d' % (s(sT0), s(sYOFF), g * 8 * 640 * 128))
                    out.append(('buffer_store_dwordx4 %s, v5, %s, %s offen sc1' % (v(YPK + 4 * (g & 1), 4), s(rWS, 4), s(sT0)), 'y'))
            return out

        def h_arrive():
            lab = self.lab('Lh')
            lg = list(e.lg)
            I('s_cmp_eq_u32 %s, 0\ns_cbranch_scc1 %s' % (s(sISG), lab))
            e.wait_tag('H')
            self.arrive(LCNT, 6)
            e.label(lab)
            e.lg = lg

        def h_done():
            lab = self.lab('Lh')
            I('s_cmp_eq_u32 %s, 0\ns_cbranch_scc1 %s' % (s(sISG), lab))
            I('s_lshl_b32 %s, %s, 7\ns_add_u32 %s, %s, %d' % (s(sT0), s(sR), s(sT0), s(sT0), FH))
            e.raw('    s_waitcnt lgkmcnt(%d)' % min(15, self.ds_since))
            self.arrive_done(s(sT0), 6)
            e.label(lab)

        RAW, XN, OWN = self.RAW, self.XN, self.OWN
        raw = ['buffer_load_dwordx2 %s, v12, %s, %s offen offset:%d' % (v(RAW + 2 * n, 2), s(rQ, 4), s(sT1), 32 * n) for n in range(5)]
        raw += ['global_load_dwordx2 %s, v13, %s offset:%d' % (v(RAW + 10 + 2 * n, 2), s(pB2, 2), 32 * n) for n in range(5)]
        unpack = []
        for i in range(10):
            x, b, d, o = RAW + i, RAW + 10 + i, XN + 2 * i, OWN + 2 * i
            unpack += ['v_lshlrev_b32 %s, 16, %s' % (v(d), v(x)), 'v_and_b32 %s, 0xffff0000, %s' % (v(d + 1), v(x)),
                       'v_lshlrev_b32 %s, 16, %s' % (v(o), v(b)), 'v_and_b32 %s, 0xffff0000, %s' % (v(o + 1), v(b)),
                       'v_add_f32 %s, %s, %s' % (v(o), v(o), v(d)), 'v_add_f32 %s, %s, %s' % (v(o + 1), v(o + 1), v(d + 1))]

        total = sum(len(x) for x in steps)
        jobs = []

        def spread(items, p0, p1):
            n = sum(1 for x in items if not x[0].startswith('s_'))
            k = 0
            for x in items:
                jobs.append((p0 + (k * (p1 - p0)) / max(n, 1), x))
                k += not x[0].startswith('s_')
        if plain:
            spread([x for g in range(NE) for x in self.w2_loads(g)], 16, total - 4)
        else:
            hs = self.o.get('hs_at', 44)
            jobs.append((hs, h_arrive))
            jobs.append((hs + 8, h_done))
            r0 = self.o.get('raw_at', 6)
            spread([(x, None) for x in raw], r0, r0 + 30)
            u0 = self.o.get('unp_at', 84)
            spread([(x, None) for x in unpack], u0, total - 22)
            spread([x for g in range(NE, 16) for x in self.w2_loads(g)], r0 + 30, total - 22)
            spread([x for g in (16, 17) for x in self.w2_loads(g)], total - 21, total - 9)
            jobs.append((total - 8, lambda: self.poll_issue(vP, s(sD), 'poll')))
        jobs.sort(key=lambda j: j[0])

        done = 0
        pending_post = []
        self.ds_since = 0
        counting = False
        for m, ts in enumerate(steps):
            n = len(ts)
            gaps = [[] for _ in range(n)]
            if m + 2 <= mmax:
                gaps[0].append(uread(m + 2))
            for i, x in enumerate(pending_post):
                gaps[min(n - 1, (i * n) // len(pending_post))].append(x)
            pending_post = []
            for i, t in enumerate(ts):
                sg = (t - m) // 2
                while any(q == sg for q, _ in pend_h):
                    I(pend_h.pop(0)[1])
                I('v_mfma_f32_16x16x32_bf16 %s, %s, %s, %s' % (
                    v(acc[t], 4), v(UF + 4 * (m % NU), 4), v(HF + 4 * sg, 4), '0' if m < 2 else v(acc[t], 4)))
                done += 1
                seq = [pend_h.pop(0)[1] for _ in range(min(2, len(pend_h)))] + gaps[i]
                while jobs and jobs[0][0] <= done:
                    seq.append(jobs.pop(0)[1])
                for x in seq:
                    if x is h_arrive:
                        assert not pend_h
                        counting = True
                    elif counting and isinstance(x, str) and x.startswith('ds_'):
                        self.ds_since += 1
                    self.run([x])
            if m % 4 == 1:
                self.stamp((50 if plain else 30) + m // 4)
            if m in acc:
                pending_post = post(m)
        assert not jobs and not pend_h
        self.run(pending_post)
        self.stamp_sync()

    def gemm2(self):
        I, e = self.I, self.e
        L = v(vL)
        ACC, HR, NR, WX, XN, OWN = 16, 76, 7, self.WX, self.XN, self.OWN
        PRE = self.o.get('pre', 3)
        e.forget()
        e.vm = [dict(tag='poll', wr={('v', vP)}), dict(tag='y', wr=set())]
        self.stamp(9)
        self.poll_check(vP, s(sD), 14)
        self.stamp(10)

        def hload(st):
            out = []
            for t in range(4):
                out.append('buffer_load_dwordx4 %s, %s, %s, %s offen sc1' % (
                    v(HR + 16 * (st % NR) + 4 * t, 4), v(8 + t), s(rWS, 4), s(sH0 if st == 0 else sHOFF)))
            out.append('s_add_u32 %s, %s, 4096' % (s(sHOFF), s(sHOFF)))
            return out
        for st in range(PRE):
            self.run(hload(st))
        I('s_lshl_b32 %s, %s, 1\ns_add_u32 %s, %s, %s\ns_lshl_b32 %s, %s, 2\ns_add_u32 %s, %s, %s' % (
            s(sB), s(sR2), s(sB), s(sB), s(sNU), s(sA), s(sB), s(sA), s(sA), s(sW)))
        I('s_lshl_b32 %s, %s, 7\ns_add_u32 %s, %s, %d\nv_and_b32 v14, 15, %s\nv_lshlrev_b32 v14, 3, v14' % (s(sA), s(sA), s(sA), s(sA), STC, L))
        I('buffer_load_dwordx2 v[4:5], v14, %s, %s offen sc1' % (s(rWS, 4), s(sA)))
        I('s_lshl_b32 %s, %s, 3\ns_add_u32 %s, %s, %s\ns_mul_i32 %s, %s, 10240\ns_add_u32 %s, %s, %d' % (
            s(sB), s(sB), s(sB), s(sB), s(sCT), s(sB), s(sB), s(sYOFF), s(sB), YP))
        I('s_lshl_b32 %s, %s, 7\ns_add_u32 %s, %s, %d' % (s(sB), s(sX), s(sB), s(sB), FY))
        I('s_lshl_b32 %s, %s, 7\ns_add_u32 %s, %s, %d' % (s(sD), s(sCT), s(sD), s(sD), FY))
        e.wait_tag('y', and_lg=0)
        I('s_barrier')
        self.signal_wave0([s(sB)], 6)

        def wfrag(st, n):
            fi = 5 * st + n
            return a(4 * fi, 4) if fi < 64 else v(WX + 4 * (fi - 64), 4)

        def tile(t, n):
            return OWN + 4 * n if t == 3 else ACC + 4 * (5 * t + n)

        def mfma(st, t, n):
            c = v(tile(t, n), 4)
            return 'v_mfma_f32_16x16x32_bf16 %s, %s, %s, %s' % (c, wfrag(st, n), v(HR + 16 * (st % NR) + 4 * t, 4), '0' if st == 0 and t < 3 else c)

        TAIL = 3
        pY, cY = self.o.get('pfy', 8), 14 - TAIL
        for st in range(14 - TAIL):
            mf = [mfma(st, t, n) for t in range(4) for n in range(5)]
            mem = hload(st + PRE) if st + PRE < 14 else []
            fill = []
            if st == 3:
                fill += ['v_mul_f32 v4, v4, v5'] + ['v_fma_f32 %s, %s, v5, -v4' % (v(XN + i), v(XN + i)) for i in range(20)]
            if st == 4:
                fill += ['v_lshlrev_b32 v6, 4, v0', 's_cmp_ge_u32 %s, 2\ns_cselect_b32 %s, %d, 8192' % (s(sW), s(sA), OOB),
                         'v_add_u32 v7, %s, v6' % s(sA),
                         'v_lshrrev_b32 v2, 3, v0', 'v_mul_u32_u24 v2, 144, v2', 'v_and_b32 v3, 7, v0', 'v_lshl_add_u32 v2, v3, 4, v2',
                         'v_lshrrev_b32 v13, 2, %s' % L, 'v_mul_u32_u24 v13, 144, v13', 'v_and_b32 v3, 3, %s' % L,
                         'v_lshl_add_u32 v13, v3, 3, v13', 's_lshl_b32 %s, %s, 5' % (s(sA), s(sW)), 'v_add_u32 v13, %s, v13' % s(sA)]
            if st == 5:
                for t, d in enumerate((3, 4, 5)):
                    fill += ['s_add_u32 %s, %s, %d' % (s(sA), s(sW), t + 1), 's_and_b32 %s, %s, 3' % (s(sA), s(sA)),
                             's_mul_i32 %s, %s, 15360' % (s(sA), s(sA)), 's_add_u32 %s, %s, %d' % (s(sA), s(sA), RED + 5120 * t),
                             'v_add_u32 %s, %s, %s' % (v(d), s(sA), v(vL16))]
                fill += ['s_mul_i32 %s, %s, 15360' % (s(sA), s(sW)), 's_add_u32 %s, %s, %d' % (s(sA), s(sA), RED),
                         'v_add_u32 v14, %s, %s' % (s(sA), v(vL16))]
            if st == pY:
                fill.append(lambda: self.poll_issue(vP, s(sD)))
            self.run(self.weave(mf, (mem, 1, 5), (fill, 0, 19.0 / max(len(fill), 1))))
            if st % 2 == 0:
                self.stamp(40 + st // 2)
        YR = HR + 16 * ((14 - TAIL - 1) % NR)
        self.poll_check(vP, s(sD), 32)
        self.stamp(11)
        I('s_add_u32 %s, %s, 4096' % (s(sA), s(sYOFF)))
        pend = ['buffer_load_dwordx4 %s, v6, %s, %s offen sc1' % (v(YR, 4), s(rWS, 4), s(sYOFF)),
                'buffer_load_dwordx4 %s, v6, %s, %s offen sc1' % (v(YR + 4, 4), s(rWS, 4), s(sA)),
                'buffer_load_dwordx4 %s, v7, %s, %s offen sc1' % (v(YR + 8, 4), s(rWS, 4), s(sYOFF))]
        for t in range(4):
            mf = [mfma(st, t, n) for n in range(5) for st in range(14 - TAIL, 14)]
            self.run(self.weave(mf, (pend, 0 if t == 0 else 2, 2 if t == 0 else 3)))
            pend = ['ds_write_b128 %s, %s offset:%d' % (v(3 + t), v(tile(t, n), 4), 1024 * n) for n in range(5)] if t < 3 else []
        for i in range(3):
            I('ds_write_b128 v2, %s offset:%d' % (v(YR + 4 * i, 4), YB + 32 * 144 * i))
        e.wait_lg(0)
        I('s_barrier')
        self.stamp(12)
        P, YT, OUT = HR, 16, 28
        for n in range(5):
            I('ds_read_b64_tr_b16 %s, v13 offset:%d' % (v(YT + 2 * n, 2), YB + 16 * 144 * n))
            for t in range(3):
                I('ds_read_b128 %s, v14 offset:%d' % (v(P + 12 * n + 4 * t, 4), 5120 * t + 1024 * n))
        for n in range(5):
            o = OWN + 4 * n
            for h in range(2):
                y = YT + 2 * n + h
                I('v_lshlrev_b32 %s, 16, %s\nv_and_b32 %s, 0xffff0000, %s' % (v(40 + 2 * h), v(y), v(41 + 2 * h), v(y)))
            for h in range(2):
                I('v_pk_fma_f32 %s, %s, %s, %s' % (v(o + 2 * h, 2), v(XN + 4 * n + 2 * h, 2), v(40 + 2 * h, 2), v(o + 2 * h, 2)))
            for h in range(2):
                p = P + 12 * n + 2 * h
                I('v_pk_add_f32 %s, %s, %s' % (v(p, 2), v(p, 2), v(p + 4, 2)))
                I('v_pk_add_f32 %s, %s, %s' % (v(o + 2 * h, 2), v(o + 2 * h, 2), v(p + 8, 2)))
            for h in range(2):
                I('v_pk_add_f32 %s, %s, %s' % (v(o + 2 * h, 2), v(o + 2 * h, 2), v(P + 12 * n + 2 * h, 2)))
            for h in range(2):
                I('v_cvt_pk_bf16_f32 %s, %s, %s' % (v(OUT + 2 * n + h), v(o + 2 * h), v(o + 2 * h + 1)))
            I('buffer_store_dwordx2 %s, v12, %s, %s offen offset:%d' % (v(OUT + 2 * n, 2), s(rOUT, 4), s(sT1), 32 * n))
        self.stamp(13)

    def experiments_head(self):
        I = self.I
        for i in range(self.o.get('x_code', 0) * 128):
            I('v_add3_u32 v%d, v0, v0, v0' % (100 + i % 4))
        n = self.o.get('x_lat', 0)
        if n:
            I('s_mul_i32 %s, s2, 10240\nv_mov_b32 v100, %s' % (s(sT0), s(sT0)))
            for i in range(n):
                I('global_load_dword v101, v100, s[20:21]\nv_and_b32 v101, 0, v101\nv_add3_u32 v100, v100, v101, 64\nv_add_u32 v100, 960, v100')

    def experiments_tail(self):
        I = self.I
        if 'x_pa' in self.o:
            r = self.e.raw
            r('    s_cmp_lg_u32 s2, %d\n    s_cbranch_scc1 L_end\n    s_waitcnt vmcnt(0) lgkmcnt(0)' % self.o.get('x_wg', 0))
            if self.o.get('x_skew'):
                r('    s_load_dword s30, s[34:35], 0x3000 glc\n    s_waitcnt lgkmcnt(0)\n    s_sub_u32 s30, s0, s30\n    s_mov_b32 s0, 0')
                r('    s_max_i32 s30, s30, 0')
            r('    s_sub_u32 s6, s30, s0\n    s_min_u32 s6, s6, 5000\n    s_mul_i32 s6, s6, %d' % self.o.get('x_k', 1))
            r('    s_memrealtime s[0:1]\n    s_waitcnt lgkmcnt(0)')
            r('L_xs:\n    s_memrealtime s[30:31]\n    s_waitcnt lgkmcnt(0)\n    s_sub_u32 s7, s30, s0\n    s_cmp_lt_u32 s7, s6\n    s_cbranch_scc1 L_xs')
        kind, n = self.o.get('x_tail', 0), self.o.get('x_n', 8)
        if kind:
            self.e.wait_all()
            I('s_load_dwordx2 s[20:21], s[0:1], 48')
            I('s_mov_b32 %s, 0x10000000' % s(rWS + 2))
            self.e.wait_lg(0)
            if kind == 1:
                I('s_mul_i32 %s, s2, 10240\nv_mov_b32 v100, %s' % (s(sT0), s(sT0)))
                for i in range(n):
                    I('global_load_dword v101, v100, s[20:21]\nv_and_b32 v101, 0, v101\nv_add3_u32 v100, v100, v101, 64\nv_add_u32 v100, 576, v100')
            else:
                base = {2: 0x2000000, 3: 0x2000000, 4: 0x2000000, 5: 0xF000000, 6: 0x2000000, 7: 0xF000000}[kind]
                step = {2: 0x400000, 3: 0x40000, 4: 0x40000, 5: 0x40000, 6: 0x40000, 7: 0x40000}[kind]
                I('s_lshl_b32 %s, s2, 10\ns_add_u32 %s, %s, %d\nv_lshl_add_u32 v100, v0, 2, %s' % (s(sT0), s(sT0), s(sT0), base, s(sT0)))
                for i in range(n):
                    if kind in (2, 3, 7):
                        I('buffer_load_dword v101, v100, %s, 0 offen' % s(rWS, 4))
                    elif kind in (4, 5):
                        I('buffer_store_dword v0, v100, %s, 0 offen sc1' % s(rWS, 4))
                    else:
                        I('buffer_store_dword v0, v100, %s, 0 offen' % s(rWS, 4))
                    self.e.wait_vm(0)
                    I('v_add_u32 v100, %d, v100' % step)
            self.stamp(14)
        n = self.o.get('x_alu', 0)
        if n:
            self.I('s_mov_b32 %s, 0' % s(sT0))
            self.e.label('L_xalu')
            for i in range(16):
                self.I('v_add_u32 v%d, v0, v0' % (100 + i % 4))
            self.I('s_add_u32 %s, %s, 1\ns_cmp_lt_u32 %s, %d\ns_cbranch_scc1 L_xalu' % (s(sT0), s(sT0), s(sT0), n))
            self.stamp(14)

    def build(self):
        e = self.e
        k = NAME + '_kernel'
        if self.o.get('x_list'):
            if self.o['x_list'] == 2:
                e.raw('; @launch kernel=nop_kernel grid=(256,1,1) block=(256,1,1) lds=0')
            e.raw('; @launch kernel=%s grid=(256,1,1) block=(256,1,1) lds=%d' % (k, LDS_BYTES))
            if self.o['x_list'] == 1:
                e.raw('; @launch kernel=nop_kernel grid=(256,1,1) block=(256,1,1) lds=0')
        else:
            e.raw('; @launch grid=(256,1,1) block=(256,1,1) lds=%d' % LDS_BYTES)
        e.raw('.amdgcn_target "amdgcn-amd-amdhsa--gfx950"')
        e.raw('.text\n.globl %s\n.p2align 8\n.type %s,@function\n%s:' % (k, k, k))
        self.entry()
        self.experiments_head()
        if self.o['stamps']:
            e.raw('    v_mov_b32 v254, 0')
        self.stamp(60, cyc=True)
        if 'x_pa' in self.o:
            self.srd(rOUT, 30, 2621440)
            self.srd = (lambda real: lambda r, p, n: None if r == rOUT else real(r, p, n))(self.srd)
        self.stamp(0)
        if self.o.get('x_skew'):
            e.raw('    s_cmp_lg_u32 s2, %d\n    s_cbranch_scc1 L_xk\n    s_waitcnt lgkmcnt(0)\n    v_mov_b32 v6, s0\n    v_mov_b32 v7, 0x3000' % self.o.get('x_ref', 0))
            e.raw('    buffer_store_dword v6, v7, s[60:63], 0 offen sc1\nL_xk:')
        self.stamp_sync()
        self.I('s_cmp_eq_u32 %s, 7\ns_cbranch_scc1 L_roleS' % s(sCC))
        hist = list(e.hist)
        self.role_g()
        e.label('L_roleS')
        e.written = {('v', i) for i in (0, 1, 2, 4, 5, 252, 255)}
        e.forget()
        e.hist = hist
        self.role_s()
        self.conv()
        self.gemm2()
        self.experiments_tail()
        self.stamp_flush()
        e.label('L_end')
        e.raw('    s_endpgm')
        if self.o.get('x_list'):
            e.raw('.globl nop_kernel\n.p2align 8\n.type nop_kernel,@function\nnop_kernel:\n    s_endpgm')
        e.raw('''.section .rodata,"a"
.p2align 6
.amdhsa_kernel %s
  .amdhsa_next_free_vgpr 512
  .amdhsa_next_free_sgpr 102
  .amdhsa_accum_offset 256
  .amdhsa_group_segment_fixed_size 0
  .amdhsa_kernarg_size 112
  .amdhsa_user_sgpr_count 2
  .amdhsa_user_sgpr_kernarg_segment_ptr 1
  .amdhsa_system_sgpr_workgroup_id_x 1
.end_amdhsa_kernel''' % k)
        if self.o.get('x_list'):
            e.raw('''.p2align 6
.amdhsa_kernel nop_kernel
  .amdhsa_next_free_vgpr 8
  .amdhsa_next_free_sgpr 16
  .amdhsa_accum_offset 8
  .amdhsa_group_segment_fixed_size 0
  .amdhsa_kernarg_size 112
  .amdhsa_user_sgpr_count 2
  .amdhsa_user_sgpr_kernarg_segment_ptr 1
  .amdhsa_system_sgpr_workgroup_id_x 1
.end_amdhsa_kernel''')
        return e.text()


if __name__ == '__main__':
    out = sys.argv[1]
    opt = dict(OPT)
    for kv in sys.argv[2:]:
        key, val = kv.split('=')
        opt[key] = int(val)
    g = Gen(opt)
    open(out, 'w').write(g.build())
    print('written', out, 'nop states', g.e.nops)
    for w in g.e.warn:
        print('WARN', w)
```

```python
import re
import struct
import sys
from emit import Emit, v, a, s, merge

NAME = 'parallel_sum__ssm_conv_h3__dense_activation_gelu__prompt'
OPT = dict(stamps=0, stop=None)

FS, FH, FK, FW, FY = 0x0, 0x800, 0x1000, 0x1800, 0x1C00
STA, STB, STC = 0x8000, 0x10000, 0x18000
STAMPS = 0x40000
UT = 0x100000
YP = 0x400000
W2P = 0x700000
HP = 0xA00000
WS_BYTES = 0x1100000
OOB = 0x40000000
SPIN_MAX = 200000

KV = 131072
KVSZ = 17408
MISC = 148480
CSX = MISC
LCNT = MISC + 512
W2S = 149504
LDS_BYTES = W2S + 12288
HBSZ, UBSZ = 4352, 4352
YB = 0
RED = 16384

sX, sSLOT, sW = 3, 4, 5
sT0, sT1 = 6, 7
pSHIFT, pSSMD, pB1, pB2, pDBG, pWS = 14, 18, 24, 28, 32, 34
rQ, rK, rV, rW1, rW2, rH, rWS, rOUT = 36, 40, 44, 48, 52, 56, 60, 64
sG4, sFH, sMU, sCC, sR, sQ, sTB, sNT0 = 68, 69, 70, 71, 72, 73, 74, 75
sKTB, sKCG = 76, 77
sA, sB, sC, sD = 78, 79, 80, 81
sSPIN, sVAL, sEARLY, sISG = 82, 83, 84, 85
sCH, sHB, sUB, sROUND = 86, 87, 88, 89
sI, sJ = 90, 91
sM = 92
sW2OFF, sST = 100, 101
sDX, sDW = 8, 9
sR2, sNU, sCT = 10, 11, 12
sHOFF = 20
sYOFF = 13
sW2S, sW2Q, sKW = 23, 26, 27
sLO = 16
sH0 = 17

vL = 1
vL16 = 252
vP = 253
vZ = 255


def f2u(x):
    return struct.unpack('<I', struct.pack('<f', x))[0]


def hexf(x):
    return '0x%08x' % f2u(x)


class Gen:
    def __init__(self, opt):
        self.o = opt
        self.e = Emit()
        self.nlab = 0
        self.I = self.e.I
        self.prev = None


    def capture(self, fn, *args):
        out = []
        real = self.I
        self.I = lambda text, tag=None: out.extend((ln.strip(), tag) for ln in text.strip().split('\n') if ln.strip())
        try:
            fn(*args)
        finally:
            self.I = real
        joined = []
        for ln, tag in out:
            if joined and re.match(r's_(cselect|addc|cbranch)', ln):
                joined[-1] = (joined[-1][0] + '\n' + ln, None)
            else:
                joined.append((ln, tag))
        return joined

    def lab(self, p='L'):
        self.nlab += 1
        return '%s_%d' % (p, self.nlab)

    def run(self, seq):
        for it in seq:
            if callable(it):
                it()
            elif isinstance(it, tuple):
                self.I(it[0], it[1])
            else:
                self.I(it)

    def stamp(self, idx, cyc=False):
        if 'x_pa' in self.o and not cyc:
            if idx == self.o['x_pa']:
                self.e.raw('    s_memrealtime s[0:1]')
            if idx == self.o['x_pb']:
                self.e.raw('    s_memrealtime s[30:31]')
        if not self.o['stamps']:
            return
        r = self.e.raw
        if self.prev is not None:
            r('    v_writelane_b32 v254, s0, %d' % self.prev)
        r('    %s s[0:1]' % ('s_memtime' if cyc else 's_memrealtime'))
        self.prev = idx
        if cyc or self.o['stamps'] == 2:
            self.stamp_sync()

    def stamp_sync(self):
        if self.o['stamps'] and self.prev is not None:
            self.e.raw('    s_waitcnt lgkmcnt(0)\n    v_writelane_b32 v254, s0, %d' % self.prev)
            self.prev = None

    def stamp_flush(self):
        if not self.o['stamps']:
            return
        self.stamp_sync()
        self.stamp(61, cyc=True)
        r = self.e.raw
        r('    s_lshl_b32 s0, s2, 10\n    s_add_u32 s0, s0, %d\n    v_lshlrev_b32 v253, 2, v0' % STAMPS)
        r('    buffer_store_dword v254, v253, %s, s0 offen' % s(rWS, 4))

    def srd(self, r, p, nbytes):
        self.I('s_mov_b32 %s, %s\ns_mov_b32 %s, %s\ns_mov_b32 %s, %d\ns_mov_b32 %s, 0x20000' % (
            s(r), s(p), s(r + 1), s(p + 1), s(r + 2), nbytes, s(r + 3)))

    def poll_issue(self, vd, soff, tag=None):
        self.I('buffer_load_dword %s, %s, %s, %s offen sc1' % (v(vd), v(vZ), s(rWS, 4), soff), tag)

    def poll_check(self, vd, soff, target, dbg=False):
        ok, again = self.lab('Lok'), self.lab('Lspin')
        self.I('v_readfirstlane_b32 %s, %s' % (s(sVAL), v(vd)))
        self.I('s_mov_b32 %s, 0' % s(sSPIN))
        self.I('s_cmp_ge_u32 %s, %s' % (s(sVAL), target))
        self.I('s_cbranch_scc1 ' + ok)
        self.e.label(again)
        if dbg:
            self.e.raw('    global_load_dword %s, %s, %s sc1' % (v(vd), v(vZ), s(pDBG, 2)))
        else:
            self.e.raw('    buffer_load_dword %s, %s, %s, %s offen sc1' % (v(vd), v(vZ), s(rWS, 4), soff))
        self.e.raw('    s_waitcnt vmcnt(0)')
        self.e.raw('    v_readfirstlane_b32 %s, %s' % (s(sVAL), v(vd)))
        self.e.raw('    s_add_u32 %s, %s, 1' % (s(sSPIN), s(sSPIN)))
        self.e.raw('    s_cmp_ge_u32 %s, %d' % (s(sSPIN), SPIN_MAX))
        self.e.raw('    s_cbranch_scc1 ' + ok)
        self.e.raw('    s_cmp_lt_u32 %s, %s' % (s(sVAL), target))
        self.e.raw('    s_cbranch_scc1 ' + again)
        self.e.label(ok)

    def signal(self, soffs, vt):
        self.I('v_mov_b32 %s, 1' % v(vt))
        self.I('s_mov_b64 exec, 1')
        for so in soffs:
            self.I('buffer_atomic_add %s, %s, %s, %s offen sc1' % (v(vt), v(vZ), s(rWS, 4), so))
        self.I('s_mov_b64 exec, -1')

    def signal_wave0(self, soffs, vt):
        lab = self.lab('Lsig')
        starts = len(self.e.vm)
        self.I('s_cmp_lg_u32 %s, 0' % s(sW))
        self.I('s_cbranch_scc1 ' + lab)
        self.signal(soffs, vt)
        del self.e.vm[starts:]
        self.e.label(lab)

    def arrive(self, cnt_off, vt):
        self.I('v_mov_b32 %s, 1\nv_mov_b32 %s, %d' % (v(vt), v(vt + 1), cnt_off))
        self.I('s_mov_b64 exec, 1')
        self.I('ds_add_rtn_u32 %s, %s, %s' % (v(vt + 1), v(vt + 1), v(vt)))
        self.I('s_mov_b64 exec, -1')

    def arrive_done(self, soff, vt):
        lab = self.lab('Lsig')
        self.I('v_readfirstlane_b32 %s, %s' % (s(sVAL), v(vt + 1)))
        self.I('s_cmp_lg_u32 %s, 3' % s(sVAL))
        self.I('s_cbranch_scc1 ' + lab)
        self.I('s_mov_b64 exec, 1')
        self.I('buffer_atomic_add %s, %s, %s, %s offen sc1' % (v(vt), v(vZ), s(rWS, 4), soff))
        self.I('s_mov_b64 exec, -1')
        self.e.vm.pop()
        self.e.label(lab)

    @staticmethod
    def weave(main, *lists):
        n = len(main)
        gaps = [[] for _ in range(n)]
        for items, start, step in lists:
            pos = float(start)
            held = []
            last = 0
            for it in items:
                txt = it if isinstance(it, str) else (it[0] if isinstance(it, tuple) else '')
                if step >= 2 and txt.startswith('s_'):
                    held.append(it)
                    continue
                g = min(int(pos), n - 1)
                gaps[max(g - 1, last)] += held
                held = []
                gaps[g].append(it)
                last = g
                pos += step
            gaps[min(int(pos), n - 1)] += held
        out = []
        for m, g in zip(main, gaps):
            out.append(m)
            out += g
        return out

    def entry(self):
        I = self.I
        I('s_cmp_ge_u32 s2, 256\ns_cbranch_scc1 L_end')
        I('s_load_dwordx16 s[8:23], s[0:1], 0\ns_load_dwordx8 s[24:31], s[0:1], 64\ns_load_dwordx4 s[32:35], s[0:1], 96')
        I('v_lshrrev_b32 v2, 6, v0\nv_and_b32 %s, 63, v0\nv_mov_b32 %s, 0' % (v(vL), v(vZ)))
        I('v_readfirstlane_b32 %s, v2' % s(sW))
        if self.o.get('x_map'):
            I('s_lshr_b32 %s, s2, 5\ns_and_b32 %s, s2, 31' % (s(sX), s(sSLOT)))
        else:
            I('s_and_b32 %s, s2, 7\ns_lshr_b32 %s, s2, 3' % (s(sX), s(sSLOT)))
        I('s_lshr_b32 %s, %s, 1\ns_and_b32 %s, %s, 1' % (s(sG4), s(sX), s(sFH), s(sX)))
        I('s_lshr_b32 %s, %s, 3\ns_and_b32 %s, %s, 7' % (s(sMU), s(sSLOT), s(sCC), s(sSLOT)))
        I('s_lshl_b32 %s, %s, 2\ns_add_u32 %s, %s, %s' % (s(sR), s(sG4), s(sR), s(sR), s(sMU)))
        I('s_lshl_b32 %s, %s, 3\ns_add_u32 %s, %s, %s' % (s(sQ), s(sFH), s(sQ), s(sQ), s(sCC)))
        I('s_lshl_b32 %s, %s, 9\ns_lshl_b32 %s, %s, 4\ns_add_u32 %s, %s, %s' % (
            s(sTB), s(sG4), s(sT0), s(sMU), s(sTB), s(sTB), s(sT0)))
        I('v_lshrrev_b32 v2, 5, v0\nv_mul_u32_u24 v2, %d, v2\nv_and_b32 v3, 31, v0\nv_lshl_add_u32 v2, v3, 3, v2' % (64 * 1280))
        I('s_add_u32 %s, %s, %s\ns_mul_i32 %s, %s, 1280' % (s(sA), s(sTB), s(sQ), s(sA), s(sA)))
        I('v_lshrrev_b32 v6, 3, %s\nv_lshrrev_b32 v7, 5, %s\nv_lshlrev_b32 v7, 1, v7\nv_and_b32 v8, 7, %s' % (v(vL), v(vL), v(vL)))
        I('v_xor_b32 v8, v8, v7\nv_mul_u32_u24 v6, 1280, v6\nv_lshl_add_u32 v4, v8, 4, v6\nv_xor_b32 v5, 64, v4')
        I('v_lshlrev_b32 %s, 4, %s' % (v(vL16), v(vL)))
        I('s_lshl_b32 %s, %s, 2\ns_add_u32 %s, %s, %s' % (s(sD), s(sX), s(sD), s(sD), s(sMU)))
        self.e.wait_lg(0)
        self.srd(rQ, 8, 2621440)
        self.srd(rWS, pWS, WS_BYTES)

    def code_prefetch(self):
        if not self.o.get('pf', 0):
            return
        I = self.I
        lab = self.lab('Lpc')
        I('s_getpc_b64 %s' % s(sA, 2))
        I(lab + ':')
        I('s_lshl_b32 %s, %s, 10\nv_and_b32 v6, 7, %s\nv_lshl_add_u32 v6, v6, 7, %s' % (s(sT0), s(sSLOT), v(vL), s(sT0)))
        I('v_min_u32 v6, L_end-%s, v6' % lab)
        I('v_mov_b32 v7, %s\nv_add_co_u32 v6, vcc, %s, v6\nv_addc_co_u32 v7, vcc, 0, v7, vcc' % (s(sA + 1), s(sA)))
        I('global_load_dword v9, v[6:7], off')

    def stats_issue(self):
        for i in range(5):
            self.I('buffer_load_dwordx2 %s, v2, %s, %s offen offset:%d' % (v(10 + 2 * i, 2), s(rQ, 4), s(sA), 256 * i))

    def stats_sums(self):
        I = self.I
        I('v_mov_b32 v240, 0\nv_mov_b32 v241, 0\nv_mov_b32 v242, 0x3f803f80')
        for i in range(10):
            I('v_dot2c_f32_bf16 v240, v%d, v242' % (10 + i))
        for i in range(10):
            I('v_dot2c_f32_bf16 v241, v%d, v%d' % (10 + i, 10 + i))

    def stats_finish(self):
        I = self.I
        C0 = -2.0 * 0.7978845608028654 * 1.4426950408889634
        I('s_lshl_b32 %s, %s, 4\ns_add_u32 %s, %s, %s' % (s(sA), s(sR), s(sA), s(sA), s(sQ)))
        for mod in ('quad_perm:[1,0,3,2]', 'quad_perm:[2,3,0,1]', 'row_half_mirror', 'row_mirror'):
            I('v_add_f32_dpp v240, v240, v240 %s row_mask:0xf bank_mask:0xf' % mod)
            I('v_add_f32_dpp v241, v241, v241 %s row_mask:0xf bank_mask:0xf' % mod)
        I('v_mov_b32 v242, v240\nv_mov_b32 v243, v241')
        I('s_lshl_b32 %s, %s, 7\ns_add_u32 %s, %s, %d' % (s(sB), s(sA), s(sB), s(sB), STA))
        I('v_permlane16_swap_b32 v240, v242\nv_permlane16_swap_b32 v241, v243')
        I('v_add_f32 v240, v240, v242\nv_add_f32 v241, v241, v243')
        I('v_mul_f32 v10, %s, v240\nv_mul_f32 v241, %s, v241' % (hexf(1 / 640), hexf(1 / 640)))
        I('v_fma_f32 v241, -v10, v10, v241\nv_cvt_pk_bf16_f32 v12, -v10, -v10\nv_max_f32 v241, 0, v241')
        I('v_add_f32 v241, %s, v241\nv_and_b32 v242, 0xffff0000, v12\nv_rsq_f32 v11, v241' % hexf(1e-5))
        I('v_sub_f32 v242, -v10, v242\nv_lshrrev_b32 v243, 5, v0\nv_mul_f32 v18, v241, v11')
        I('v_mul_f32 v16, %s, v11\nv_cvt_pk_bf16_f32 v13, v242, v18\nv_mul_f32 v17, v11, v11' % hexf(C0))
        I('v_and_b32 v242, 0xffff0000, v13\nv_mul_f32 v17, %s, v17\nv_sub_f32 v242, v18, v242' % hexf(0.044715))
        I('v_mul_f32 v17, v17, v16\nv_cvt_pk_bf16_f32 v14, v242, 0\nv_mov_b32 v15, 0\nv_mov_b32 v19, v11')
        I('v_lshlrev_b32 v242, 4, v243\nv_lshlrev_b32 v243, 3, v243')
        I('s_add_u32 %s, %s, %d\ns_lshl_b32 %s, %s, 6\ns_add_u32 %s, %s, %d' % (s(sC), s(sB), STB - STA, s(sA), s(sA), s(sA), s(sA), STC))
        I('s_mov_b32 exec_lo, 1\ns_mov_b32 exec_hi, 1')
        I('buffer_store_dwordx4 v[12:15], v242, %s, %s offen sc1' % (s(rWS, 4), s(sB)), 'stat')
        I('buffer_store_dwordx4 v[16:19], v242, %s, %s offen sc1' % (s(rWS, 4), s(sC)), 'stat')
        I('buffer_store_dwordx2 v[10:11], v243, %s, %s offen sc1' % (s(rWS, 4), s(sA)), 'stat')
        I('s_mov_b64 exec, -1')

    KA, KSH, KST, KID, KW1, KF, KS, KVT, KPK = 192, 195, 197, 200, 204, 64, 212, 112, 244

    def kv_task(self, kappa):
        self.I('s_and_b32 %s, %s, 31\ns_lshr_b32 %s, %s, 5' % (s(sKTB), s(kappa), s(sKCG), s(kappa)))

    def kv_issue(self, lds, vshift):
        I = self.I
        I('s_lshl_b32 %s, %s, 6\ns_mul_i32 %s, %s, 1280\ns_lshl_b32 %s, %s, 7\ns_add_u32 %s, %s, %s' % (
            s(sA), s(sKTB), s(sA), s(sA), s(sB), s(sKCG), s(sA), s(sA), s(sB)))
        I('s_sub_u32 %s, %s, %d\ns_cmp_eq_u32 %s, 0\ns_cselect_b32 %s, %d, %s' % (s(sB), s(sA), 8 * 1280, s(sKTB), s(sB), 2621440, s(sB)))
        I('s_mov_b32 m0, %d\ns_lshl_b32 %s, %s, 11' % (lds, s(sC), s(sW)))
        I('buffer_load_dwordx4 v4, %s, %s offen nt lds' % (s(rK, 4), s(sB)), 'kv')
        I('s_add_u32 m0, %s, %d' % (s(sC), lds + 1024))
        I('s_mul_i32 %s, %s, %d\ns_add_u32 %s, %s, %s' % (s(sB), s(sW), 16 * 1280, s(sA), s(sA), s(sB)))
        I('buffer_load_dwordx4 v5, %s, %s offen nt lds' % (s(rK, 4), s(sA)), 'kv')
        I('s_add_u32 m0, %s, %d\ns_add_u32 %s, %s, %d' % (s(sC), lds + 2048, s(sB), s(sA), 8 * 1280))
        I('buffer_load_dwordx4 v4, %s, %s offen nt lds' % (s(rK, 4), s(sB)), 'kv')
        I('s_add_u32 m0, %s, %d\nv_and_b32 v6, 15, %s' % (s(sC), lds + 9216, v(vL)))
        I('buffer_load_dwordx4 v4, %s, %s offen nt lds' % (s(rV, 4), s(sA)), 'kv')
        I('s_add_u32 m0, %s, %d\nv_lshlrev_b32 v6, 3, v6' % (s(sC), lds + 9216 + 1024))
        I('buffer_load_dwordx4 v5, %s, %s offen nt lds' % (s(rV, 4), s(sB)), 'kv')
        I('s_lshl_b32 %s, %s, 2\ns_add_u32 %s, %s, %s\ns_lshl_b32 %s, %s, 7' % (s(sA), s(sKCG), s(sA), s(sA), s(sW), s(sA), s(sA)))
        I('v_add_u32 v6, %s, v6' % s(sA))
        I('global_load_dwordx2 %s, v6, %s' % (v(vshift, 2), s(pSHIFT, 2)), 'kv')

    def kv_setup(self, hi):
        I = self.I
        L = v(vL)
        I('v_and_b32 v6, 3, %s\nv_lshlrev_b32 v6, 2, v6\nv_bfe_u32 v7, %s, 2, 2\nv_add_u32 v6, v6, v7' % (L, L))
        I('v_bfe_u32 v7, %s, 4, 1\ns_lshl_b32 %s, %s, 1\nv_add_u32 v7, %s, v7' % (L, s(sA), s(sW), s(sA)))
        I('v_lshrrev_b32 v8, 5, %s' % L)
        for k, (off, sub) in enumerate(((8, True), (6, True), (72, False))):
            I('v_add_u32 v9, %d, v6' % (off + hi // 128))
            if sub:
                I('v_sub_u32 v9, v9, v8')
            I('v_bfe_u32 v3, %s, 2, 2' % ('v9' if sub else 'v6'))
            I('v_lshlrev_b32 v3, 1, v3\nv_xor_b32 v3, v3, v7\nv_lshlrev_b32 v3, 4, v3\nv_lshl_add_u32 %s, v9, 7, v3' % v(self.KA + k))
        I('v_bfe_u32 v6, %s, 3, 1\nv_bfe_u32 v7, %s, 4, 1\nv_bfe_u32 v9, %s, 1, 2\nv_cmp_eq_u32 vcc, v6, v7' % (L, L, L))
        I('v_lshlrev_b32 %s, 4, v8\nv_and_b32 %s, 1, %s' % (v(self.KSH), v(self.KSH + 1), L))
        I('v_cndmask_b32 v9, 7, v9, vcc\nv_lshlrev_b32 %s, 4, %s' % (v(self.KSH + 1), v(self.KSH + 1)))
        for d in range(4):
            I('v_cmp_eq_u32 %s, %d, v9' % (s(sM + 2 * d, 2), d))
        I('v_cmp_gt_u32 vcc, 32, %s\nv_mov_b32 v6, 0x3f80\nv_and_b32 v3, 15, %s' % (L, L))
        I('v_cndmask_b32 v6, 0, v6, vcc\nv_lshlrev_b32 v6, %s, v6' % v(self.KSH + 1))
        for d in range(4):
            I('v_cndmask_b32 %s, 0, v6, %s' % (v(self.KID + d), s(sM + 2 * d, 2)))
        I('v_lshlrev_b32 v3, 12, v3\nv_lshrrev_b32 v7, 4, %s\nv_lshl_add_u32 %s, v7, 4, v3' % (L, v(self.KST)))

    def kv_weights(self, vshift):
        I = self.I
        for j in range(2):
            I('v_lshrrev_b32 v6, %s, %s\nv_and_b32 v6, 0xffff, v6\nv_lshlrev_b32 v6, %s, v6' % (v(self.KSH), v(vshift + j), v(self.KSH + 1)))
            for d in range(4):
                I('v_cndmask_b32 %s, 0, v6, %s' % (v(self.KW1 + 4 * j + d), s(sM + 2 * d, 2)))

    def kv_reads(self, base):
        for b in range(4):
            for i in range(3):
                self.I('ds_read_b128 %s, %s offset:%d' % (v(self.KF + 12 * b + 4 * i, 4), v(self.KA + i), base + 2048 * b))

    def kv_compute(self):
        I = self.I
        F, KS, VT, PK = self.KF, self.KS, self.KVT, self.KPK
        I('s_lshl_b32 %s, %s, 2\ns_add_u32 %s, %s, %s\ns_lshl_b32 %s, %s, 16' % (s(sA), s(sKCG), s(sA), s(sA), s(sW), s(sA), s(sA)))
        I('s_lshl_b32 %s, %s, 7\ns_add_u32 %s, %s, %s\ns_add_u32 %s, %s, %d' % (s(sB), s(sKTB), s(sA), s(sA), s(sB), s(sA), s(sA), UT))
        mf = []
        for b in range(4):
            mf.append('v_mfma_f32_16x16x32_bf16 %s, %s, %s, 0' % (v(KS + 4 * b, 4), v(F + 12 * b, 4), v(self.KW1, 4)))
            mf.append('v_mfma_f32_16x16x32_bf16 %s, %s, %s, 0' % (v(VT + 4 * b, 4), v(F + 12 * b + 8, 4), v(self.KID, 4)))
            mf.append('v_mfma_f32_16x16x32_bf16 %s, %s, %s, %s' % (v(KS + 4 * b, 4), v(F + 12 * b + 4, 4), v(self.KW1 + 4, 4), v(KS + 4 * b, 4)))

        def fin(b):
            out = ['v_mul_f32 %s, %s, %s' % (v(KS + 4 * b + i), v(KS + 4 * b + i), v(VT + 4 * b + i)) for i in range(4)]
            out += ['v_cvt_pk_bf16_f32 %s, %s, %s' % (v(PK + 2 * b + i), v(KS + 4 * b + 2 * i), v(KS + 4 * b + 2 * i + 1)) for i in range(2)]
            if b & 1:
                out.append(('buffer_store_dwordx4 %s, %s, %s, %s offen offset:%d sc1' % (
                    v(PK + 2 * b - 2, 4), v(self.KST), s(rWS, 4), s(sA), 32 * (b - 1)), 'prep'))
            return out
        self.run(mf[:8] + merge(mf[8:], fin(0), 0) + fin(1) + fin(2) + fin(3))

    W2A, W2F = 228, 52

    def w2_setup(self):
        I = self.I
        I('s_lshr_b32 %s, %s, 2\ns_and_b32 %s, %s, 3' % (s(sW2S), s(sT0), s(sW2Q), s(sT0)))
        for i in range(3):
            I('v_add_u32 v6, %d, v0\nv_mul_u32_u24 v7, 3277, v6\nv_lshrrev_b32 v7, 16, v7\nv_mul_u32_u24 v8, 20, v7\nv_sub_u32 v8, v6, v8' % (256 * i))
            I('v_mul_u32_u24 v7, 1280, v7\nv_lshl_add_u32 %s, v8, 4, v7' % v(self.W2A + i))
        I('s_cmp_ge_u32 %s, 2\ns_cselect_b32 %s, %d, 0' % (s(sW), s(sA), OOB))
        I('v_add_u32 %s, %s, %s' % (v(self.W2A + 2), s(sA), v(self.W2A + 2)))
        I('s_mul_i32 %s, %s, %d\ns_mul_i32 %s, %s, 320\ns_add_u32 %s, %s, %s' % (s(sKW), s(sW2S), 32 * 1280, s(sA), s(sW2Q), s(sKW), s(sKW), s(sA)))

    def w2_issue(self):
        I = self.I
        for i in range(3):
            I('s_lshl_b32 %s, %s, 10\ns_add_u32 m0, %s, %d' % (s(sA), s(sW), s(sA), W2S + 4096 * i))
            I('buffer_load_dwordx4 %s, %s, %s offen nt lds' % (v(self.W2A + i), s(rW2, 4), s(sKW)), 'kv')

    def w2_addr(self):
        I = self.I
        L = v(vL)
        I('v_lshrrev_b32 v7, 2, %s\nv_mul_u32_u24 v7, 320, v7\nv_and_b32 v6, 3, %s\nv_lshl_add_u32 v7, v6, 3, v7' % (L, L))
        I('s_lshl_b32 %s, %s, 5\ns_add_u32 %s, %s, %d\nv_add_u32 %s, %s, v7' % (s(sA), s(sW), s(sA), s(sA), W2S, v(self.W2A + 3), s(sA)))
        I('s_mul_i32 %s, %s, 108\ns_add_u32 %s, %s, %s\ns_mul_i32 %s, %s, 5120\ns_lshl_b32 %s, %s, 10\ns_add_u32 %s, %s, %s' % (
            s(sA), s(sW2Q), s(sA), s(sA), s(sW2S), s(sA), s(sA), s(sB), s(sW), s(sA), s(sA), s(sB)))
        I('s_add_u32 %s, %s, %d\ns_cmp_ge_u32 %s, 54\ns_cselect_b32 %s, %d, %s' % (s(sA), s(sA), W2P, s(sW2S), s(sHOFF), WS_BYTES, s(sA)))
        I('s_movk_i32 %s, 4096\ns_cmp_eq_u32 %s, 0\ns_cselect_b32 %s, %s, %d' % (s(sA), s(sW), s(sA), s(sA), 54 * 5120 - 1024))
        I('s_add_u32 %s, %s, %s' % (s(sHOFF + 1), s(sHOFF), s(sA)))
        I('s_mov_b32 %s, %d\ns_cmp_ge_u32 %s, 2\ns_cselect_b32 %s, %s, %d' % (s(sA), WS_BYTES, s(sW), s(sA), s(sA), 54 * 5120 + 3072))
        I('s_add_u32 %s, %s, %s' % (s(sHOFF + 2), s(sHOFF), s(sA)))

    def w2_reads(self):
        for i in range(3):
            for hf in range(2):
                self.I('ds_read_b64_tr_b16 %s, %s offset:%d' % (v(self.W2F + 4 * i + 2 * hf, 2), v(self.W2A + 3), 5120 * hf + 128 * i))

    def w2_stores(self):
        for i in range(3):
            self.I('buffer_store_dwordx4 %s, %s, %s, %s offen sc1' % (v(self.W2F + 4 * i, 4), v(vL16), s(rWS, 4), s(sHOFF + i)), 'prep')

    def lds_init(self):
        self.I('v_mov_b32 v6, %d\nds_write2_b32 v6, v255, v255 offset1:1' % LCNT)

    def gemm2_ids(self):
        I = self.I
        I('s_lshl_b32 %s, %s, 1\ns_lshr_b32 %s, %s, 4\ns_add_u32 %s, %s, %s' % (s(sR2), s(sX), s(sT0), s(sSLOT), s(sR2), s(sR2), s(sT0)))
        I('s_bfe_u32 %s, %s, 0x10003\ns_and_b32 %s, %s, 7' % (s(sNU), s(sSLOT), s(sCT), s(sSLOT)))
        I('s_mul_i32 %s, %s, 13\ns_cmp_lg_u32 %s, 0\ns_addc_u32 %s, %s, 0' % (s(sST), s(sW), s(sW), s(sST), s(sST)))
        I('s_mul_i32 %s, %s, 54\ns_add_u32 %s, %s, %s\ns_mul_i32 %s, %s, 5120\ns_add_u32 %s, %s, %d' % (
            s(sW2OFF), s(sCT), s(sW2OFF), s(sW2OFF), s(sST), s(sW2OFF), s(sW2OFF), s(sW2OFF), s(sW2OFF), W2P))

    def late_setup(self):
        I = self.I
        L = v(vL)
        I('v_bfe_u32 v2, %s, 2, 2\nv_lshrrev_b32 v6, 4, %s\nv_lshlrev_b32 v7, 1, v6\nv_sub_u32 v3, v2, v7\nv_lshlrev_b32 v3, 5, v3' % (L, L))
        I('v_and_b32 v7, 3, %s\nv_sub_u32 v4, v7, v2\nv_lshl_add_u32 v2, v7, 3, v3\ns_add_u32 %s, %s, 224\nv_add_u32 v2, %s, v2' % (L, s(sT0), s(sUB), s(sT0)))
        I('v_add_u32 v3, 2048, v2\nv_lshlrev_b32 v4, 3, v4\nv_lshl_add_u32 v4, v6, 6, v4')
        I('s_add_u32 %s, %s, 32\nv_add_u32 v4, %s, v4' % (s(sT0), s(sHB), s(sT0)))
        I('v_lshlrev_b32 v13, 3, v6')
        I('v_lshrrev_b32 v6, 3, %s\nv_mul_u32_u24 v6, %d, v6\nv_and_b32 v7, 7, %s\nv_lshl_add_u32 v5, v7, 4, v6' % (L, 640 * 128, L))
        I('v_lshlrev_b32 v7, 6, v7\nv_bfe_u32 v6, %s, 3, 1\nv_add_u32 v6, v6, v7\nv_mul_u32_u24 v6, 1280, v6\nv_add_u32 v12, v6, v13' % L)
        I('s_lshr_b32 %s, %s, 2\ns_lshl_b32 %s, %s, 9\ns_and_b32 %s, %s, 3\ns_lshl_b32 %s, %s, 4\ns_add_u32 %s, %s, %s' % (
            s(sT1), s(sR2), s(sT1), s(sT1), s(sT0), s(sR2), s(sT0), s(sT0), s(sT1), s(sT1), s(sT0)))
        I('s_lshl_b32 %s, %s, 3\ns_add_u32 %s, %s, %s\ns_lshl_b32 %s, %s, 1\ns_add_u32 %s, %s, %s' % (
            s(sT0), s(sNU), s(sT1), s(sT1), s(sT0), s(sT0), s(sW), s(sT1), s(sT1), s(sT0)))
        I('s_mul_i32 %s, %s, 1280\ns_mul_i32 %s, %s, 160\ns_add_u32 %s, %s, %s' % (s(sT1), s(sT1), s(sT0), s(sCT), s(sT1), s(sT1), s(sT0)))
        I('v_add_u32 v13, %s, v13' % s(sT0))
        for t in range(4):
            I('s_add_u32 %s, %s, %d\ns_and_b32 %s, %s, 3\ns_lshl_b32 %s, %s, 10\nv_add_u32 %s, %s, %s' % (
                s(sT0), s(sW), t + 1, s(sT0), s(sT0), s(sT0), s(sT0), v(8 + t), s(sT0), v(vL16)))
        I('s_lshl_b32 %s, %s, 1\ns_add_u32 %s, %s, %s\ns_mul_i32 %s, %s, 54\ns_add_u32 %s, %s, %s' % (
            s(sT0), s(sR2), s(sT0), s(sT0), s(sNU), s(sT0), s(sT0), s(sT0), s(sT0), s(sST)))
        I('s_lshl_b32 %s, %s, 12\ns_add_u32 %s, %s, %d' % (s(sT0), s(sT0), s(sHOFF), s(sT0), HP))
        I('s_cmp_ge_u32 %s, 2\ns_cselect_b32 %s, %d, %s' % (s(sW), s(sH0), WS_BYTES, s(sHOFF)))

    def h_issue(self, hb, ch, vD):
        I = self.I
        I('s_add_u32 m0, %s, 32\ns_lshl_b32 %s, %s, 12' % (s(hb), s(sA), s(ch)))
        for i in range(4):
            I('buffer_load_dwordx4 %s, %s, %s offen offset:%d nt lds' % (v(vL16), s(rH, 4), s(sA), 1024 * i), 'h')
        I('s_lshl_b32 %s, %s, 1\nv_mov_b32 v6, %s' % (s(sA), s(ch), s(sA)))
        I('global_load_ushort %s, v6, %s' % (v(vD), s(pSSMD, 2)), 'h')

    def u_issue(self, ch, dst):
        self.I('s_lshl_b32 %s, %s, 12\ns_add_u32 %s, %s, %d' % (s(sA), s(ch), s(sA), s(sA), UT))
        for i in range(4):
            self.I('buffer_load_dwordx4 %s, %s, %s, %s offen offset:%d sc1' % (dst(4 * i, 4), v(vL16), s(rWS, 4), s(sA), 1024 * i), 'u')

    def conv_pads(self, hb, ub):
        I = self.I
        I('v_lshl_add_u32 v6, %s, 2, %s\nds_write_b32 v6, %s' % (v(vL), s(ub), v(vZ)))
        I('v_and_b32 v7, 7, %s\nv_lshl_add_u32 v7, v7, 2, %s\nds_write_b32 v7, %s' % (v(vL), s(hb), v(vZ)))

    def conv_dfix_a(self, hb):
        self.I('v_mov_b32 v14, %s\nds_read_u16 v15, v14 offset:32' % s(hb))

    def conv_dfix_b(self, vD):
        self.I('v_lshlrev_b32 v6, 16, %s\nv_lshlrev_b32 v15, 16, v15\nv_add_f32 v15, v15, v6\nv_cvt_pk_bf16_f32 v15, v15, v15' % v(vD))
        self.I('ds_write_b16 v14, v15 offset:32')

    def conv_ustage(self, ub, src):
        I = self.I
        L = v(vL)
        I('v_lshrrev_b32 v6, 2, %s\nv_lshlrev_b32 v6, 6, v6\nv_and_b32 v7, 3, %s\nv_lshl_add_u32 v6, v7, 3, v6' % (L, L))
        I('s_add_u32 %s, %s, 256\nv_add_u32 v6, %s, v6\nv_add_u32 v7, 2048, v6' % (s(sT0), s(ub), s(sT0)))
        for i in range(4):
            I('ds_write2_b64 %s, %s, %s offset0:%d offset1:%d' % (v(6 + i // 2), src(4 * i, 2), src(4 * i + 2, 2), 128 * (i & 1), 128 * (i & 1) + 4))

    WX = 188

    def w2_loads(self, g):
        out = [('s_add_u32 %s, %s, %d' % (s(sC), s(sW2OFF), 4096 * g), None)]
        for i in range(4 if g < 17 else 2):
            dst = a(16 * g + 4 * i, 4) if g < 16 else v(self.WX + 16 * (g - 16) + 4 * i, 4)
            out.append(('buffer_load_dwordx4 %s, %s, %s, %s offen offset:%d sc1' % (dst, v(vL16), s(rWS, 4), s(sC), 1024 * i), None))
        return out

    XA, WA, DX, DW, ONES, CS, B1 = 20, 24, 32, 36, 40, 44, 248
    ACC, FR = 64, 128
    XB, KK, AX = 192, 208, 224

    def g1_setup(self):
        I = self.I
        L = v(vL)
        I('s_mul_i32 %s, %s, 7\ns_add_u32 %s, %s, %s\ns_lshl_b32 %s, %s, 2\ns_min_u32 %s, %s, 50' % (
            s(sT0), s(sFH), s(sT0), s(sT0), s(sCC), s(sNT0), s(sT0), s(sNT0), s(sNT0)))
        I('v_lshrrev_b32 v6, 3, %s\nv_mul_u32_u24 v6, %d, v6\nv_lshrrev_b32 v7, 4, %s\nv_and_b32 v8, 7, %s\nv_xor_b32 v8, v8, v7' % (L, 64 * 1280, L, L))
        I('v_lshl_add_u32 %s, v8, 4, v6' % v(self.DX))
        I('v_xor_b32 v6, 64, %s' % v(self.DX))
        I('v_add_u32 %s, 256, v6\nv_add_u32 %s, 512, %s\nv_add_u32 %s, 768, v6' % (v(self.DX + 1), v(self.DX + 2), v(self.DX), v(self.DX + 3)))
        I('v_mul_u32_u24 v6, 3456, v7\nv_lshlrev_b32 v7, 2, v7\nv_and_b32 v8, 15, %s\nv_xor_b32 v8, v8, v7\nv_lshl_add_u32 %s, v8, 4, v6' % (L, v(self.DW)))
        I('v_xor_b32 v8, 2, v8\nv_lshl_add_u32 v6, v8, 4, v6')
        step = 4 * 3456 - 1024
        I('v_add_u32 %s, %d, %s\nv_add_u32 %s, %d, v6\nv_add_u32 %s, %d, v6' % (
            v(self.DW + 1), step, v(self.DW), v(self.DW + 2), 2 * step, v(self.DW + 3), 3 * step))
        I('s_lshl_b32 %s, %s, 2\ns_add_u32 %s, %s, %s\ns_mul_i32 %s, %s, 1280' % (s(sT0), s(sW), s(sT0), s(sT0), s(sTB), s(sDX), s(sT0)))
        I('s_mul_i32 %s, %s, %d\ns_lshl_b32 %s, %s, 6\ns_add_u32 %s, %s, %s' % (s(sDW), s(sW), 16 * 3456, s(sT0), s(sNT0), s(sDW), s(sDW), s(sT0)))
        I('s_lshl_b32 %s, %s, 12' % (s(sD), s(sW)))

    def g1_dma(self, c):
        slot = (c % 4) * 32768
        out = [('s_add_u32 m0, %s, %d' % (s(sD), slot), None)]
        for i in range(4):
            out.append(('buffer_load_dwordx4 %s, %s, %s offen offset:%d lds' % (v(self.DX + i), s(rQ, 4), s(sDX), 1024 * i), 'c%d' % c))
        second = [('s_add_u32 m0, %s, %d' % (s(sD), slot + 16384), None), ('s_add_u32 %s, %s, 128' % (s(sDX), s(sDX)), None)]
        for i in range(4):
            second.append(('buffer_load_dwordx4 %s, %s, %s offen offset:%d lds' % (v(self.DW + i), s(rW1, 4), s(sDW), 1024 * i), 'c%d' % c))
        second.append(('s_add_u32 %s, %s, %d' % (s(sDW), s(sDW), 64 * 3456), None))
        return out, second

    def g1_frag_setup(self):
        I = self.I
        L = v(vL)
        I('s_lshr_b32 %s, %s, 1\ns_and_b32 %s, %s, 1' % (s(sI), s(sW), s(sJ), s(sW)))
        I('v_and_b32 v6, 15, %s\nv_lshrrev_b32 v7, 1, v6\nv_lshrrev_b32 v8, 4, %s\nv_xor_b32 v7, v7, v8' % (L, L))
        I('s_lshl_b32 %s, %s, 13\nv_lshlrev_b32 v6, 7, v6\nv_add_u32 v6, %s, v6' % (s(sT0), s(sJ), s(sT0)))
        I('v_lshl_add_u32 %s, v7, 4, v6\nv_xor_b32 %s, 64, %s' % (v(self.XA), v(self.XA + 1), v(self.XA)))
        I('v_add_u32 %s, 0x10000, %s\nv_add_u32 %s, 0x10000, %s' % (v(self.XA + 2), v(self.XA), v(self.XA + 3), v(self.XA + 1)))
        I('v_bfe_u32 v6, %s, 2, 2\nv_lshl_add_u32 v7, v8, 3, v6\nv_lshlrev_b32 v7, 8, v7\nv_and_b32 v9, 3, %s\nv_lshl_add_u32 v7, v9, 3, v7' % (L, L))
        I('v_add_u32 v7, 16384, v7\nv_and_b32 v8, 1, v8\nv_lshl_add_u32 v6, v6, 1, v8\ns_lshl_b32 %s, %s, 1\nv_xor_b32 v6, %s, v6' % (s(sT0), s(sW), s(sT0)))
        I('v_lshl_add_u32 %s, v6, 5, v7' % v(self.WA))
        for k in range(1, 4):
            I('v_xor_b32 %s, %d, %s' % (v(self.WA + k), 32 * k, v(self.WA)))
        for k in range(4):
            I('v_add_u32 %s, 0x10000, %s' % (v(self.WA + 4 + k), v(self.WA + k)))
        for k in range(4):
            I('v_mov_b32 %s, 0x3f803f80' % v(self.ONES + k))

    def b1_issue(self):
        I = self.I
        I('s_add_u32 %s, %s, %s\ns_lshl_b32 %s, %s, 6' % (s(sA), s(sW), s(sNT0), s(sA), s(sA)))
        I('v_and_b32 v6, 15, %s\nv_lshl_add_u32 v6, v6, 1, %s\nv_xor_b32 v7, 64, v6' % (v(vL), s(sA)))
        for k in range(4):
            I('global_load_ushort %s, %s, %s offset:%d' % (v(self.B1 + k), v(6 + k // 2), s(pB1, 2), 32 * (k & 1)))

    def g1_reads(self, c, k, fs):
        slot = c % 4
        hi = slot // 2
        off = (slot % 2) * 32768
        F = self.FR + 32 * fs
        out = []
        for i in range(4):
            for hf in range(2):
                out.append('ds_read_b64_tr_b16 %s, %s offset:%d' % (v(F + 16 + 4 * i + 2 * hf, 2), v(self.WA + 4 * hi + i), off + 8192 * k + 1024 * hf))
            out.append('ds_read_b128 %s, %s offset:%d' % (v(F + 4 * i, 4), v(self.XA + 2 * hi + k), off + 2048 * i))
        return out

    def g1_mfmas(self, fs, first):
        F = self.FR + 32 * fs
        out = []
        for d in range(4):
            for aa, b in [(d, x) for x in range(d)] + [(x, d) for x in range(d + 1)]:
                acc = v(self.ACC + 4 * (4 * aa + b), 4)
                out.append('v_mfma_f32_16x16x32_bf16 %s, %s, %s, %s' % (acc, v(F + 16 + 4 * aa, 4), v(F + 4 * b, 4), '0' if first else acc))
        return out

    def g1_cs(self, fs, first):
        F = self.FR + 32 * fs
        return ['v_mfma_f32_16x16x32_bf16 %s, %s, %s, %s' % (v(self.CS + 4 * k, 4), v(self.ONES, 4), v(F + 16 + 4 * k, 4), '0' if first else v(self.CS + 4 * k, 4))
                for k in range(2)]

    def ax_build(self, aa, cs):
        d = self.AX + 4 * aa
        b1 = v(self.B1 + aa)
        return ['v_cvt_pk_bf16_f32 v6, %s, %s' % (cs, cs), 'v_mov_b32 %s, %s' % (v(d + 2), b1), 'v_and_b32 v7, 0xffff0000, v6',
                'v_sub_f32 v7, %s, v7' % cs, 'v_and_b32 v6, 0xffff, v6', 'v_cvt_pk_bf16_f32 %s, %s, v7' % (v(d), cs),
                'v_lshl_or_b32 %s, %s, 16, v6' % (v(d + 1), b1)]

    def role_g(self):
        I, e, o = self.I, self.e, self.o
        cap = self.capture
        L = v(vL)
        self.stats_issue()
        self.srd(rK, 10, 2621440)
        self.srd(rV, 12, 2621440)
        I('s_mul_i32 %s, %s, 7\ns_add_u32 %s, %s, %s' % (s(sT0), s(sD), s(sT0), s(sT0), s(sCC)))
        self.kv_task(sT0)
        self.kv_issue(KV, 198)
        self.srd(rW1, 22, 640 * 3456)
        self.srd(rW2, 26, 1728 * 1280)
        self.w2_setup()
        self.w2_issue()
        self.g1_setup()
        d0 = self.g1_dma(0)
        self.run(d0[0] + d0[1])
        self.stamp(1)

        def conv_ids():
            I = self.I
            I('s_mul_i32 %s, %s, 7\ns_add_u32 %s, %s, %s\ns_lshl_b32 %s, %s, 1' % (s(sCH), s(sMU), s(sCH), s(sCH), s(sCC), s(sCH), s(sCH)))
            I('s_mul_i32 %s, %s, 80\ns_add_u32 %s, %s, %s\ns_add_u32 %s, %s, %s' % (s(sT0), s(sX), s(sCH), s(sCH), s(sT0), s(sCH), s(sCH), s(sI)))
            I('s_mul_i32 %s, %s, %d\ns_add_u32 %s, %s, %d\ns_add_u32 %s, %s, 65536' % (s(sUB), s(sW), UBSZ, s(sHB), s(sUB), KV, s(sUB), s(sUB)))
        shadow = (cap(self.code_prefetch) + cap(self.lds_init) + cap(self.kv_setup, KV) + cap(self.g1_frag_setup) + cap(self.srd, rH, 16, 2621440)
                  + cap(self.srd, rOUT, 30, 2621440) + cap(conv_ids) + cap(self.gemm2_ids) + cap(self.w2_addr))
        nearly = o.get('nearly', 2)
        dm = []
        for c in range(1, 1 + nearly):
            dm += sum(self.g1_dma(c), [])
        self.run(self.weave(shadow, (dm, 2, max(2.0, (len(shadow) - 4) / (8.0 * nearly)))))
        self.stamp(2)
        self.stats_sums()
        self.kv_weights(198)
        e.wait_tag('kv', and_lg=0)
        I('s_barrier')
        self.w2_reads()
        self.kv_reads(0)
        dm = []
        for c in range(1 + nearly, 4):
            dm += sum(self.g1_dma(c), [])
        fin = cap(self.stats_finish)
        cut = max(i for i, x in enumerate(fin) if x[0].startswith('s_mov_b32 exec_lo'))
        if dm:
            self.run(self.weave(fin[:cut], (dm, 1, max(2.0, cut / (8.0 * (3 - nearly))))) + fin[cut:])
        else:
            self.run(fin)
        self.w2_stores()
        self.kv_compute()
        I('global_load_dword v240, %s, %s sc1' % (v(vZ), s(pDBG, 2)), 'z')
        self.stamp(3)
        e.wait_tag('c0')
        I('s_barrier')
        self.run(self.g1_reads(0, 0, 0))
        self.stamp(4)
        NE = o.get('ne', 9)
        early = [x for g in range(NE) for x in self.w2_loads(g)]

        def take_early(n):
            out = []
            while early and n > 0:
                x = early.pop(0)
                out.append(x)
                n -= x[0].startswith('buffer')
            return out
        late = cap(self.late_setup)
        pFS, cFS = o.get('pfs', 11), o.get('cfs', 13)
        pFK, cFK = o.get('pfk', 14), o.get('cfk', 17)
        second = []
        for c in range(10):
            for k in range(2):
                st = 2 * c + k
                first = st == 0
                mf = self.g1_mfmas(k, first)
                cs = self.g1_cs(k, first)
                mem, extra = [], []
                if k == 1 and c < 9:
                    e.wait_tag('prep' if c == 1 else 'c%d' % (c + 1), and_lg=0)
                    if c == 1:
                        self.poll_check(240, None, 1, dbg=True)
                    if st == cFS:
                        self.poll_check(241, s(sEARLY), 16)
                    if st == cFK:
                        self.poll_check(242, s(sB), 32)
                        self.poll_check(243, s(sD), 56)
                    I('s_barrier')
                    if c == 1:
                        I('s_lshl_b32 %s, %s, 7\ns_lshl_b32 %s, %s, 7\ns_add_u32 %s, %s, %d' % (
                            s(sA), s(sR), s(sB), s(sKCG), s(sB), s(sB), FK))
                        I('s_lshl_b32 %s, %s, 7\ns_add_u32 %s, %s, %d' % (s(sC), s(sW2Q), s(sC), s(sC), FW))
                        self.signal_wave0([s(sA), s(sB), s(sC)], 6)
                    if c + 4 < 10:
                        mem, second = self.g1_dma(c + 4)
                elif k == 0:
                    mem, second = second, []
                reads = self.g1_reads(c, 1, 1) if k == 0 else (self.g1_reads(c + 1, 0, 0) if c < 9 else [])
                if st == pFS:
                    extra += ['s_lshl_b32 %s, %s, 7' % (s(sEARLY), s(sR)), lambda: self.poll_issue(241, s(sEARLY))]
                if st == 13:
                    mem = mem + cap(self.h_issue, sHB, sCH, 244)
                if st == 9:
                    extra += cap(self.b1_issue)
                if st == cFS + 1:
                    def stat_loads():
                        I = self.I
                        I('s_lshl_b32 %s, %s, 1\ns_add_u32 %s, %s, %s\ns_lshl_b32 %s, %s, 10\ns_add_u32 %s, %s, %d\ns_add_u32 %s, %s, %d' % (
                            s(sA), s(sR), s(sA), s(sA), s(sJ), s(sA), s(sA), s(sA), s(sA), STA, s(sEARLY), s(sA), STB - STA))
                        I('v_and_b32 v14, 15, %s\nv_lshlrev_b32 v14, 4, v14\nv_lshrrev_b32 v15, 4, %s\nv_lshl_add_u32 v15, v15, 26, v14' % (L, L))
                        for b in range(4):
                            I('buffer_load_dwordx4 %s, v15, %s, %s offen offset:%d sc1' % (v(self.XB + 4 * b, 4), s(rWS, 4), s(sA), 256 * b))
                            I('buffer_load_dwordx4 %s, v14, %s, %s offen offset:%d sc1' % (v(self.KK + 4 * b, 4), s(rWS, 4), s(sEARLY), 256 * b))
                    extra += cap(stat_loads)
                if st == pFK:
                    extra += ['s_lshr_b32 %s, %s, 6' % (s(sB), s(sCH)), 's_lshl_b32 %s, %s, 7' % (s(sB), s(sB)),
                              's_add_u32 %s, %s, %d' % (s(sB), s(sB), FK), lambda: self.poll_issue(242, s(sB)),
                              's_lshr_b32 %s, %s, 1' % (s(sD), s(sCT)), 's_lshl_b32 %s, %s, 7' % (s(sD), s(sD)),
                              's_add_u32 %s, %s, %d' % (s(sD), s(sD), FW), lambda: self.poll_issue(243, s(sD))]
                if st in (3, 4, 5, 6, 7, 8):
                    n = (len(late) + (8 - st)) // (9 - st)
                    extra += late[:n]
                    late = late[n:]
                if st == 15:
                    extra += cap(self.conv_pads, sHB, sUB) + ['v_mov_b32 %s, 0' % v(self.AX + 4 * q + 3) for q in range(4)]
                if st == 16:
                    extra += [lambda: e.wait_tag('h')] + cap(self.conv_dfix_a, sHB)
                    extra += ['s_lshl_b32 %s, %s, 7' % (s(sT0), s(sW)), 's_add_u32 %s, %s, %d' % (s(sT0), s(sT0), CSX),
                              'v_and_b32 v16, 15, %s' % L, 'v_lshl_add_u32 v16, v16, 2, %s' % s(sT0), 'v_xor_b32 v17, 128, v16']
                if st == 17:
                    extra += cap(self.conv_dfix_b, 244)
                if st == cFK:
                    mem = mem + cap(self.u_issue, sCH, lambda x, n: a(240 + x, n))
                elif st > cFK:
                    mem = mem + take_early(4)
                if st == 18:
                    def h_addr():
                        I = self.I
                        I('s_lshl_b32 %s, %s, 1\ns_add_u32 %s, %s, %s\ns_mul_i32 %s, %s, 54\ns_add_u32 %s, %s, %s' % (
                            s(sA), s(sR), s(sA), s(sA), s(sJ), s(sA), s(sA), s(sA), s(sA), s(sNT0)))
                        I('s_add_u32 %s, %s, %s\ns_xor_b32 %s, %s, 1\ns_add_u32 %s, %s, %s' % (s(sB), s(sA), s(sW), s(sT0), s(sW), s(sA), s(sA), s(sT0)))
                        I('s_lshl_b32 %s, %s, 12\ns_add_u32 %s, %s, %d\ns_lshl_b32 %s, %s, 12\ns_add_u32 %s, %s, %d' % (
                            s(sB), s(sB), s(sB), s(sB), HP, s(sA), s(sA), s(sA), s(sA), HP))
                        I('s_lshl_b32 %s, %s, 4\ns_add_u32 %s, %s, %s\ns_cmp_eq_u32 %s, 14' % (s(sT0), s(sI), s(sT0), s(sT0), s(sQ), s(sT0)))
                        I('s_cselect_b32 %s, %d, %s\ns_cselect_b32 %s, %d, %s' % (s(sA), WS_BYTES, s(sA), s(sB), WS_BYTES, s(sB)))
                    extra += cap(h_addr)
                if st < 19:
                    ne = len(extra)
                    self.run(self.weave(mf + cs, (reads, 0, 1), (mem, 2, 4), (extra, 12 if ne <= 10 else 1, 0.6 if ne <= 10 else 17.0 / ne)))
                else:
                    self.run(cs + self.weave(mf[:5], (mem, 0, 2)))
                    I('ds_write2_b32 v16, %s, %s offset1:16' % (v(self.CS), v(self.CS + 4)))
                    self.run(mf[5:7])
                    e.wait_lg(0)
                    I('s_barrier')
                    I('ds_read2_b32 v[18:19], v17 offset1:16')
                    own = self.ax_build(0, v(self.CS)) + self.ax_build(1, v(self.CS + 4))
                    self.run(self.weave(mf[7:15], (own, 0, 0.55)) + self.ax_build(2, 'v18')[:2] + [mf[15]] + self.ax_build(2, 'v18')[2:] + self.ax_build(3, 'v19'))
                if k == 1:
                    self.stamp(20 + c)
                elif c >= 5:
                    self.stamp(10 + c)
        assert not late
        self.stamp(5)
        self.g1_epilogue(take_early, NE)
        assert not early

    def g1_epilogue(self, take_early, NE):
        I, e = self.I, self.e
        for p in range(2):
            for b in range(4):
                for aa in (2 * p, 2 * p + 1):
                    acc = v(self.ACC + 4 * (4 * aa + b), 4)
                    I('v_mfma_f32_16x16x32_bf16 %s, %s, %s, %s' % (acc, v(self.AX + 4 * aa, 4), v(self.XB + 4 * b, 4), acc))
                if b & 1:
                    self.run(take_early(1))
        self.stamp(6)
        T = 128
        per = self.o.get('gl', 3)
        for p in range(2):
            for b in range(4):
                n = 4 * p + b
                kk, sg = v(self.KK + 4 * b, 2), v(self.KK + 4 * b + 2, 2)
                prs = [self.ACC + 4 * (4 * (2 * p + (j >> 1)) + b) + 2 * (j & 1) for j in range(4)]
                tp = [T + 16 * (n & 1) + 2 * j for j in range(4)]
                tq = [T + 16 * (n & 1) + 8 + 2 * j for j in range(4)]
                out = 160 + 4 * n
                seq = []
                seq += ['v_pk_mul_f32 %s, %s, %s' % (v(t, 2), v(q, 2), v(q, 2)) for q, t in zip(prs, tp)]
                seq += ['v_pk_fma_f32 %s, %s, %s, %s op_sel:[0,1,0] op_sel_hi:[1,1,0]' % (v(t, 2), v(t, 2), kk, kk) for t in tp]
                seq += ['v_pk_mul_f32 %s, %s, %s' % (v(t, 2), v(t, 2), v(q, 2)) for q, t in zip(prs, tp)]
                seq += ['v_exp_f32 %s, %s' % (v(t + h), v(t + h)) for t in tp for h in range(2)]
                seq += ['v_pk_fma_f32 %s, %s, %s, %s op_sel:[0,0,0] op_sel_hi:[1,0,0]' % (v(t, 2), v(t, 2), sg, sg) for t in tp]
                seq += ['v_rcp_f32 %s, %s' % (v(t + h), v(t + h)) for t in tp for h in range(2)]
                seq += ['v_pk_mul_f32 %s, %s, %s' % (v(u, 2), v(t, 2), v(q, 2)) for q, t, u in zip(prs, tp, tq)]
                seq += ['v_cvt_pk_bf16_f32 %s, %s, %s' % (v(out + j), v(u), v(u + 1)) for j, u in enumerate(tq)]
                self.run(self.weave(seq, (take_early(per if n < 7 else 99), 3, 11)))
                I('buffer_store_dwordx4 %s, %s, %s, %s offen offset:%d sc1' % (
                    v(out, 4), v(vL16), s(rWS, 4), s(sB if p == 0 else sA), 1024 * b), 'H')
                if n == 1:
                    self.conv_ustage(sUB, lambda x, n: a(240 + x, n))
        self.stamp(7)
        self.h_tail = list(e.vm)
        I('s_mov_b32 %s, 1' % s(sISG))
        self.stamp_sync()
        I('s_branch L_conv')

    def role_s(self):
        I, e = self.I, self.e
        cap = self.capture
        L = v(vL)
        zwg = 7 if self.o.get('x_map') else 56
        lab = self.lab('Lnoz')
        I('s_cmp_lg_u32 s2, %d\ns_cbranch_scc1 %s\ns_cmp_lg_u32 %s, 0\ns_cbranch_scc1 %s' % (zwg, lab, s(sW), lab))
        I('v_lshlrev_b32 v6, 7, %s\nbuffer_store_dword %s, v6, %s, 0 offen sc1' % (L, v(vZ), s(rWS, 4)))
        e.vm.pop()
        e.label(lab)
        self.stats_issue()
        self.srd(rK, 10, 2621440)
        self.srd(rV, 12, 2621440)

        def task(t):
            self.I('s_mul_i32 %s, %s, 3\ns_add_u32 %s, %s, %d' % (s(sT0), s(sD), s(sT0), s(sT0), 224 + t))
            self.kv_task(sT0)
        KB = 3 * 4 * (HBSZ + UBSZ)
        STEP = 4 * (HBSZ + UBSZ)
        for t in range(3):
            task(t)
            self.kv_issue(KB + t * KVSZ, 228 + 2 * t)
            if t == 0:
                self.code_prefetch()
                self.kv_setup(KB)
        lab = self.lab('Lnoz')
        I('s_cmp_lg_u32 s2, %d\ns_cbranch_scc1 %s\ns_cmp_lg_u32 %s, 0\ns_cbranch_scc1 %s' % (zwg, lab, s(sW), lab))
        e.raw('    s_waitcnt vmcnt(%d)' % len(e.vm))
        I('v_mov_b32 v6, 1\ns_mov_b64 exec, 1\nglobal_store_dword %s, v6, %s sc1\ns_mov_b64 exec, -1' % (v(vZ), s(pDBG, 2)))
        e.vm.pop()
        e.label(lab)
        self.stamp(1)
        self.stats_sums()
        self.stats_finish()
        self.srd(rH, 16, 2621440)
        self.srd(rOUT, 30, 2621440)
        self.gemm2_ids()
        I('s_mul_i32 %s, %s, 80\ns_mul_i32 %s, %s, 6\ns_add_u32 %s, %s, %s\ns_add_u32 %s, %s, 56' % (
            s(sCH), s(sX), s(sT0), s(sMU), s(sCH), s(sCH), s(sT0), s(sCH), s(sCH)))
        I('s_lshr_b32 %s, %s, 6\ns_lshl_b32 %s, %s, 7\ns_add_u32 %s, %s, %d' % (s(sDX), s(sCH), s(sDX), s(sDX), s(sDX), s(sDX), FK))
        I('s_add_u32 %s, %s, 5\ns_lshr_b32 %s, %s, 6\ns_lshl_b32 %s, %s, 7\ns_add_u32 %s, %s, %d' % (
            s(sEARLY), s(sCH), s(sEARLY), s(sEARLY), s(sEARLY), s(sEARLY), s(sEARLY), s(sEARLY), FK))
        I('s_lshr_b32 %s, %s, 1\ns_lshl_b32 %s, %s, 7\ns_add_u32 %s, %s, %d' % (s(sDW), s(sCT), s(sDW), s(sDW), s(sDW), s(sDW), FW))
        I('s_lshr_b32 %s, %s, 1\ns_add_u32 %s, %s, %s' % (s(sT0), s(sW), s(sCH), s(sCH), s(sT0)))
        I('s_mul_i32 %s, %s, %d\ns_add_u32 %s, %s, %d' % (s(sHB), s(sW), HBSZ + UBSZ, s(sUB), s(sHB), HBSZ))
        I('global_load_dword v240, %s, %s sc1' % (v(vZ), s(pDBG, 2)), 'z')
        self.kv_weights(228)
        e.wait_tag('kv', and_lg=0)
        I('s_barrier')
        self.stamp(2)
        for t in range(3):
            self.kv_reads(t * KVSZ)
            task(t)
            if t:
                self.kv_weights(228 + 2 * t)
            self.kv_compute()
            I('s_lshl_b32 %s, %s, 7\ns_add_u32 %s, %s, %d' % (s(sM + t), s(sKCG), s(sM + t), s(sM + t), FK) if t == 2 else
              's_lshl_b32 %s, %s, 7\ns_add_u32 %s, %s, %d' % (s(sW2Q + t), s(sKCG), s(sW2Q + t), s(sW2Q + t), FK))
        self.stamp(3)
        for r in range(3):
            I('s_add_u32 %s, %s, %d\ns_add_u32 %s, %s, %d' % (s(sI), s(sHB), r * STEP, s(sJ), s(sCH), 2 * r))
            self.h_issue(sI, sJ, 244 + r)
            I('s_add_u32 %s, %s, %d' % (s(sJ), s(sUB), r * STEP))
            self.conv_pads(sI, sJ)
        self.late_setup()
        self.poll_check(240, None, 1, dbg=True)
        e.wait_tag('prep')
        I('s_barrier')
        I('s_lshl_b32 %s, %s, 7' % (s(sA), s(sR)))
        self.signal_wave0([s(sA), s(sW2Q), s(sW2Q + 1), s(sM + 2)], 6)
        self.stamp(4)
        e.wait_tag('h')
        self.poll_issue(241, s(sDX))
        self.poll_issue(242, s(sEARLY))
        self.poll_issue(243, s(sDW))
        for r in range(3):
            I('s_add_u32 %s, %s, %d' % (s(sI), s(sHB), r * STEP))
            self.conv_dfix_a(sI)
            self.conv_dfix_b(244 + r)
        self.poll_check(241, s(sDX), 32)
        self.poll_check(242, s(sEARLY), 32)
        for r in range(3):
            I('s_add_u32 %s, %s, %d' % (s(sJ), s(sCH), 2 * r))
            self.u_issue(sJ, lambda x, n: v(64 + 16 * r + x, n))
        self.poll_check(243, s(sDW), 56)
        for r in range(3):
            I('s_add_u32 %s, %s, %d' % (s(sJ), s(sUB), r * STEP))
            self.conv_ustage(sJ, lambda x, n: v(64 + 16 * r + x, n))
        I('s_mov_b32 %s, 0\ns_mov_b32 %s, 0' % (s(sISG), s(sROUND)))
        self.stamp(8)
        self.stamp_sync()
        e.label('L_plain')
        self.conv_pair(True)
        I('s_add_u32 %s, %s, 1\ns_add_u32 %s, %s, 2' % (s(sROUND), s(sROUND), s(sCH), s(sCH)))
        I('v_add_u32 v2, %d, v2\nv_add_u32 v3, %d, v3\nv_add_u32 v4, %d, v4' % (STEP, STEP, STEP))
        I('s_cmp_lt_u32 %s, 2\ns_cbranch_scc1 L_plain' % s(sROUND))

    OWN, XN, RAW = 232, 212, 188

    def conv(self):
        self.e.label('L_conv')
        self.conv_pair(False)

    def conv_pair(self, plain):
        I, e = self.I, self.e
        e.forget()
        if not plain:
            e.vm = [dict(tag=x['tag'], wr=set()) for x in self.h_tail]
            I('s_lshl_b32 %s, %s, 7\ns_add_u32 %s, %s, %d' % (s(sD), s(sR2), s(sD), s(sD), FH))
        I('s_lshl_b32 %s, %s, 7\ns_add_u32 %s, %s, %d' % (s(sYOFF), s(sCH), s(sYOFF), s(sYOFF), YP))
        lb, le = self.lab('LconvB'), self.lab('LconvE')
        I('s_bitcmp1_b32 %s, 0\ns_cbranch_scc1 %s' % (s(sW), lb))
        vm0, hist0 = list(e.vm), list(e.hist)
        keep = {('v', i) for i in (0, 1, 2, 3, 4, 5, 8, 9, 10, 11, 12, 13, 252, 255)} | {('a', i) for i in range(256)}
        e.written = set(keep)
        self.conv_body(list(range(8)) + list(range(23, 32)), (23,), plain)
        I('s_branch ' + le)
        e.label(lb)
        e.vm, e.lg, e.hist = list(vm0), [], list(hist0)
        e.written = set(keep)
        self.conv_body(list(range(7, 24)), (7,), plain)
        e.label(le)

    def conv_body(self, tiles, carry, plain):
        I, e = self.I, self.e
        ACC, HF, UF, NU = 16, 84, 148, 4
        T1, T2, YV, YPK = 164, 166, 168, 172
        NE = self.o.get('ne', 9)
        acc = {t: ACC + 4 * i for i, t in enumerate(tiles)}
        mmax = max(tiles)
        nsig = mmax // 2 + 1

        def uread(m):
            return 'ds_read2_b64 %s, %s offset0:%d offset1:%d' % (v(UF + 4 * (m % NU), 4), v(2 + m // 16), 16 * (m % 16) + 4, 16 * (m % 16))

        def hread(sg):
            return ['ds_read_b64_tr_b16 %s, v4 offset:%d' % (v(HF + 4 * sg + 2 * hf, 2), 256 * sg + 32 * hf) for hf in range(2)]

        steps = [[t for t in tiles if t >= m and (t - m) % 2 == 0] for m in range(mmax + 1)]
        order = []
        for m in range(mmax + 1):
            for t in steps[m]:
                if (t - m) // 2 not in order:
                    order.append((t - m) // 2)
        I(uread(0))
        for sg in order[:3]:
            self.run(hread(sg))
        I(uread(1))
        pend_h = [(sg, x) for sg in order[3:] for x in hread(sg)]

        def post(t):
            z = acc[t]
            cur, prv = t & 1, (t & 1) ^ 1
            out = []
            dpp = ' row_mask:0xf bank_mask:0xf'
            has_prev = (t - 1) in acc and t not in carry
            chain = [(T1 + cur, z + 3, (acc[t - 1] + 3) if has_prev else None, z + 2),
                     (T2 + cur, T1 + cur, T1 + prv, z + 1)]
            if t not in carry:
                chain.append((YV + (t & 1), T2 + cur, T2 + prv, z))
            ror = ['v_add_f32_dpp %s, %s, %s wave_ror:1%s' % (v(d), v(psrc), v(add), dpp) for d, src, psrc, add in chain] if has_prev else []
            shr = ['v_add_f32_dpp %s, %s, %s wave_shr:1%s%s' % (v(d), v(src), v(add), dpp, '' if has_prev else ' bound_ctrl:0')
                   for d, src, psrc, add in chain]
            out = [ror[0], shr[0], ror[1], ror[2], shr[1], shr[2]] if has_prev else shr
            if t not in carry and t & 1:
                out.append('v_cvt_pk_bf16_f32 %s, %s, %s' % (v(YPK + 4 * ((t >> 3) & 1) + ((t & 7) >> 1)), v(YV), v(YV + 1)))
                if t & 7 == 7:
                    g = t >> 3
                    out.append('s_add_u32 %s, %s, %d' % (s(sT0), s(sYOFF), g * 8 * 640 * 128))
                    out.append(('buffer_store_dwordx4 %s, v5, %s, %s offen sc1' % (v(YPK + 4 * (g & 1), 4), s(rWS, 4), s(sT0)), 'y'))
            return out

        def h_arrive():
            lab = self.lab('Lh')
            lg = list(e.lg)
            I('s_cmp_eq_u32 %s, 0\ns_cbranch_scc1 %s' % (s(sISG), lab))
            e.wait_tag('H')
            self.arrive(LCNT, 6)
            e.label(lab)
            e.lg = lg

        def h_done():
            lab = self.lab('Lh')
            I('s_cmp_eq_u32 %s, 0\ns_cbranch_scc1 %s' % (s(sISG), lab))
            I('s_lshl_b32 %s, %s, 7\ns_add_u32 %s, %s, %d' % (s(sT0), s(sR), s(sT0), s(sT0), FH))
            e.raw('    s_waitcnt lgkmcnt(%d)' % min(15, self.ds_since))
            self.arrive_done(s(sT0), 6)
            e.label(lab)

        RAW, XN, OWN = self.RAW, self.XN, self.OWN
        raw = ['buffer_load_dwordx2 %s, v12, %s, %s offen offset:%d' % (v(RAW + 2 * n, 2), s(rQ, 4), s(sT1), 32 * n) for n in range(5)]
        raw += ['global_load_dwordx2 %s, v13, %s offset:%d' % (v(RAW + 10 + 2 * n, 2), s(pB2, 2), 32 * n) for n in range(5)]
        unpack = []
        for i in range(10):
            x, b, d, o = RAW + i, RAW + 10 + i, XN + 2 * i, OWN + 2 * i
            unpack += ['v_lshlrev_b32 %s, 16, %s' % (v(d), v(x)), 'v_and_b32 %s, 0xffff0000, %s' % (v(d + 1), v(x)),
                       'v_lshlrev_b32 %s, 16, %s' % (v(o), v(b)), 'v_and_b32 %s, 0xffff0000, %s' % (v(o + 1), v(b)),
                       'v_add_f32 %s, %s, %s' % (v(o), v(o), v(d)), 'v_add_f32 %s, %s, %s' % (v(o + 1), v(o + 1), v(d + 1))]

        total = sum(len(x) for x in steps)
        jobs = []

        def spread(items, p0, p1):
            n = sum(1 for x in items if not x[0].startswith('s_'))
            k = 0
            for x in items:
                jobs.append((p0 + (k * (p1 - p0)) / max(n, 1), x))
                k += not x[0].startswith('s_')
        if plain:
            spread([x for g in range(NE) for x in self.w2_loads(g)], 16, total - 4)
        else:
            hs = self.o.get('hs_at', 44)
            jobs.append((hs, h_arrive))
            jobs.append((hs + 8, h_done))
            r0 = self.o.get('raw_at', 6)
            spread([(x, None) for x in raw], r0, r0 + 30)
            u0 = self.o.get('unp_at', 84)
            spread([(x, None) for x in unpack], u0, total - 22)
            spread([x for g in range(NE, 16) for x in self.w2_loads(g)], r0 + 30, total - 22)
            spread([x for g in (16, 17) for x in self.w2_loads(g)], total - 21, total - 9)
            jobs.append((total - 8, lambda: self.poll_issue(vP, s(sD), 'poll')))
        jobs.sort(key=lambda j: j[0])

        done = 0
        pending_post = []
        self.ds_since = 0
        counting = False
        for m, ts in enumerate(steps):
            n = len(ts)
            gaps = [[] for _ in range(n)]
            if m + 2 <= mmax:
                gaps[0].append(uread(m + 2))
            for i, x in enumerate(pending_post):
                gaps[min(n - 1, (i * n) // len(pending_post))].append(x)
            pending_post = []
            for i, t in enumerate(ts):
                sg = (t - m) // 2
                while any(q == sg for q, _ in pend_h):
                    I(pend_h.pop(0)[1])
                I('v_mfma_f32_16x16x32_bf16 %s, %s, %s, %s' % (
                    v(acc[t], 4), v(UF + 4 * (m % NU), 4), v(HF + 4 * sg, 4), '0' if m < 2 else v(acc[t], 4)))
                done += 1
                seq = [pend_h.pop(0)[1] for _ in range(min(2, len(pend_h)))] + gaps[i]
                while jobs and jobs[0][0] <= done:
                    seq.append(jobs.pop(0)[1])
                for x in seq:
                    if x is h_arrive:
                        assert not pend_h
                        counting = True
                    elif counting and isinstance(x, str) and x.startswith('ds_'):
                        self.ds_since += 1
                    self.run([x])
            if m % 4 == 1:
                self.stamp((50 if plain else 30) + m // 4)
            if m in acc:
                pending_post = post(m)
        assert not jobs and not pend_h
        self.run(pending_post)
        self.stamp_sync()

    def gemm2(self):
        I, e = self.I, self.e
        L = v(vL)
        ACC, HR, NR, WX, XN, OWN = 16, 76, 7, self.WX, self.XN, self.OWN
        PRE = self.o.get('pre', 3)
        e.forget()
        e.vm = [dict(tag='poll', wr={('v', vP)}), dict(tag='y', wr=set())]
        self.stamp(9)
        self.poll_check(vP, s(sD), 14)
        self.stamp(10)

        def hload(st):
            out = []
            for t in range(4):
                out.append('buffer_load_dwordx4 %s, %s, %s, %s offen sc1' % (
                    v(HR + 16 * (st % NR) + 4 * t, 4), v(8 + t), s(rWS, 4), s(sH0 if st == 0 else sHOFF)))
            out.append('s_add_u32 %s, %s, 4096' % (s(sHOFF), s(sHOFF)))
            return out
        for st in range(PRE):
            self.run(hload(st))
        I('s_lshl_b32 %s, %s, 1\ns_add_u32 %s, %s, %s\ns_lshl_b32 %s, %s, 2\ns_add_u32 %s, %s, %s' % (
            s(sB), s(sR2), s(sB), s(sB), s(sNU), s(sA), s(sB), s(sA), s(sA), s(sW)))
        I('s_lshl_b32 %s, %s, 7\ns_add_u32 %s, %s, %d\nv_and_b32 v14, 15, %s\nv_lshlrev_b32 v14, 3, v14' % (s(sA), s(sA), s(sA), s(sA), STC, L))
        I('buffer_load_dwordx2 v[4:5], v14, %s, %s offen sc1' % (s(rWS, 4), s(sA)))
        I('s_lshl_b32 %s, %s, 3\ns_add_u32 %s, %s, %s\ns_mul_i32 %s, %s, 10240\ns_add_u32 %s, %s, %d' % (
            s(sB), s(sB), s(sB), s(sB), s(sCT), s(sB), s(sB), s(sYOFF), s(sB), YP))
        I('s_lshl_b32 %s, %s, 7\ns_add_u32 %s, %s, %d' % (s(sB), s(sX), s(sB), s(sB), FY))
        I('s_lshl_b32 %s, %s, 7\ns_add_u32 %s, %s, %d' % (s(sD), s(sCT), s(sD), s(sD), FY))
        e.wait_tag('y', and_lg=0)
        I('s_barrier')
        self.signal_wave0([s(sB)], 6)

        def wfrag(st, n):
            fi = 5 * st + n
            return a(4 * fi, 4) if fi < 64 else v(WX + 4 * (fi - 64), 4)

        def tile(t, n):
            return OWN + 4 * n if t == 3 else ACC + 4 * (5 * t + n)

        def mfma(st, t, n):
            c = v(tile(t, n), 4)
            return 'v_mfma_f32_16x16x32_bf16 %s, %s, %s, %s' % (c, wfrag(st, n), v(HR + 16 * (st % NR) + 4 * t, 4), '0' if st == 0 and t < 3 else c)

        TAIL = 3
        pY, cY = self.o.get('pfy', 8), 14 - TAIL
        for st in range(14 - TAIL):
            mf = [mfma(st, t, n) for t in range(4) for n in range(5)]
            mem = hload(st + PRE) if st + PRE < 14 else []
            fill = []
            if st == 3:
                fill += ['v_mul_f32 v4, v4, v5'] + ['v_fma_f32 %s, %s, v5, -v4' % (v(XN + i), v(XN + i)) for i in range(20)]
            if st == 4:
                fill += ['v_lshlrev_b32 v6, 4, v0', 's_cmp_ge_u32 %s, 2\ns_cselect_b32 %s, %d, 8192' % (s(sW), s(sA), OOB),
                         'v_add_u32 v7, %s, v6' % s(sA),
                         'v_lshrrev_b32 v2, 3, v0', 'v_mul_u32_u24 v2, 144, v2', 'v_and_b32 v3, 7, v0', 'v_lshl_add_u32 v2, v3, 4, v2',
                         'v_lshrrev_b32 v13, 2, %s' % L, 'v_mul_u32_u24 v13, 144, v13', 'v_and_b32 v3, 3, %s' % L,
                         'v_lshl_add_u32 v13, v3, 3, v13', 's_lshl_b32 %s, %s, 5' % (s(sA), s(sW)), 'v_add_u32 v13, %s, v13' % s(sA)]
            if st == 5:
                for t, d in enumerate((3, 4, 5)):
                    fill += ['s_add_u32 %s, %s, %d' % (s(sA), s(sW), t + 1), 's_and_b32 %s, %s, 3' % (s(sA), s(sA)),
                             's_mul_i32 %s, %s, 15360' % (s(sA), s(sA)), 's_add_u32 %s, %s, %d' % (s(sA), s(sA), RED + 5120 * t),
                             'v_add_u32 %s, %s, %s' % (v(d), s(sA), v(vL16))]
                fill += ['s_mul_i32 %s, %s, 15360' % (s(sA), s(sW)), 's_add_u32 %s, %s, %d' % (s(sA), s(sA), RED),
                         'v_add_u32 v14, %s, %s' % (s(sA), v(vL16))]
            if st == pY:
                fill.append(lambda: self.poll_issue(vP, s(sD)))
            self.run(self.weave(mf, (mem, 1, 5), (fill, 0, 19.0 / max(len(fill), 1))))
            if st % 2 == 0:
                self.stamp(40 + st // 2)
        YR = HR + 16 * ((14 - TAIL - 1) % NR)
        self.poll_check(vP, s(sD), 32)
        self.stamp(11)
        I('s_add_u32 %s, %s, 4096' % (s(sA), s(sYOFF)))
        pend = ['buffer_load_dwordx4 %s, v6, %s, %s offen sc1' % (v(YR, 4), s(rWS, 4), s(sYOFF)),
                'buffer_load_dwordx4 %s, v6, %s, %s offen sc1' % (v(YR + 4, 4), s(rWS, 4), s(sA)),
                'buffer_load_dwordx4 %s, v7, %s, %s offen sc1' % (v(YR + 8, 4), s(rWS, 4), s(sYOFF))]
        for t in range(4):
            mf = [mfma(st, t, n) for n in range(5) for st in range(14 - TAIL, 14)]
            self.run(self.weave(mf, (pend, 0 if t == 0 else 2, 2 if t == 0 else 3)))
            pend = ['ds_write_b128 %s, %s offset:%d' % (v(3 + t), v(tile(t, n), 4), 1024 * n) for n in range(5)] if t < 3 else []
        for i in range(3):
            I('ds_write_b128 v2, %s offset:%d' % (v(YR + 4 * i, 4), YB + 32 * 144 * i))
        e.wait_lg(0)
        I('s_barrier')
        self.stamp(12)
        P, YT, OUT = HR, 16, 28
        for n in range(5):
            I('ds_read_b64_tr_b16 %s, v13 offset:%d' % (v(YT + 2 * n, 2), YB + 16 * 144 * n))
            for t in range(3):
                I('ds_read_b128 %s, v14 offset:%d' % (v(P + 12 * n + 4 * t, 4), 5120 * t + 1024 * n))
        for n in range(5):
            o = OWN + 4 * n
            for h in range(2):
                y = YT + 2 * n + h
                I('v_lshlrev_b32 %s, 16, %s\nv_and_b32 %s, 0xffff0000, %s' % (v(40 + 2 * h), v(y), v(41 + 2 * h), v(y)))
            for h in range(2):
                I('v_pk_fma_f32 %s, %s, %s, %s' % (v(o + 2 * h, 2), v(XN + 4 * n + 2 * h, 2), v(40 + 2 * h, 2), v(o + 2 * h, 2)))
            for h in range(2):
                p = P + 12 * n + 2 * h
                I('v_pk_add_f32 %s, %s, %s' % (v(p, 2), v(p, 2), v(p + 4, 2)))
                I('v_pk_add_f32 %s, %s, %s' % (v(o + 2 * h, 2), v(o + 2 * h, 2), v(p + 8, 2)))
            for h in range(2):
                I('v_pk_add_f32 %s, %s, %s' % (v(o + 2 * h, 2), v(o + 2 * h, 2), v(P + 12 * n + 2 * h, 2)))
            for h in range(2):
                I('v_cvt_pk_bf16_f32 %s, %s, %s' % (v(OUT + 2 * n + h), v(o + 2 * h), v(o + 2 * h + 1)))
            I('buffer_store_dwordx2 %s, v12, %s, %s offen offset:%d' % (v(OUT + 2 * n, 2), s(rOUT, 4), s(sT1), 32 * n))
        self.stamp(13)

    def experiments_head(self):
        I = self.I
        for i in range(self.o.get('x_code', 0) * 128):
            I('v_add3_u32 v%d, v0, v0, v0' % (100 + i % 4))
        n = self.o.get('x_lat', 0)
        if n:
            I('s_mul_i32 %s, s2, 10240\nv_mov_b32 v100, %s' % (s(sT0), s(sT0)))
            for i in range(n):
                I('global_load_dword v101, v100, s[20:21]\nv_and_b32 v101, 0, v101\nv_add3_u32 v100, v100, v101, 64\nv_add_u32 v100, 960, v100')

    def experiments_tail(self):
        I = self.I
        if 'x_pa' in self.o:
            r = self.e.raw
            r('    s_cmp_lg_u32 s2, %d\n    s_cbranch_scc1 L_end\n    s_waitcnt vmcnt(0) lgkmcnt(0)' % self.o.get('x_wg', 0))
            if self.o.get('x_skew'):
                r('    s_load_dword s30, s[34:35], 0x3000 glc\n    s_waitcnt lgkmcnt(0)\n    s_sub_u32 s30, s0, s30\n    s_mov_b32 s0, 0')
                r('    s_max_i32 s30, s30, 0')
            r('    s_sub_u32 s6, s30, s0\n    s_min_u32 s6, s6, 5000\n    s_mul_i32 s6, s6, %d' % self.o.get('x_k', 1))
            r('    s_memrealtime s[0:1]\n    s_waitcnt lgkmcnt(0)')
            r('L_xs:\n    s_memrealtime s[30:31]\n    s_waitcnt lgkmcnt(0)\n    s_sub_u32 s7, s30, s0\n    s_cmp_lt_u32 s7, s6\n    s_cbranch_scc1 L_xs')
        kind, n = self.o.get('x_tail', 0), self.o.get('x_n', 8)
        if kind:
            self.e.wait_all()
            I('s_load_dwordx2 s[20:21], s[0:1], 48')
            I('s_mov_b32 %s, 0x10000000' % s(rWS + 2))
            self.e.wait_lg(0)
            if kind == 1:
                I('s_mul_i32 %s, s2, 10240\nv_mov_b32 v100, %s' % (s(sT0), s(sT0)))
                for i in range(n):
                    I('global_load_dword v101, v100, s[20:21]\nv_and_b32 v101, 0, v101\nv_add3_u32 v100, v100, v101, 64\nv_add_u32 v100, 576, v100')
            else:
                base = {2: 0x2000000, 3: 0x2000000, 4: 0x2000000, 5: 0xF000000, 6: 0x2000000, 7: 0xF000000}[kind]
                step = {2: 0x400000, 3: 0x40000, 4: 0x40000, 5: 0x40000, 6: 0x40000, 7: 0x40000}[kind]
                I('s_lshl_b32 %s, s2, 10\ns_add_u32 %s, %s, %d\nv_lshl_add_u32 v100, v0, 2, %s' % (s(sT0), s(sT0), s(sT0), base, s(sT0)))
                for i in range(n):
                    if kind in (2, 3, 7):
                        I('buffer_load_dword v101, v100, %s, 0 offen' % s(rWS, 4))
                    elif kind in (4, 5):
                        I('buffer_store_dword v0, v100, %s, 0 offen sc1' % s(rWS, 4))
                    else:
                        I('buffer_store_dword v0, v100, %s, 0 offen' % s(rWS, 4))
                    self.e.wait_vm(0)
                    I('v_add_u32 v100, %d, v100' % step)
            self.stamp(14)
        n = self.o.get('x_alu', 0)
        if n:
            self.I('s_mov_b32 %s, 0' % s(sT0))
            self.e.label('L_xalu')
            for i in range(16):
                self.I('v_add_u32 v%d, v0, v0' % (100 + i % 4))
            self.I('s_add_u32 %s, %s, 1\ns_cmp_lt_u32 %s, %d\ns_cbranch_scc1 L_xalu' % (s(sT0), s(sT0), s(sT0), n))
            self.stamp(14)

    def build(self):
        e = self.e
        k = NAME + '_kernel'
        if self.o.get('x_list'):
            if self.o['x_list'] == 2:
                e.raw('; @launch kernel=nop_kernel grid=(256,1,1) block=(256,1,1) lds=0')
            e.raw('; @launch kernel=%s grid=(256,1,1) block=(256,1,1) lds=%d' % (k, LDS_BYTES))
            if self.o['x_list'] == 1:
                e.raw('; @launch kernel=nop_kernel grid=(256,1,1) block=(256,1,1) lds=0')
        else:
            e.raw('; @launch grid=(256,1,1) block=(256,1,1) lds=%d' % LDS_BYTES)
        e.raw('.amdgcn_target "amdgcn-amd-amdhsa--gfx950"')
        e.raw('.text\n.globl %s\n.p2align 8\n.type %s,@function\n%s:' % (k, k, k))
        if self.o.get('x_first'):
            e.raw('    s_memrealtime s[100:101]')
        self.entry()
        if self.o.get('x_first'):
            e.raw('    s_mov_b64 s[0:1], s[100:101]')
        self.experiments_head()
        if self.o['stamps']:
            e.raw('    v_mov_b32 v254, 0')
        self.stamp(60, cyc=True)
        if 'x_pa' in self.o:
            self.srd(rOUT, 30, 2621440)
            self.srd = (lambda real: lambda r, p, n: None if r == rOUT else real(r, p, n))(self.srd)
        self.stamp(0)
        if self.o.get('x_skew'):
            e.raw('    s_cmp_lg_u32 s2, %d\n    s_cbranch_scc1 L_xk\n    s_waitcnt lgkmcnt(0)\n    v_mov_b32 v6, s0\n    v_mov_b32 v7, 0x3000' % self.o.get('x_ref', 0))
            e.raw('    buffer_store_dword v6, v7, s[60:63], 0 offen sc1\nL_xk:')
        self.stamp_sync()
        self.I('s_cmp_eq_u32 %s, 7\ns_cbranch_scc1 L_roleS' % s(sCC))
        hist = list(e.hist)
        self.role_g()
        e.label('L_roleS')
        e.written = {('v', i) for i in (0, 1, 2, 4, 5, 252, 255)}
        e.forget()
        e.hist = hist
        self.role_s()
        self.conv()
        self.gemm2()
        self.experiments_tail()
        self.stamp_flush()
        e.label('L_end')
        e.raw('    s_endpgm')
        if self.o.get('x_list'):
            e.raw('.globl nop_kernel\n.p2align 8\n.type nop_kernel,@function\nnop_kernel:\n    s_endpgm')
        e.raw('''.section .rodata,"a"
.p2align 6
.amdhsa_kernel %s
  .amdhsa_next_free_vgpr 512
  .amdhsa_next_free_sgpr 102
  .amdhsa_accum_offset 256
  .amdhsa_group_segment_fixed_size 0
  .amdhsa_kernarg_size 112
  .amdhsa_user_sgpr_count 2
  .amdhsa_user_sgpr_kernarg_segment_ptr 1
  .amdhsa_system_sgpr_workgroup_id_x 1
.end_amdhsa_kernel''' % k)
        if self.o.get('x_list'):
            e.raw('''.p2align 6
.amdhsa_kernel nop_kernel
  .amdhsa_next_free_vgpr 8
  .amdhsa_next_free_sgpr 16
  .amdhsa_accum_offset 8
  .amdhsa_group_segment_fixed_size 0
  .amdhsa_kernarg_size 112
  .amdhsa_user_sgpr_count 2
  .amdhsa_user_sgpr_kernarg_segment_ptr 1
  .amdhsa_system_sgpr_workgroup_id_x 1
.end_amdhsa_kernel''')
        return e.text()


if __name__ == '__main__':
    out = sys.argv[1]
    opt = dict(OPT)
    for kv in sys.argv[2:]:
        key, val = kv.split('=')
        opt[key] = int(val)
    g = Gen(opt)
    open(out, 'w').write(g.build())
    print('written', out, 'nop states', g.e.nops)
    for w in g.e.warn:
        print('WARN', w)
```

```python
import re
import struct
import sys
from emit import Emit, v, a, s, merge

NAME = 'parallel_sum__ssm_conv_h3__dense_activation_gelu__prompt'
OPT = dict(stamps=0, stop=None)

FS, FH, FK, FW, FY = 0x0, 0x800, 0x1000, 0x1800, 0x1C00
STA, STB, STC = 0x8000, 0x10000, 0x18000
STAMPS = 0x40000
UT = 0x100000
YP = 0x400000
W2P = 0x700000
HP = 0xA00000
WS_BYTES = 0x1100000
WS_BASE = 0
OOB = 0x40000000
SPIN_MAX = 200000

KV = 131072
KVSZ = 17408
MISC = 148480
CSX = MISC
LCNT = MISC + 512
W2S = 149504
LDS_BYTES = W2S + 12288
HBSZ, UBSZ = 4352, 4352
YB = 0
XL, XLSZ = 106496, 4608
RED = 16384

sX, sSLOT, sW = 3, 4, 5
sT0, sT1 = 6, 7
pSHIFT, pSSMD, pB1, pB2, pDBG, pWS = 14, 18, 24, 28, 32, 34
rQ, rK, rV, rW1, rW2, rH, rWS, rOUT = 36, 40, 44, 48, 52, 56, 60, 64
sG4, sFH, sMU, sCC, sR, sQ, sTB, sNT0 = 68, 69, 70, 71, 72, 73, 74, 75
sKTB, sKCG = 76, 77
sA, sB, sC, sD = 78, 79, 80, 81
sSPIN, sVAL, sEARLY, sISG = 82, 83, 84, 85
sCH, sHB, sUB, sROUND = 86, 87, 88, 89
sI, sJ = 90, 91
sM = 92
sWP, sST = 100, 101
sWB, sWE, sW0 = 19, 31, 30
sDX, sDW = 8, 9
sR2, sNU, sCT = 10, 11, 12
sHOFF = 20
sW2O = 96
sYOFF = 13
sW2S, sW2Q, sKW, sKO = 23, 26, 27, 16
sH0 = 17
sNS, sO2, sHB2, sHE = 34, 22, 15, 35
sXL = 14
sKC = 21

vL = 1
vL16 = 252
vP = 253
vZ = 255


def f2u(x):
    return struct.unpack('<I', struct.pack('<f', x))[0]


def hexf(x):
    return '0x%08x' % f2u(x)


class Gen:
    def __init__(self, opt):
        self.o = opt
        self.e = Emit()
        self.nlab = 0
        self.I = self.e.I
        self.prev = None


    def capture(self, fn, *args):
        out = []
        real = self.I
        self.I = lambda text, tag=None: out.extend((ln.strip(), tag) for ln in text.strip().split('\n') if ln.strip())
        try:
            fn(*args)
        finally:
            self.I = real
        joined = []
        for ln, tag in out:
            if joined and re.match(r's_(cselect|addc|subb|cbranch)', ln):
                joined[-1] = (joined[-1][0] + '\n' + ln, None)
            else:
                joined.append((ln, tag))
        return joined

    def lab(self, p='L'):
        self.nlab += 1
        return '%s_%d' % (p, self.nlab)

    def run(self, seq):
        for it in seq:
            if callable(it):
                it()
            elif isinstance(it, tuple):
                self.I(it[0], it[1])
            else:
                self.I(it)

    def stamp(self, idx, cyc=False):
        if 'x_pa' in self.o and not cyc:
            if idx == self.o['x_pa']:
                self.e.raw('    s_memrealtime s[0:1]')
            if idx == self.o['x_pb']:
                self.e.raw('    s_memrealtime s[30:31]')
        if not self.o['stamps']:
            return
        if not self.o.get('fine') and not cyc and idx not in (0, 2, 3, 4, 22, 5, 7, 8, 9, 11, 13):
            return
        r = self.e.raw
        if self.prev is not None:
            r('    v_writelane_b32 v254, s0, %d' % self.prev)
        r('    %s s[0:1]' % ('s_memtime' if cyc or self.o['stamps'] == 3 else 's_memrealtime'))
        self.prev = idx
        if cyc or self.o['stamps'] == 2:
            self.stamp_sync()

    def stamp_sync(self):
        if self.o['stamps'] and self.prev is not None:
            self.e.raw('    s_waitcnt lgkmcnt(0)\n    v_writelane_b32 v254, s0, %d' % self.prev)
            self.prev = None

    def stamp_flush(self):
        if not self.o['stamps']:
            return
        self.stamp_sync()
        self.stamp(61, cyc=True)
        r = self.e.raw
        r('    s_lshl_b32 s0, s2, 10\n    s_add_u32 s0, s0, %d\n    v_lshlrev_b32 v253, 2, v0' % STAMPS)
        r('    buffer_store_dword v254, v253, %s, s0 offen' % s(rWS, 4))

    def srd(self, r, p, nbytes):
        self.I('s_mov_b32 %s, %s\ns_mov_b32 %s, %s\ns_mov_b32 %s, %d\ns_mov_b32 %s, 0x20000' % (
            s(r), s(p), s(r + 1), s(p + 1), s(r + 2), nbytes, s(r + 3)))

    def poll_issue(self, vd, soff, tag=None):
        self.I('buffer_load_dword %s, %s, %s, %s offen sc1' % (v(vd), v(vZ), s(rWS, 4), soff), tag)

    def poll_check(self, vd, soff, target, dbg=False):
        ok, again = self.lab('Lok'), self.lab('Lspin')
        self.I('v_readfirstlane_b32 %s, %s' % (s(sVAL), v(vd)))
        self.I('s_mov_b32 %s, 0' % s(sSPIN))
        self.I('s_cmp_ge_u32 %s, %s' % (s(sVAL), target))
        self.I('s_cbranch_scc1 ' + ok)
        self.e.label(again)
        if dbg:
            self.e.raw('    global_load_dword %s, %s, %s sc1' % (v(vd), v(vZ), s(pDBG, 2)))
        else:
            self.e.raw('    buffer_load_dword %s, %s, %s, %s offen sc1' % (v(vd), v(vZ), s(rWS, 4), soff))
        self.e.raw('    s_waitcnt vmcnt(0)')
        self.e.raw('    v_readfirstlane_b32 %s, %s' % (s(sVAL), v(vd)))
        self.e.raw('    s_add_u32 %s, %s, 1' % (s(sSPIN), s(sSPIN)))
        self.e.raw('    s_cmp_ge_u32 %s, %d' % (s(sSPIN), SPIN_MAX))
        self.e.raw('    s_cbranch_scc1 ' + ok)
        self.e.raw('    s_cmp_lt_u32 %s, %s' % (s(sVAL), target))
        self.e.raw('    s_cbranch_scc1 ' + again)
        self.e.label(ok)

    def signal(self, soffs, vt):
        self.I('v_mov_b32 %s, 1' % v(vt))
        self.I('s_mov_b64 exec, 1')
        for so in soffs:
            self.I('buffer_atomic_add %s, %s, %s, %s offen sc1' % (v(vt), v(vZ), s(rWS, 4), so))
        self.I('s_mov_b64 exec, -1')

    def signal_wave0(self, soffs, vt):
        lab = self.lab('Lsig')
        starts = len(self.e.vm)
        self.I('s_cmp_lg_u32 %s, 0' % s(sW))
        self.I('s_cbranch_scc1 ' + lab)
        self.signal(soffs, vt)
        del self.e.vm[starts:]
        self.e.label(lab)

    def arrive(self, cnt_off, vt):
        self.I('v_mov_b32 %s, 1\nv_mov_b32 %s, %d' % (v(vt), v(vt + 1), cnt_off))
        self.I('s_mov_b64 exec, 1')
        self.I('ds_add_rtn_u32 %s, %s, %s' % (v(vt + 1), v(vt + 1), v(vt)))
        self.I('s_mov_b64 exec, -1')

    def arrive_done(self, soff, vt):
        lab = self.lab('Lsig')
        self.I('v_readfirstlane_b32 %s, %s' % (s(sVAL), v(vt + 1)))
        self.I('s_cmp_lg_u32 %s, 3' % s(sVAL))
        self.I('s_cbranch_scc1 ' + lab)
        self.I('s_mov_b64 exec, 1')
        self.I('buffer_atomic_add %s, %s, %s, %s offen sc1' % (v(vt), v(vZ), s(rWS, 4), soff))
        self.I('s_mov_b64 exec, -1')
        self.e.vm.pop()
        self.e.label(lab)

    @staticmethod
    def weave(main, *lists):
        n = len(main)
        gaps = [[] for _ in range(n)]
        for items, start, step in lists:
            pos = float(start)
            held = []
            last = 0
            for it in items:
                txt = it if isinstance(it, str) else (it[0] if isinstance(it, tuple) else '')
                if step >= 2 and txt.startswith('s_'):
                    held.append(it)
                    continue
                g = min(int(pos), n - 1)
                gaps[max(g - 1, last)] += held
                held = []
                gaps[g].append(it)
                last = g
                pos += step
            gaps[min(int(pos), n - 1)] += held
        out = []
        for m, g in zip(main, gaps):
            out.append(m)
            out += g
        return out

    def entry(self):
        I = self.I
        I('s_cmp_ge_u32 s2, 256\ns_cbranch_scc1 L_end')
        I('s_load_dwordx16 s[8:23], s[0:1], 0\ns_load_dwordx8 s[24:31], s[0:1], 64\ns_load_dwordx4 s[32:35], s[0:1], 96')
        self.code_prefetch()
        I('v_lshrrev_b32 v2, 6, v0\nv_and_b32 %s, 63, v0\nv_mov_b32 %s, 0' % (v(vL), v(vZ)))
        I('v_readfirstlane_b32 %s, v2' % s(sW))
        if self.o.get('x_map'):
            I('s_lshr_b32 %s, s2, 5\ns_and_b32 %s, s2, 31' % (s(sX), s(sSLOT)))
        else:
            I('s_and_b32 %s, s2, 7\ns_lshr_b32 %s, s2, 3' % (s(sX), s(sSLOT)))
        I('s_lshr_b32 %s, %s, 1\ns_and_b32 %s, %s, 1' % (s(sG4), s(sX), s(sFH), s(sX)))
        I('s_lshr_b32 %s, %s, 3\ns_and_b32 %s, %s, 7' % (s(sMU), s(sSLOT), s(sCC), s(sSLOT)))
        I('s_lshl_b32 %s, %s, 2\ns_add_u32 %s, %s, %s' % (s(sR), s(sG4), s(sR), s(sR), s(sMU)))
        I('s_lshl_b32 %s, %s, 3\ns_add_u32 %s, %s, %s' % (s(sQ), s(sFH), s(sQ), s(sQ), s(sCC)))
        I('s_lshl_b32 %s, %s, 9\ns_lshl_b32 %s, %s, 4\ns_add_u32 %s, %s, %s' % (
            s(sTB), s(sG4), s(sT0), s(sMU), s(sTB), s(sTB), s(sT0)))
        I('v_lshrrev_b32 v2, 5, v0\nv_mul_u32_u24 v2, %d, v2\nv_and_b32 v3, 31, v0\nv_lshl_add_u32 v2, v3, 3, v2' % (64 * 1280))
        I('s_add_u32 %s, %s, %s\ns_mul_i32 %s, %s, 1280' % (s(sA), s(sTB), s(sQ), s(sA), s(sA)))
        I('v_lshrrev_b32 v6, 3, %s\nv_lshrrev_b32 v7, 5, %s\nv_lshlrev_b32 v7, 1, v7\nv_and_b32 v8, 7, %s' % (v(vL), v(vL), v(vL)))
        I('v_xor_b32 v8, v8, v7\nv_mul_u32_u24 v6, 1280, v6\nv_lshl_add_u32 v4, v8, 4, v6\nv_xor_b32 v5, 64, v4')
        I('v_lshlrev_b32 %s, 4, %s' % (v(vL16), v(vL)))
        I('s_lshl_b32 %s, %s, 2\ns_add_u32 %s, %s, %s' % (s(sD), s(sX), s(sD), s(sD), s(sMU)))
        self.e.wait_lg(0)
        self.srd(rQ, 8, 2621440)
        self.srd(rWS, pWS, WS_BYTES)

    def code_prefetch(self):
        if not self.o.get('pf', 1):
            return
        I = self.I
        I('s_getpc_b64 s[6:7]')
        I('L_pc:')
        I('s_lshr_b32 s3, s2, 3\nv_and_b32 v6, 15, v0\nv_lshlrev_b32 v6, 5, v6\nv_add_u32 v6, s3, v6\nv_lshlrev_b32 v6, 7, v6')
        I('v_min_u32 v6, L_last-L_pc, v6')
        I('v_mov_b32 v7, s7\nv_add_co_u32 v6, vcc, s6, v6\nv_addc_co_u32 v7, vcc, 0, v7, vcc')
        I('s_mov_b64 exec, 0xffff\nglobal_load_dword v253, v[6:7], off\ns_mov_b64 exec, -1')

    def stats_issue(self, off=sA):
        for i in range(5):
            self.I('buffer_load_dwordx2 %s, v2, %s, %s offen offset:%d' % (v(10 + 2 * i, 2), s(rQ, 4), s(off), 256 * i))

    def stats_sums(self):
        I = self.I
        I('v_mov_b32 v2, 0\nv_mov_b32 v3, 0\nv_mov_b32 v8, 0x3f803f80')
        for i in range(10):
            I('v_dot2c_f32_bf16 v2, v%d, v8' % (10 + i))
        for i in range(10):
            I('v_dot2c_f32_bf16 v3, v%d, v%d' % (10 + i, 10 + i))

    def stats_finish(self):
        I = self.I
        C0 = -2.0 * 0.7978845608028654 * 1.4426950408889634
        I('s_lshl_b32 %s, %s, 4\ns_add_u32 %s, %s, %s' % (s(sA), s(sR), s(sA), s(sA), s(sQ)))
        for mod in ('quad_perm:[1,0,3,2]', 'quad_perm:[2,3,0,1]', 'row_half_mirror', 'row_mirror'):
            I('v_add_f32_dpp v2, v2, v2 %s row_mask:0xf bank_mask:0xf' % mod)
            I('v_add_f32_dpp v3, v3, v3 %s row_mask:0xf bank_mask:0xf' % mod)
        I('v_mov_b32 v8, v2\nv_mov_b32 v9, v3')
        I('s_lshl_b32 %s, %s, 7\ns_add_u32 %s, %s, %d' % (s(sB), s(sA), s(sB), s(sB), STA))
        I('v_permlane16_swap_b32 v2, v8\nv_permlane16_swap_b32 v3, v9')
        I('v_add_f32 v2, v2, v8\nv_add_f32 v3, v3, v9')
        I('v_mul_f32 v10, %s, v2\nv_mul_f32 v3, %s, v3' % (hexf(1 / 640), hexf(1 / 640)))
        I('v_fma_f32 v3, -v10, v10, v3\nv_cvt_pk_bf16_f32 v12, -v10, -v10\nv_max_f32 v3, 0, v3')
        I('v_add_f32 v3, %s, v3\nv_and_b32 v8, 0xffff0000, v12\nv_rsq_f32 v11, v3' % hexf(1e-5))
        I('v_sub_f32 v8, -v10, v8\nv_lshrrev_b32 v9, 5, v0\nv_mul_f32 v18, v3, v11')
        I('v_mul_f32 v16, %s, v11\nv_cvt_pk_bf16_f32 v13, v8, v18\nv_mul_f32 v17, v11, v11' % hexf(C0))
        I('v_and_b32 v8, 0xffff0000, v13\nv_mul_f32 v17, %s, v17\nv_sub_f32 v8, v18, v8' % hexf(0.044715))
        I('v_mul_f32 v17, v17, v16\nv_cvt_pk_bf16_f32 v14, v8, 0\nv_mov_b32 v15, 0\nv_mov_b32 v19, v11')
        I('v_lshlrev_b32 v8, 4, v9\nv_lshlrev_b32 v9, 3, v9')
        I('s_add_u32 %s, %s, %d\ns_lshl_b32 %s, %s, 6\ns_add_u32 %s, %s, %d' % (s(sC), s(sB), STB - STA, s(sA), s(sA), s(sA), s(sA), STC))
        I('s_mov_b32 exec_lo, 1\ns_mov_b32 exec_hi, 1')
        I('buffer_store_dwordx4 v[12:15], v8, %s, %s offen sc1' % (s(rWS, 4), s(sB)), 'stat')
        I('buffer_store_dwordx4 v[16:19], v8, %s, %s offen sc1' % (s(rWS, 4), s(sC)), 'stat')
        I('buffer_store_dwordx2 v[10:11], v9, %s, %s offen sc1' % (s(rWS, 4), s(sA)), 'stat')
        I('s_mov_b64 exec, -1')

    KTW, KTR = 44, 45
    KA, KSH, KST, KID, KW1, KF, KS, KVT, KPK = 192, 195, 197, 200, 204, 212, 236, 52, 244

    def kv_task(self, kappa):
        self.I('s_and_b32 %s, %s, 31\ns_lshr_b32 %s, %s, 5' % (s(sKTB), s(kappa), s(sKCG), s(kappa)))

    def kv_issue(self, lds, vshift, tag='kv'):
        I = self.I
        I('s_lshl_b32 %s, %s, 6\ns_mul_i32 %s, %s, 1280\ns_lshl_b32 %s, %s, 7\ns_add_u32 %s, %s, %s' % (
            s(sA), s(sKTB), s(sA), s(sA), s(sB), s(sKCG), s(sA), s(sA), s(sB)))
        I('s_sub_u32 %s, %s, %d\ns_cmp_eq_u32 %s, 0\ns_cselect_b32 %s, %d, %s' % (s(sB), s(sA), 8 * 1280, s(sKTB), s(sB), 2621440, s(sB)))
        I('s_mov_b32 m0, %d\ns_lshl_b32 %s, %s, 11' % (lds, s(sC), s(sW)))
        I('buffer_load_dwordx4 v4, %s, %s offen nt lds' % (s(rK, 4), s(sB)), tag)
        I('s_add_u32 m0, %s, %d' % (s(sC), lds + 1024))
        I('s_mul_i32 %s, %s, %d\ns_add_u32 %s, %s, %s' % (s(sB), s(sW), 16 * 1280, s(sA), s(sA), s(sB)))
        I('buffer_load_dwordx4 v5, %s, %s offen nt lds' % (s(rK, 4), s(sA)), tag)
        I('s_add_u32 m0, %s, %d\ns_add_u32 %s, %s, %d' % (s(sC), lds + 2048, s(sB), s(sA), 8 * 1280))
        I('buffer_load_dwordx4 v4, %s, %s offen nt lds' % (s(rK, 4), s(sB)), tag)
        I('s_add_u32 m0, %s, %d\nv_and_b32 v6, 15, %s' % (s(sC), lds + 9216, v(vL)))
        I('buffer_load_dwordx4 v4, %s, %s offen nt lds' % (s(rV, 4), s(sA)), tag)
        I('s_add_u32 m0, %s, %d\nv_lshlrev_b32 v6, 3, v6' % (s(sC), lds + 9216 + 1024))
        I('buffer_load_dwordx4 v5, %s, %s offen nt lds' % (s(rV, 4), s(sB)), tag)
        I('s_lshl_b32 %s, %s, 2\ns_add_u32 %s, %s, %s\ns_lshl_b32 %s, %s, 7' % (s(sA), s(sKCG), s(sA), s(sA), s(sW), s(sA), s(sA)))
        I('v_add_u32 v6, %s, v6' % s(sA))
        I('global_load_dwordx2 %s, v6, %s' % (v(vshift, 2), s(pSHIFT, 2)), tag)

    def kv_setup(self, hi, scratch):
        I = self.I
        L = v(vL)
        I('v_and_b32 v6, 3, %s\nv_lshlrev_b32 v6, 2, v6\nv_bfe_u32 v7, %s, 2, 2\nv_add_u32 v6, v6, v7' % (L, L))
        I('v_bfe_u32 v7, %s, 4, 1\ns_lshl_b32 %s, %s, 1\nv_add_u32 v7, %s, v7' % (L, s(sA), s(sW), s(sA)))
        I('v_lshrrev_b32 v8, 5, %s' % L)
        for k, (off, sub) in enumerate(((8, True), (6, True), (72, False))):
            I('v_add_u32 v9, %d, v6' % (off + hi // 128))
            if sub:
                I('v_sub_u32 v9, v9, v8')
            I('v_bfe_u32 v3, %s, 2, 2' % ('v9' if sub else 'v6'))
            I('v_lshlrev_b32 v3, 1, v3\nv_xor_b32 v3, v3, v7\nv_lshlrev_b32 v3, 4, v3\nv_lshl_add_u32 %s, v9, 7, v3' % v(self.KA + k))
        I('v_bfe_u32 v6, %s, 3, 1\nv_bfe_u32 v7, %s, 4, 1\nv_bfe_u32 v9, %s, 1, 2\nv_cmp_eq_u32 vcc, v6, v7' % (L, L, L))
        I('v_lshlrev_b32 %s, 4, v8\nv_and_b32 %s, 1, %s' % (v(self.KSH), v(self.KSH + 1), L))
        I('v_cndmask_b32 v9, 7, v9, vcc\nv_lshlrev_b32 %s, 4, %s' % (v(self.KSH + 1), v(self.KSH + 1)))
        for d in range(4):
            I('v_cmp_eq_u32 %s, %d, v9' % (s(sM + 2 * d, 2), d))
        I('v_cmp_gt_u32 vcc, 32, %s\nv_mov_b32 v6, 0x3f80\nv_and_b32 v3, 15, %s' % (L, L))
        I('v_cndmask_b32 v6, 0, v6, vcc\nv_lshlrev_b32 v6, %s, v6' % v(self.KSH + 1))
        for d in range(4):
            I('v_cndmask_b32 %s, 0, v6, %s' % (v(self.KID + d), s(sM + 2 * d, 2)))
        I('s_lshl_b32 %s, %s, 11\ns_add_u32 %s, %s, %d' % (s(sA), s(sW), s(sA), s(sA), scratch))
        I('v_lshlrev_b32 v3, 6, v3\nv_lshrrev_b32 v7, 4, %s\nv_lshl_add_u32 v3, v7, 4, v3\nv_add_u32 %s, %s, v3' % (L, v(self.KTW), s(sA)))
        I('v_add_u32 %s, %s, %s' % (v(self.KTR), s(sA), v(vL16)))
        I('v_lshrrev_b32 v3, 2, %s\nv_lshlrev_b32 v3, 12, v3\nv_and_b32 v7, 3, %s\nv_lshl_add_u32 %s, v7, 4, v3' % (L, L, v(self.KST)))

    def kv_weights(self, vshift):
        I = self.I
        for j in range(2):
            I('v_lshrrev_b32 v6, %s, %s\nv_and_b32 v6, 0xffff, v6\nv_lshlrev_b32 v6, %s, v6' % (v(self.KSH), v(vshift + j), v(self.KSH + 1)))
            for d in range(4):
                I('v_cndmask_b32 %s, 0, v6, %s' % (v(self.KW1 + 4 * j + d), s(sM + 2 * d, 2)))

    def kv_code(self, base):
        F, KS, VT, PK = self.KF, self.KS, self.KVT, self.KPK

        def reads(b):
            return ['ds_read_b128 %s, %s offset:%d' % (v(F + 12 * (b & 1) + 4 * i, 4), v(self.KA + i), base + 2048 * b) for i in range(3)]

        def mf(b):
            f, ks, vt = F + 12 * (b & 1), KS + 4 * (b & 1), VT + 4 * (b & 1)
            return ['v_mfma_f32_16x16x32_bf16 %s, %s, %s, 0' % (v(ks, 4), v(f, 4), v(self.KW1, 4)),
                    'v_mfma_f32_16x16x32_bf16 %s, %s, %s, 0' % (v(vt, 4), v(f + 8, 4), v(self.KID, 4)),
                    'v_mfma_f32_16x16x32_bf16 %s, %s, %s, %s' % (v(ks, 4), v(f + 4, 4), v(self.KW1 + 4, 4), v(ks, 4))]

        def fin(b):
            ks, vt = KS + 4 * (b & 1), VT + 4 * (b & 1)
            out = ['v_mul_f32 %s, %s, %s' % (v(ks + i), v(ks + i), v(vt + i)) for i in range(4)]
            out += ['v_cvt_pk_bf16_f32 %s, %s, %s' % (v(PK + 2 * b + i), v(ks + 2 * i), v(ks + 2 * i + 1)) for i in range(2)]
            if b & 1:
                out.append('ds_write_b128 %s, %s offset:%d' % (v(self.KTW), v(PK + 2 * b - 2, 4), 512 * (b - 1)))
                out.append('ds_read_b128 %s, %s offset:%d' % (v(PK + 2 * b - 2, 4), v(self.KTR), 512 * (b - 1)))
            return out
        addr = ['s_lshl_b32 %s, %s, 2' % (s(sKO), s(sKCG)), 's_add_u32 %s, %s, %s' % (s(sKO), s(sKO), s(sW)),
                's_lshl_b32 %s, %s, 9' % (s(sKO), s(sKO)), 's_add_u32 %s, %s, %s' % (s(sKO), s(sKO), s(sKTB)),
                's_lshl_b32 %s, %s, 7' % (s(sKO), s(sKO)), 's_add_u32 %s, %s, %d' % (s(sKO), s(sKO), UT)]
        def store(bp):
            return [('buffer_store_dwordx4 %s, %s, %s, %s offen offset:%d sc1' % (v(PK + 4 * bp, 4), v(self.KST), s(rWS, 4), s(sKO), 64 * bp), 'prep')]
        return (reads(0) + reads(1) + addr + mf(0) + mf(1) + reads(2) + reads(3) + fin(0) + fin(1) + mf(2) + mf(3) + fin(2) + store(0) + fin(3) + store(1))

    W2A, W2F = 60, 212

    def w2_setup(self):
        I = self.I
        I('s_lshr_b32 %s, %s, 2\ns_and_b32 %s, %s, 3' % (s(sW2S), s(sT0), s(sW2Q), s(sT0)))
        for i in range(3):
            I('v_add_u32 v6, %d, v0\nv_mul_u32_u24 v7, 3277, v6\nv_lshrrev_b32 v7, 16, v7\nv_mul_u32_u24 v8, 20, v7\nv_sub_u32 v8, v6, v8' % (256 * i))
            I('v_mul_u32_u24 v7, 1280, v7\nv_lshl_add_u32 %s, v8, 4, v7' % v(self.W2A + i))
        I('s_cmp_ge_u32 %s, 2\ns_cselect_b32 %s, %d, 0' % (s(sW), s(sA), OOB))
        I('v_add_u32 %s, %s, %s' % (v(self.W2A + 2), s(sA), v(self.W2A + 2)))
        I('s_mul_i32 %s, %s, %d\ns_mul_i32 %s, %s, 320\ns_add_u32 %s, %s, %s' % (s(sKW), s(sW2S), 32 * 1280, s(sA), s(sW2Q), s(sKW), s(sKW), s(sA)))

    def w2_issue(self):
        I = self.I
        for i in range(3):
            I('s_lshr_b32 %s, %s, 2\ns_add_u32 m0, %s, %d' % (s(sVAL), s(sD), s(sVAL), W2S + 4096 * i))
            I('buffer_load_dwordx4 %s, %s, %s offen nt lds' % (v(self.W2A + i), s(rW2, 4), s(sKW)), 'w2')

    def w2_addr(self):
        I = self.I
        L = v(vL)
        I('v_lshrrev_b32 v7, 2, %s\nv_mul_u32_u24 v7, 320, v7\nv_and_b32 v6, 3, %s\nv_lshl_add_u32 v7, v6, 3, v7' % (L, L))
        I('s_lshl_b32 %s, %s, 5\ns_add_u32 %s, %s, %d\nv_add_u32 %s, %s, v7' % (s(sA), s(sW), s(sA), s(sA), W2S, v(self.W2A + 3), s(sA)))
        I('s_mul_i32 %s, %s, 108\ns_add_u32 %s, %s, %s\ns_mul_i32 %s, %s, 5120\ns_lshl_b32 %s, %s, 10\ns_add_u32 %s, %s, %s' % (
            s(sA), s(sW2Q), s(sA), s(sA), s(sW2S), s(sA), s(sA), s(sB), s(sW), s(sA), s(sA), s(sB)))
        I('s_add_u32 %s, %s, %d\ns_cmp_ge_u32 %s, 54\ns_cselect_b32 %s, %d, %s' % (s(sA), s(sA), W2P, s(sW2S), s(sW2O), WS_BYTES, s(sA)))
        I('s_movk_i32 %s, 4096\ns_cmp_eq_u32 %s, 0\ns_cselect_b32 %s, %s, %d' % (s(sA), s(sW), s(sA), s(sA), 54 * 5120 - 1024))
        I('s_add_u32 %s, %s, %s' % (s(sW2O + 1), s(sW2O), s(sA)))
        I('s_mov_b32 %s, %d\ns_cmp_ge_u32 %s, 2\ns_cselect_b32 %s, %s, %d' % (s(sA), WS_BYTES, s(sW), s(sA), s(sA), 54 * 5120 + 3072))
        I('s_add_u32 %s, %s, %s' % (s(sW2O + 2), s(sW2O), s(sA)))

    def w2_reads(self):
        for i in range(3):
            for hf in range(2):
                self.I('ds_read_b64_tr_b16 %s, %s offset:%d' % (v(self.W2F + 4 * i + 2 * hf, 2), v(self.W2A + 3), 5120 * hf + 128 * i))

    def w2_stores(self):
        for i in range(3):
            self.I('buffer_store_dwordx4 %s, %s, %s, %s offen sc1' % (v(self.W2F + 4 * i, 4), v(vL16), s(rWS, 4), s(sW2O + i)), 'w2p')

    def lds_init(self):
        self.I('v_mov_b32 v6, %d\nds_write2_b32 v6, v255, v255 offset1:1' % LCNT)

    def gemm2_ids(self):
        I = self.I
        if self.o.get('map2', 1):
            I('s_mov_b32 %s, %s\ns_bfe_u32 %s, %s, 0x10002\ns_and_b32 %s, %s, 3\ns_lshl_b32 %s, %s, 2\ns_add_u32 %s, %s, %s' % (
                s(sR2), s(sR), s(sNU), s(sSLOT), s(sCT), s(sSLOT), s(sT0), s(sFH), s(sCT), s(sCT), s(sT0)))
        else:
            I('s_lshl_b32 %s, %s, 1\ns_lshr_b32 %s, %s, 4\ns_add_u32 %s, %s, %s' % (s(sR2), s(sX), s(sT0), s(sSLOT), s(sR2), s(sR2), s(sT0)))
            I('s_bfe_u32 %s, %s, 0x10003\ns_and_b32 %s, %s, 7' % (s(sNU), s(sSLOT), s(sCT), s(sSLOT)))
        I('s_mul_i32 %s, %s, 14\ns_cmp_eq_u32 %s, 3\ns_subb_u32 %s, %s, 0' % (s(sST), s(sW), s(sW), s(sST), s(sST)))
        I('s_cmp_ge_u32 %s, 2\ns_cselect_b32 %s, 13, 14' % (s(sW), s(sNS)))
        if self.o.get('map2', 1):
            I('s_lshr_b32 %s, %s, 2\ns_mul_i32 %s, %s, 7\ns_lshr_b32 %s, %s, 2' % (s(sO2), s(sSLOT), s(sO2), s(sO2), s(sO2), s(sO2)))
            I('s_and_b32 %s, %s, 3\ns_mul_i32 %s, %s, 7\ns_lshr_b32 %s, %s, 1' % (s(sT0), s(sSLOT), s(sT0), s(sT0), s(sT0), s(sT0)))
        else:
            I('s_lshr_b32 %s, %s, 3\ns_mul_i32 %s, %s, 7\ns_lshr_b32 %s, %s, 1' % (s(sO2), s(sSLOT), s(sO2), s(sO2), s(sO2), s(sO2)))
            I('s_and_b32 %s, %s, 7\ns_mul_i32 %s, %s, 7\ns_lshr_b32 %s, %s, 2' % (s(sT0), s(sSLOT), s(sT0), s(sT0), s(sT0), s(sT0)))
        I('s_add_u32 %s, %s, %s\ns_cmp_ge_u32 %s, %s\ns_cselect_b32 %s, %s, 0\ns_sub_u32 %s, %s, %s' % (
            s(sO2), s(sO2), s(sT0), s(sO2), s(sNS), s(sT0), s(sNS), s(sO2), s(sO2), s(sT0)))
        if not self.o.get('rot2', 0):
            I('s_mov_b32 %s, 0' % s(sO2))

    def w2_pointers(self):
        I = self.I
        I('s_mul_i32 %s, %s, 54\ns_add_u32 %s, %s, %s\ns_mul_i32 %s, %s, 5120\ns_add_u32 %s, %s, %d' % (
            s(sWB), s(sCT), s(sWB), s(sWB), s(sST), s(sWB), s(sWB), s(sWB), s(sWB), W2P))
        I('s_mul_i32 %s, %s, 5120\ns_add_u32 %s, %s, %s\ns_mul_i32 %s, %s, 5120\ns_add_u32 %s, %s, %s\ns_mov_b32 %s, %s' % (
            s(sWE), s(sNS), s(sWE), s(sWE), s(sWB), s(sW0), s(sO2), s(sW0), s(sW0), s(sWB), s(sWP), s(sW0)))

    def late_setup(self):
        I = self.I
        L = v(vL)
        I('v_bfe_u32 v2, %s, 2, 2\nv_lshrrev_b32 v6, 4, %s\nv_lshlrev_b32 v7, 1, v6\nv_sub_u32 v3, v2, v7\nv_lshlrev_b32 v3, 5, v3' % (L, L))
        I('v_and_b32 v7, 3, %s\nv_sub_u32 v4, v7, v2\nv_lshl_add_u32 v2, v7, 3, v3\ns_add_u32 %s, %s, 224\nv_add_u32 v2, %s, v2' % (L, s(sT0), s(sUB), s(sT0)))
        I('v_add_u32 v3, 2048, v2\nv_lshlrev_b32 v4, 3, v4\nv_lshl_add_u32 v4, v6, 6, v4')
        I('s_add_u32 %s, %s, 32\nv_add_u32 v4, %s, v4' % (s(sT0), s(sHB), s(sT0)))
        I('v_lshlrev_b32 v13, 3, v6')
        I('v_lshrrev_b32 v6, 3, %s\nv_mul_u32_u24 v6, %d, v6\nv_and_b32 v7, 7, %s\nv_lshl_add_u32 v5, v7, 4, v6' % (L, 640 * 128, L))
        I('v_lshrrev_b32 v6, 4, %s\nv_mul_u32_u24 v6, %d, v6\nv_and_b32 v7, 15, %s\nv_lshl_add_u32 v6, v7, 4, v6' % (L, 64 * 1280, L))
        I('v_cmp_gt_u32 vcc, 10, v7\nv_mov_b32 v7, %d\nv_cndmask_b32 v12, v7, v6, vcc' % OOB)
        I('v_bfe_u32 v6, %s, 2, 2\nv_mul_u32_u24 v6, 1088, v6\nv_and_b32 v7, 3, %s\nv_lshl_add_u32 v6, v7, 8, v6' % (L, L))
        I('s_mul_i32 %s, %s, %d\ns_add_u32 %s, %s, %d\nv_add3_u32 v13, v13, v6, %s' % (s(sXL), s(sW), XLSZ, s(sXL), s(sXL), XL, s(sXL)))
        I('s_lshr_b32 %s, %s, 2\ns_lshl_b32 %s, %s, 9\ns_and_b32 %s, %s, 3\ns_lshl_b32 %s, %s, 4\ns_add_u32 %s, %s, %s' % (
            s(sT1), s(sR2), s(sT1), s(sT1), s(sT0), s(sR2), s(sT0), s(sT0), s(sT1), s(sT1), s(sT0)))
        I('s_lshl_b32 %s, %s, 3\ns_add_u32 %s, %s, %s\ns_lshl_b32 %s, %s, 1\ns_add_u32 %s, %s, %s' % (
            s(sT0), s(sNU), s(sT1), s(sT1), s(sT0), s(sT0), s(sW), s(sT1), s(sT1), s(sT0)))
        I('s_mul_i32 %s, %s, 1280\ns_mul_i32 %s, %s, 160\ns_add_u32 %s, %s, %s' % (s(sT1), s(sT1), s(sT0), s(sCT), s(sT1), s(sT1), s(sT0)))
        for t in range(4):
            I('s_add_u32 %s, %s, %d\ns_and_b32 %s, %s, 3\ns_lshl_b32 %s, %s, 10\nv_add_u32 %s, %s, %s' % (
                s(sT0), s(sW), t + 1, s(sT0), s(sT0), s(sT0), s(sT0), v(8 + t), s(sT0), v(vL16)))
        I('s_lshl_b32 %s, %s, 1\ns_add_u32 %s, %s, %s\ns_mul_i32 %s, %s, 54\ns_add_u32 %s, %s, %s' % (
            s(sT0), s(sR2), s(sT0), s(sT0), s(sNU), s(sT0), s(sT0), s(sT0), s(sT0), s(sST)))
        I('s_lshl_b32 %s, %s, 12\ns_add_u32 %s, %s, %d' % (s(sT0), s(sT0), s(sHB2), s(sT0), HP))
        I('s_lshl_b32 %s, %s, 12\ns_add_u32 %s, %s, %s\ns_lshl_b32 %s, %s, 12\ns_add_u32 %s, %s, %s' % (
            s(sHE), s(sNS), s(sHE), s(sHE), s(sHB2), s(sHOFF), s(sO2), s(sHOFF), s(sHOFF), s(sHB2)))
        I('s_cmp_ge_u32 %s, 2\ns_cselect_b32 %s, %d, %s' % (s(sW), s(sH0), WS_BYTES, s(sHOFF)))

    def h_issue(self, hb, ch, vD):
        I = self.I
        I('s_and_b32 %s, %s, 1\ns_lshl_b32 %s, %s, 11\ns_add_u32 %s, %s, %s\ns_add_u32 m0, %s, 32' % (
            s(sVAL), s(sW), s(sVAL), s(sVAL), s(sKO), s(sVAL), s(hb), s(sKO)))
        I('s_lshl_b32 %s, %s, 12\ns_add_u32 %s, %s, %s' % (s(sKO), s(ch), s(sKO), s(sKO), s(sVAL)))
        for i in range(2):
            I('buffer_load_dwordx4 %s, %s, %s offen offset:%d nt lds' % (v(vL16), s(rH, 4), s(sKO), 1024 * i), 'h')
        I('s_lshl_b32 %s, %s, 1\nv_mov_b32 v14, %s' % (s(sKO), s(ch), s(sKO)))
        I('global_load_ushort %s, v14, %s' % (v(vD), s(pSSMD, 2)), 'h')

    def u_issue(self, ch, dst):
        I = self.I
        I('s_lshl_b32 %s, %s, 1\ns_and_b32 %s, %s, 1\ns_add_u32 %s, %s, %s\ns_lshl_b32 %s, %s, 11\ns_add_u32 %s, %s, %d' % (
            s(sA), s(ch), s(sVAL), s(sW), s(sA), s(sA), s(sVAL), s(sA), s(sA), s(sA), s(sA), UT))
        for i in range(2):
            I('buffer_load_dwordx4 %s, %s, %s, %s offen offset:%d sc1' % (dst(4 * i, 4), v(vL16), s(rWS, 4), s(sA), 1024 * i), 'u')

    def conv_pads(self, hb, ub):
        I = self.I
        I('v_lshl_add_u32 v6, %s, 2, %s\nds_write_b32 v6, %s' % (v(vL), s(ub), v(vZ)))
        I('v_and_b32 v7, 7, %s\nv_lshl_add_u32 v7, v7, 2, %s\nds_write_b32 v7, %s' % (v(vL), s(hb), v(vZ)))

    def conv_dfix_a(self, hb):
        self.I('s_and_b32 %s, %s, 1\ns_mul_i32 %s, %s, 4160\ns_add_u32 %s, %s, %s' % (s(sVAL), s(sW), s(sVAL), s(sVAL), s(sVAL), s(sVAL), s(hb)))
        self.I('v_mov_b32 v14, %s\nds_read_u16 v15, v14 offset:32' % s(sVAL))

    def conv_dfix_b(self, vD):
        self.I('v_lshlrev_b32 v6, 16, %s\nv_lshlrev_b32 v15, 16, v15\nv_add_f32 v15, v15, v6\nv_cvt_pk_bf16_f32 v15, v15, v15' % v(vD))
        self.I('ds_write_b16 v14, v15 offset:32')

    def conv_ustage(self, ub, src):
        I = self.I
        L = v(vL)
        I('v_lshrrev_b32 v6, 2, %s\nv_lshlrev_b32 v6, 6, v6\nv_and_b32 v7, 3, %s\nv_lshl_add_u32 v6, v7, 3, v6' % (L, L))
        I('s_and_b32 %s, %s, 1\ns_lshl_b32 %s, %s, 11\ns_add_u32 %s, %s, %s' % (s(sT0), s(sW), s(sT0), s(sT0), s(sT0), s(sT0), s(ub)))
        I('s_add_u32 %s, %s, 256\nv_add_u32 v6, %s, v6' % (s(sT0), s(sT0), s(sT0)))
        for i in range(2):
            I('ds_write2_b64 v6, %s, %s offset0:%d offset1:%d' % (src(4 * i, 2), src(4 * i + 2, 2), 128 * i, 128 * i + 4))

    WX = 188

    def w2_loads(self, st):
        out = [('s_add_u32 %s, %s, 4096' % (s(sC), s(sWP)), None)]
        for n in range(5):
            fi = 5 * st + n
            dst = a(4 * fi, 4) if fi < 64 else v(self.WX + 4 * (fi - 64), 4)
            out.append(('buffer_load_dwordx4 %s, %s, %s, %s offen offset:%d sc1' % (dst, v(vL16), s(rWS, 4), s(sWP if n < 4 else sC), 1024 * (n % 4)), None))
        if st < 13:
            out.append(('s_add_u32 %s, %s, 5120\ns_cmp_eq_u32 %s, %s\ns_cselect_b32 %s, %s, %s' % (
                s(sWP), s(sWP), s(sWP), s(sWE), s(sWP), s(sWB), s(sWP)), None))
        return out

    XA, WA, DX, DW, ONES, CS, B1 = 20, 24, 32, 36, 40, 44, 248
    ACC, FR = 64, 128
    XB, KK, AX = 192, 208, 224

    def g1_setup(self):
        I = self.I
        L = v(vL)
        I('s_mul_i32 %s, %s, 7\ns_add_u32 %s, %s, %s\ns_lshl_b32 %s, %s, 2\ns_min_u32 %s, %s, 50' % (
            s(sT0), s(sFH), s(sT0), s(sT0), s(sCC), s(sNT0), s(sT0), s(sNT0), s(sNT0)))
        I('v_lshrrev_b32 v6, 3, %s\nv_mul_u32_u24 v6, %d, v6\nv_lshrrev_b32 v7, 4, %s\nv_and_b32 v8, 7, %s\nv_xor_b32 v8, v8, v7' % (L, 64 * 1280, L, L))
        I('v_lshl_add_u32 %s, v8, 4, v6' % v(self.DX))
        I('v_xor_b32 v6, 64, %s' % v(self.DX))
        I('v_add_u32 %s, 256, v6\nv_add_u32 %s, 512, %s\nv_add_u32 %s, 768, v6' % (v(self.DX + 1), v(self.DX + 2), v(self.DX), v(self.DX + 3)))
        I('v_mul_u32_u24 v6, 3456, v7\nv_lshlrev_b32 v7, 2, v7\nv_and_b32 v8, 15, %s\nv_xor_b32 v8, v8, v7\nv_lshl_add_u32 %s, v8, 4, v6' % (L, v(self.DW)))
        I('v_xor_b32 v8, 2, v8\nv_lshl_add_u32 v6, v8, 4, v6')
        step = 4 * 3456 - 1024
        I('v_add_u32 %s, %d, %s\nv_add_u32 %s, %d, v6\nv_add_u32 %s, %d, v6' % (
            v(self.DW + 1), step, v(self.DW), v(self.DW + 2), 2 * step, v(self.DW + 3), 3 * step))
        I('s_lshl_b32 %s, %s, 2\ns_add_u32 %s, %s, %s\ns_mul_i32 %s, %s, 1280' % (s(sT0), s(sW), s(sT0), s(sT0), s(sTB), s(sDX), s(sT0)))
        I('s_mul_i32 %s, %s, %d\ns_lshl_b32 %s, %s, 6\ns_add_u32 %s, %s, %s' % (s(sDW), s(sW), 16 * 3456, s(sT0), s(sNT0), s(sDW), s(sDW), s(sT0)))
        I('s_lshl_b32 %s, %s, 12' % (s(sD), s(sW)))
        I('s_mul_i32 %s, %s, 5\ns_lshr_b32 %s, %s, 1\ns_mul_i32 %s, %s, 3\ns_add_u32 %s, %s, %s' % (
            s(sT0), s(sMU), s(sT0), s(sT0), s(sKC), s(sCC), s(sKC), s(sKC), s(sT0)))
        I('s_mul_i32 %s, %s, 26\ns_lshr_b32 %s, %s, 8\ns_mul_i32 %s, %s, 10\ns_sub_u32 %s, %s, %s' % (
            s(sT0), s(sKC), s(sT0), s(sT0), s(sT0), s(sT0), s(sKC), s(sKC), s(sT0)))
        if not self.o.get('rot1', 0):
            I('s_mov_b32 %s, 0' % s(sKC))
        I('s_lshl_b32 %s, %s, 7\ns_add_u32 %s, %s, %s\ns_mul_i32 %s, %s, %d\ns_add_u32 %s, %s, %s' % (
            s(sT0), s(sKC), s(sDX), s(sDX), s(sT0), s(sT0), s(sKC), 64 * 3456, s(sDW), s(sDW), s(sT0)))

    def g1_dma(self, c):
        slot = (c % 4) * 32768
        out = [('s_add_u32 m0, %s, %d' % (s(sD), slot), None)]
        for i in range(4):
            out.append(('buffer_load_dwordx4 %s, %s, %s offen offset:%d%s lds' % (v(self.DX + i), s(rQ, 4), s(sDX), 1024 * i, ' nt' if self.o.get('xnt') else ''), 'c%d' % c))
        second = [('s_add_u32 m0, %s, %d' % (s(sD), slot + 16384), None)]
        for i in range(4):
            second.append(('buffer_load_dwordx4 %s, %s, %s offen offset:%d%s lds' % (v(self.DW + i), s(rW1, 4), s(sDW), 1024 * i, ' nt' if self.o.get('wnt') else ''), 'c%d' % c))
        if c < 9:
            second.append(('s_add_u32 %s, %s, 128\ns_add_u32 %s, %s, %d' % (s(sDX), s(sDX), s(sDW), s(sDW), 64 * 3456), None))
            second.append(('s_cmp_eq_u32 %s, %d\ns_cselect_b32 %s, 1280, 0\ns_cselect_b32 %s, %d, 0\ns_sub_u32 %s, %s, %s\ns_sub_u32 %s, %s, %s' % (
                s(sKC), 9 - c, s(sVAL), s(sSPIN), 640 * 3456, s(sDX), s(sDX), s(sVAL), s(sDW), s(sDW), s(sSPIN)), None))
        return out, second

    def g1_frag_setup(self):
        I = self.I
        L = v(vL)
        I('s_lshr_b32 %s, %s, 1\ns_and_b32 %s, %s, 1' % (s(sI), s(sW), s(sJ), s(sW)))
        I('v_and_b32 v6, 15, %s\nv_lshrrev_b32 v7, 1, v6\nv_lshrrev_b32 v8, 4, %s\nv_xor_b32 v7, v7, v8' % (L, L))
        I('s_lshl_b32 %s, %s, 13\nv_lshlrev_b32 v6, 7, v6\nv_add_u32 v6, %s, v6' % (s(sT0), s(sJ), s(sT0)))
        I('v_lshl_add_u32 %s, v7, 4, v6\nv_xor_b32 %s, 64, %s' % (v(self.XA), v(self.XA + 1), v(self.XA)))
        I('v_add_u32 %s, 0x10000, %s\nv_add_u32 %s, 0x10000, %s' % (v(self.XA + 2), v(self.XA), v(self.XA + 3), v(self.XA + 1)))
        I('v_bfe_u32 v6, %s, 2, 2\nv_lshl_add_u32 v7, v8, 3, v6\nv_lshlrev_b32 v7, 8, v7\nv_and_b32 v9, 3, %s\nv_lshl_add_u32 v7, v9, 3, v7' % (L, L))
        I('v_add_u32 v7, 16384, v7\nv_and_b32 v8, 1, v8\nv_lshl_add_u32 v6, v6, 1, v8\ns_lshl_b32 %s, %s, 1\nv_xor_b32 v6, %s, v6' % (s(sT0), s(sW), s(sT0)))
        I('v_lshl_add_u32 %s, v6, 5, v7' % v(self.WA))
        for k in range(1, 4):
            I('v_xor_b32 %s, %d, %s' % (v(self.WA + k), 32 * k, v(self.WA)))
        for k in range(4):
            I('v_add_u32 %s, 0x10000, %s' % (v(self.WA + 4 + k), v(self.WA + k)))
        for k in range(4):
            I('v_mov_b32 %s, 0x3f803f80' % v(self.ONES + k))

    def b1_issue(self):
        I = self.I
        I('s_add_u32 %s, %s, %s\ns_lshl_b32 %s, %s, 6' % (s(sKO), s(sW), s(sNT0), s(sKO), s(sKO)))
        I('v_and_b32 v14, 15, %s\nv_lshl_add_u32 v14, v14, 1, %s\nv_xor_b32 v15, 64, v14' % (v(vL), s(sKO)))
        for k in range(4):
            I('global_load_ushort %s, %s, %s offset:%d' % (v(self.B1 + k), v(14 + k // 2), s(pB1, 2), 32 * (k & 1)))

    def g1_reads(self, c, k, fs):
        slot = c % 4
        hi = slot // 2
        off = (slot % 2) * 32768
        F = self.FR + 32 * fs
        out = []
        for i in range(4):
            for hf in range(2):
                out.append('ds_read_b64_tr_b16 %s, %s offset:%d' % (v(F + 16 + 4 * i + 2 * hf, 2), v(self.WA + 4 * hi + i), off + 8192 * k + 1024 * hf))
            out.append('ds_read_b128 %s, %s offset:%d' % (v(F + 4 * i, 4), v(self.XA + 2 * hi + k), off + 2048 * i))
        return out

    def g1_mfmas(self, fs, first):
        F = self.FR + 32 * fs
        out = []
        for d in range(4):
            for aa, b in [(d, x) for x in range(d)] + [(x, d) for x in range(d + 1)]:
                acc = v(self.ACC + 4 * (4 * aa + b), 4)
                out.append('v_mfma_f32_16x16x32_bf16 %s, %s, %s, %s' % (acc, v(F + 16 + 4 * aa, 4), v(F + 4 * b, 4), '0' if first else acc))
        return out

    def g1_cs(self, fs, first):
        F = self.FR + 32 * fs
        return ['v_mfma_f32_16x16x32_bf16 %s, %s, %s, %s' % (v(self.CS + 4 * k, 4), v(self.ONES, 4), v(F + 16 + 4 * k, 4), '0' if first else v(self.CS + 4 * k, 4))
                for k in range(2)]

    def ax_build(self, aa, cs):
        d = self.AX + 4 * aa
        b1 = v(self.B1 + aa)
        return ['v_cvt_pk_bf16_f32 v6, %s, %s' % (cs, cs), 'v_mov_b32 %s, %s' % (v(d + 2), b1), 'v_and_b32 v7, 0xffff0000, v6',
                'v_sub_f32 v7, %s, v7' % cs, 'v_and_b32 v6, 0xffff, v6', 'v_cvt_pk_bf16_f32 %s, %s, v7' % (v(d), cs),
                'v_lshl_or_b32 %s, %s, 16, v6' % (v(d + 1), b1)]

    def role_g(self):
        I, e, o = self.I, self.e, self.o
        cap = self.capture
        L = v(vL)
        self.srd(rK, 10, 2621440)
        self.srd(rV, 12, 2621440)
        I('s_mul_i32 %s, %s, 7\ns_add_u32 %s, %s, %s' % (s(sEARLY), s(sD), s(sEARLY), s(sEARLY), s(sCC)))
        I('s_mov_b32 %s, %s' % (s(sROUND), s(sA)))
        self.kv_task(sEARLY)
        self.kv_issue(KV, 198)
        self.stats_issue(sROUND)
        self.srd(rW1, 22, 640 * 3456)
        self.g1_setup()
        self.stamp(1)

        def conv_ids():
            I = self.I
            I('s_mul_i32 %s, %s, 7\ns_add_u32 %s, %s, %s\ns_lshl_b32 %s, %s, 1' % (s(sCH), s(sMU), s(sCH), s(sCH), s(sCC), s(sCH), s(sCH)))
            I('s_mul_i32 %s, %s, 80\ns_add_u32 %s, %s, %s\ns_add_u32 %s, %s, %s' % (s(sT0), s(sX), s(sCH), s(sCH), s(sT0), s(sCH), s(sCH), s(sI)))
            I('s_mul_i32 %s, %s, %d\ns_add_u32 %s, %s, %d\ns_add_u32 %s, %s, 65536' % (s(sUB), s(sI), UBSZ, s(sHB), s(sUB), KV, s(sUB), s(sUB)))

        def w2task():
            self.srd(rW2, 26, 1728 * 1280)
            self.I('s_mov_b32 %s, %s' % (s(sT0), s(sEARLY)))
            self.w2_setup()
        shadow = (cap(self.kv_setup, KV, W2S) + cap(self.srd, rH, 16, 2621440) + cap(self.g1_frag_setup) + cap(w2task) + cap(self.lds_init))
        dm = sum(self.g1_dma(0), [])
        self.run(self.weave(shadow, (dm, 1, o.get('d0', 6))))
        self.stamp(2)
        self.kv_weights(198)
        e.wait_tag('kv', and_lg=0)
        I('s_barrier')
        kvc = self.kv_code(0)
        self.run(kvc[:12])
        self.stats_sums()
        dm = sum(self.g1_dma(1), [])
        fin = cap(self.stats_finish)
        cutf = max(i for i, x in enumerate(fin) if x[0].startswith('s_mov_b32 exec_lo'))
        self.run(self.weave(kvc[12:] + fin[:cutf], (dm, 2, o.get('d1', 9))) + fin[cutf:])
        I('global_load_dword v240, %s, %s sc1' % (v(vZ), s(pDBG, 2)), 'z')
        self.stamp(3)
        e.wait_tag('c0')
        I('s_barrier')
        self.run(self.g1_reads(0, 0, 0))
        self.stamp(4)
        c2, c3 = self.g1_dma(2), self.g1_dma(3)
        memq = {0: c2[0] + c2[1], 1: c3[0] + c3[1]}
        sW2I, sW2, sSIG, sSIG2 = o.get('sw2i', 2), o.get('sw2', 7), o.get('ssig', 3), o.get('ssig2', 9)
        memq.setdefault(sW2I, []).extend(cap(self.w2_issue))
        lag = 1
        side = {0: cap(conv_ids) + cap(self.gemm2_ids) + cap(self.srd, rOUT, 30, 2621440) + cap(self.w2_addr) + cap(self.late_setup)}
        side.setdefault(sW2, []).extend(cap(self.w2_reads) + cap(self.w2_stores))
        queue = []
        NE = o.get('ne', 5)
        early = [x for g in range(NE) for x in self.w2_loads(g)]

        def take_early(n):
            out = []
            while early and n > 0:
                x = early.pop(0)
                out.append(x)
                n -= x[0].startswith('buffer')
            return out
        pFS, cFS = o.get('pfs', 10), o.get('cfs', 13)
        pFK, cFK = o.get('pfk', 14), o.get('cfk', 17)
        second = []
        for c in range(10):
            for k in range(2):
                st = 2 * c + k
                first = st == 0
                mf = self.g1_mfmas(k, first)
                cs = self.g1_cs(k, first)
                mem, extra = [], []
                if k == 1 and c < 9:
                    e.wait_tag('c%d' % (c + 1), and_lg=0)
                    if st == sW2:
                        e.wait_tag('w2')
                    if st == sSIG:
                        self.poll_check(240, None, 1, dbg=True)
                    if st == sSIG2:
                        assert not queue
                        e.wait_tag('w2p')
                    if st == cFS:
                        self.poll_check(241, s(sEARLY), 16)
                    if st == cFK:
                        self.poll_check(242, s(sB), 32)
                        self.poll_check(243, s(sD), 56)
                    I('s_barrier')
                    if st == sSIG:
                        I('s_lshl_b32 %s, %s, 7\ns_lshl_b32 %s, %s, 7\ns_add_u32 %s, %s, %d' % (
                            s(sKO), s(sR), s(sROUND), s(sKCG), s(sROUND), s(sROUND), FK))
                        self.signal_wave0([s(sKO), s(sROUND)], 14)
                    if st == sSIG2:
                        I('s_lshl_b32 %s, %s, 7\ns_add_u32 %s, %s, %d' % (s(sKO), s(sW2Q), s(sKO), s(sKO), FW))
                        self.signal_wave0([s(sKO)], 14)
                if st >= 2 and (st - 2) // 2 + 4 < 10:
                    if k == 0:
                        mem, second = self.g1_dma((st - 2) // 2 + 4)
                    else:
                        mem = second
                mem = mem + memq.get(st, [])
                queue += side.get(st, [])
                reads = self.g1_reads(c, 1, 1) if k == 0 else (self.g1_reads(c + 1, 0, 0) if c < 9 else [])
                if st == pFS:
                    extra += ['s_lshl_b32 %s, %s, 7' % (s(sEARLY), s(sR)), lambda: self.poll_issue(241, s(sEARLY))]
                if st == o.get('sh', 11):
                    mem = mem + cap(self.h_issue, sHB, sCH, 244)
                if st == 12:
                    extra += cap(self.b1_issue)
                if st == 16:
                    extra += cap(self.w2_pointers)
                if st == cFS + 1:
                    def stat_loads():
                        I = self.I
                        I('s_lshl_b32 %s, %s, 1\ns_add_u32 %s, %s, %s\ns_lshl_b32 %s, %s, 10\ns_add_u32 %s, %s, %d' % (
                            s(sA), s(sR), s(sA), s(sA), s(sJ), s(sA), s(sA), s(sA), s(sA), STA))
                        I('s_mov_b32 m0, %s' % s(sEARLY))
                        I('buffer_load_dwordx4 %s, %s, %s offen sc1 lds' % (v(vL16), s(rWS, 4), s(sA)), 'st')
                        I('s_add_u32 m0, %s, 1024\ns_add_u32 %s, %s, %d' % (s(sEARLY), s(sA), s(sA), STB - STA))
                        I('buffer_load_dwordx4 %s, %s, %s offen sc1 lds' % (v(vL16), s(rWS, 4), s(sA)), 'st')

                    def stat_addr():
                        I = self.I
                        I('v_add_u32 v52, %s, %s\nv_mov_b32 v56, 0\nv_mov_b32 v57, 0\nv_mov_b32 v58, 0\nv_mov_b32 v59, 0' % (s(sEARLY), v(vL16)))
                        I('ds_write_b128 v52, v[56:59] offset:2048')
                        I('v_and_b32 v53, 15, %s\nv_lshl_add_u32 v53, v53, 4, %s\nv_add_u32 v54, 2048, v53' % (L, s(sEARLY)))
                        I('v_cmp_gt_u32 vcc, 16, %s\nv_cndmask_b32 v54, v54, v53, vcc' % L)
                    mem = mem + cap(stat_loads)
                    extra += cap(stat_addr)
                if st == cFS:
                    extra += ['s_mul_i32 %s, %s, 3072' % (s(sEARLY), s(sW)), 's_add_u32 %s, %s, %d' % (s(sEARLY), s(sEARLY), W2S)]
                if st == 18:
                    extra += [lambda: e.wait_tag('st')]
                    for b in range(4):
                        extra += ['ds_read_b128 %s, v54 offset:%d' % (v(self.XB + 4 * b, 4), 256 * b),
                                  'ds_read_b128 %s, v53 offset:%d' % (v(self.KK + 4 * b, 4), 1024 + 256 * b)]
                if st == pFK:
                    extra += ['s_lshr_b32 %s, %s, 6' % (s(sB), s(sCH)), 's_lshl_b32 %s, %s, 7' % (s(sB), s(sB)),
                              's_add_u32 %s, %s, %d' % (s(sB), s(sB), FK), lambda: self.poll_issue(242, s(sB)),
                              's_lshr_b32 %s, %s, 1' % (s(sD), s(sCT)), 's_lshl_b32 %s, %s, 7' % (s(sD), s(sD)),
                              's_add_u32 %s, %s, %d' % (s(sD), s(sD), FW), lambda: self.poll_issue(243, s(sD))]
                if st == 15:
                    extra += cap(self.conv_pads, sHB, sUB) + ['v_mov_b32 %s, 0' % v(self.AX + 4 * q + 3) for q in range(4)]
                if st == 16:
                    extra += [lambda: e.wait_tag('h')] + cap(self.conv_dfix_a, sHB)
                    extra += ['s_lshl_b32 %s, %s, 7' % (s(sT0), s(sW)), 's_add_u32 %s, %s, %d' % (s(sT0), s(sT0), CSX),
                              'v_and_b32 v16, 15, %s' % L, 'v_lshl_add_u32 v16, v16, 2, %s' % s(sT0), 'v_xor_b32 v17, 128, v16']
                if st == 17:
                    extra += cap(self.conv_dfix_b, 244)
                if st == cFK:
                    mem = mem + cap(self.u_issue, sCH, lambda x, n: a(240 + x, n))
                elif st > cFK:
                    mem = mem + take_early(4)
                if st == 18:
                    def h_addr():
                        I = self.I
                        I('s_lshl_b32 %s, %s, 1\ns_add_u32 %s, %s, %s\ns_mul_i32 %s, %s, 54\ns_add_u32 %s, %s, %s' % (
                            s(sA), s(sR), s(sA), s(sA), s(sJ), s(sA), s(sA), s(sA), s(sA), s(sNT0)))
                        I('s_add_u32 %s, %s, %s\ns_xor_b32 %s, %s, 1\ns_add_u32 %s, %s, %s' % (s(sB), s(sA), s(sW), s(sT0), s(sW), s(sA), s(sA), s(sT0)))
                        I('s_lshl_b32 %s, %s, 12\ns_add_u32 %s, %s, %d\ns_lshl_b32 %s, %s, 12\ns_add_u32 %s, %s, %d' % (
                            s(sB), s(sB), s(sB), s(sB), HP, s(sA), s(sA), s(sA), s(sA), HP))
                        I('s_lshl_b32 %s, %s, 4\ns_add_u32 %s, %s, %s\ns_cmp_eq_u32 %s, 14' % (s(sT0), s(sI), s(sT0), s(sT0), s(sQ), s(sT0)))
                        I('s_cselect_b32 %s, %d, %s\ns_cselect_b32 %s, %d, %s' % (s(sA), WS_BYTES, s(sA), s(sB), WS_BYTES, s(sB)))
                    extra += cap(h_addr)
                if st < 19:
                    assert not (queue and st >= 10)
                    nmem = sum(1 for x in mem if not x[0].startswith('s_'))
                    room = max(0, o.get('cap', 38) - len(reads) - len(mem) - len(extra))
                    if st == sSIG2 - 1:
                        room = len(queue)
                    extra = queue[:room] + extra
                    queue = queue[room:]
                    ne = len(extra)
                    self.run(self.weave(mf + cs, (reads, 0, 1), (mem, 1, max(2.0, 16.0 / max(nmem, 1))),
                                        (extra, 12 if ne <= 8 else 1, 0.7 if ne <= 8 else 17.0 / ne)))
                else:
                    self.run(cs + self.weave(mf[:5], (mem, 0, 2)))
                    I('ds_write2_b32 v16, %s, %s offset1:16' % (v(self.CS), v(self.CS + 4)))
                    self.run(mf[5:7])
                    e.wait_lg(0)
                    I('s_barrier')
                    I('ds_read2_b32 v[18:19], v17 offset1:16')
                    own = self.ax_build(0, v(self.CS)) + self.ax_build(1, v(self.CS + 4))
                    self.run(self.weave(mf[7:15], (own, 0, 0.55)) + self.ax_build(2, 'v18')[:2] + [mf[15]] + self.ax_build(2, 'v18')[2:] + self.ax_build(3, 'v19'))
                if k == 1:
                    self.stamp(20 + c)
                elif c >= 4:
                    self.stamp(10 + c)
        assert not queue
        self.stamp(5)
        self.g1_epilogue(take_early, NE)
        assert not early

    def g1_epilogue(self, take_early, NE):
        I, e = self.I, self.e
        for p in range(2):
            for b in range(4):
                for aa in (2 * p, 2 * p + 1):
                    acc = v(self.ACC + 4 * (4 * aa + b), 4)
                    I('v_mfma_f32_16x16x32_bf16 %s, %s, %s, %s' % (acc, v(self.AX + 4 * aa, 4), v(self.XB + 4 * b, 4), acc))
                if b & 1:
                    self.run(take_early(1))
        self.stamp(6)
        T = 128
        per = self.o.get('gl', 2)
        for p in range(2):
            for b in range(4):
                n = 4 * p + b
                kk, sg = v(self.KK + 4 * b, 2), v(self.KK + 4 * b + 2, 2)
                prs = [self.ACC + 4 * (4 * (2 * p + (j >> 1)) + b) + 2 * (j & 1) for j in range(4)]
                tp = [T + 16 * (n & 1) + 2 * j for j in range(4)]
                tq = [T + 16 * (n & 1) + 8 + 2 * j for j in range(4)]
                out = 160 + 4 * n
                seq = []
                seq += ['v_pk_mul_f32 %s, %s, %s' % (v(t, 2), v(q, 2), v(q, 2)) for q, t in zip(prs, tp)]
                seq += ['v_pk_fma_f32 %s, %s, %s, %s op_sel:[0,1,0] op_sel_hi:[1,1,0]' % (v(t, 2), v(t, 2), kk, kk) for t in tp]
                seq += ['v_pk_mul_f32 %s, %s, %s' % (v(t, 2), v(t, 2), v(q, 2)) for q, t in zip(prs, tp)]
                seq += ['v_exp_f32 %s, %s' % (v(t + h), v(t + h)) for t in tp for h in range(2)]
                seq += ['v_pk_fma_f32 %s, %s, %s, %s op_sel:[0,0,0] op_sel_hi:[1,0,0]' % (v(t, 2), v(t, 2), sg, sg) for t in tp]
                seq += ['v_rcp_f32 %s, %s' % (v(t + h), v(t + h)) for t in tp for h in range(2)]
                seq += ['v_pk_mul_f32 %s, %s, %s' % (v(u, 2), v(t, 2), v(q, 2)) for q, t, u in zip(prs, tp, tq)]
                seq += ['v_cvt_pk_bf16_f32 %s, %s, %s' % (v(out + j), v(u), v(u + 1)) for j, u in enumerate(tq)]
                self.run(self.weave(seq, (take_early(per if n < 7 else 99), 3, 11)))
                I('buffer_store_dwordx4 %s, %s, %s, %s offen offset:%d sc1' % (
                    v(out, 4), v(vL16), s(rWS, 4), s(sB if p == 0 else sA), 1024 * b), 'H')
                if n == 1:
                    self.conv_ustage(sUB, lambda x, n: a(240 + x, n))
        self.stamp(7)
        self.h_tail = list(e.vm)
        I('s_mov_b32 %s, 1' % s(sISG))
        e.wait_lg(0)
        I('s_barrier')
        self.stamp_sync()

    def role_s(self):
        I, e = self.I, self.e
        cap = self.capture
        L = v(vL)
        zwg = 7 if self.o.get('x_map') else 56
        lab = self.lab('Lnoz')
        I('s_cmp_lg_u32 s2, %d\ns_cbranch_scc1 %s\ns_cmp_lg_u32 %s, 0\ns_cbranch_scc1 %s' % (zwg, lab, s(sW), lab))
        I('v_lshlrev_b32 v6, 7, %s\nbuffer_store_dword %s, v6, %s, 0 offen sc1' % (L, v(vZ), s(rWS, 4)))
        e.vm.pop()
        e.label(lab)
        self.stats_issue()
        self.srd(rK, 10, 2621440)
        self.srd(rV, 12, 2621440)

        def task(t):
            self.I('s_mul_i32 %s, %s, 3\ns_add_u32 %s, %s, %d' % (s(sT0), s(sD), s(sT0), s(sT0), 224 + t))
            self.kv_task(sT0)
        KB = 3 * 2 * (HBSZ + UBSZ) + 1024
        STEP = 2 * (HBSZ + UBSZ)
        for t in range(3):
            task(t)
            self.kv_issue(KB + t * KVSZ, 20 + 2 * t, 'kv%d' % t)
            if t == 0:
                self.kv_setup(KB, 0)
        lab = self.lab('Lnoz')
        I('s_cmp_lg_u32 s2, %d\ns_cbranch_scc1 %s\ns_cmp_lg_u32 %s, 0\ns_cbranch_scc1 %s' % (zwg, lab, s(sW), lab))
        e.raw('    s_waitcnt vmcnt(%d)' % len(e.vm))
        I('v_mov_b32 v6, 1\ns_mov_b64 exec, 1\nglobal_store_dword %s, v6, %s sc1\ns_mov_b64 exec, -1' % (v(vZ), s(pDBG, 2)))
        e.vm.pop()
        e.label(lab)
        self.stamp(1)
        self.srd(rH, 16, 2621440)
        self.srd(rOUT, 30, 2621440)
        self.gemm2_ids()
        I('s_mul_i32 %s, %s, 80\ns_mul_i32 %s, %s, 6\ns_add_u32 %s, %s, %s\ns_add_u32 %s, %s, 56' % (
            s(sCH), s(sX), s(sT0), s(sMU), s(sCH), s(sCH), s(sT0), s(sCH), s(sCH)))
        I('s_lshr_b32 %s, %s, 6\ns_lshl_b32 %s, %s, 7\ns_add_u32 %s, %s, %d' % (s(sDX), s(sCH), s(sDX), s(sDX), s(sDX), s(sDX), FK))
        I('s_add_u32 %s, %s, 5\ns_lshr_b32 %s, %s, 6\ns_lshl_b32 %s, %s, 7\ns_add_u32 %s, %s, %d' % (
            s(sEARLY), s(sCH), s(sEARLY), s(sEARLY), s(sEARLY), s(sEARLY), s(sEARLY), s(sEARLY), FK))
        I('s_lshr_b32 %s, %s, 1\ns_lshl_b32 %s, %s, 7\ns_add_u32 %s, %s, %d' % (s(sDW), s(sCT), s(sDW), s(sDW), s(sDW), s(sDW), FW))
        I('s_lshr_b32 %s, %s, 1\ns_add_u32 %s, %s, %s' % (s(sT0), s(sW), s(sCH), s(sCH), s(sT0)))
        I('s_mul_i32 %s, %s, %d\ns_add_u32 %s, %s, %d' % (s(sHB), s(sT0), HBSZ + UBSZ, s(sUB), s(sHB), HBSZ))
        self.stats_sums()
        self.stats_finish()
        self.stamp(2)
        for t in range(3):
            self.kv_weights(20 + 2 * t)
            e.wait_tag('kv%d' % t)
            I('s_barrier')
            task(t)
            self.run(self.kv_code(t * KVSZ))
            I('s_lshl_b32 %s, %s, 7\ns_add_u32 %s, %s, %d' % (s(sM + t), s(sKCG), s(sM + t), s(sM + t), FK) if t == 2 else
              's_lshl_b32 %s, %s, 7\ns_add_u32 %s, %s, %d' % (s(sW2Q + t), s(sKCG), s(sW2Q + t), s(sW2Q + t), FK))
            if t == 1:
                I('global_load_dword v30, %s, %s sc1' % (v(vZ), s(pDBG, 2)), 'z')
        self.stamp(3)
        self.late_setup()
        self.poll_check(30, None, 1, dbg=True)
        e.wait_tag('prep')
        I('s_barrier')
        I('s_lshl_b32 %s, %s, 7' % (s(sA), s(sR)))
        self.signal_wave0([s(sA), s(sW2Q), s(sW2Q + 1), s(sM + 2)], 6)
        self.stamp(4)
        for r in range(3):
            I('s_add_u32 %s, %s, %d\ns_add_u32 %s, %s, %d' % (s(sI), s(sHB), r * STEP, s(sJ), s(sCH), 2 * r))
            self.h_issue(sI, sJ, 244 + r)
            I('s_add_u32 %s, %s, %d' % (s(sJ), s(sUB), r * STEP))
            self.conv_pads(sI, sJ)
        self.poll_issue(241, s(sDX))
        self.poll_issue(242, s(sEARLY))
        e.wait_tag('h')
        for r in range(3):
            I('s_add_u32 %s, %s, %d' % (s(sI), s(sHB), r * STEP))
            self.conv_dfix_a(sI)
            self.conv_dfix_b(244 + r)
        self.w2_pointers()
        self.poll_check(241, s(sDX), 32)
        self.poll_check(242, s(sEARLY), 32)
        for r in range(3):
            I('s_add_u32 %s, %s, %d' % (s(sJ), s(sCH), 2 * r))
            self.u_issue(sJ, lambda x, n: v(64 + 8 * r + x, n))
        for r in range(3):
            I('s_add_u32 %s, %s, %d' % (s(sJ), s(sUB), r * STEP))
            self.conv_ustage(sJ, lambda x, n: v(64 + 8 * r + x, n))
        I('s_mov_b32 %s, 0\ns_mov_b32 %s, 0\ns_mov_b32 %s, %d' % (s(sISG), s(sROUND), s(sWP), WS_BYTES))
        e.wait_lg(0)
        I('s_barrier')
        self.stamp(8)
        self.stamp_sync()
        e.label('L_plain')
        self.conv_pair(True)
        I('s_add_u32 %s, %s, 1\ns_add_u32 %s, %s, 2' % (s(sROUND), s(sROUND), s(sCH), s(sCH)))
        I('v_add_u32 v2, %d, v2\nv_add_u32 v3, %d, v3\nv_add_u32 v4, %d, v4' % (STEP, STEP, STEP))
        I('s_cmp_ge_u32 %s, 2\ns_cbranch_scc1 L_conv' % s(sROUND))
        self.poll_issue(6, s(sDW))
        self.poll_check(6, s(sDW), 56)
        I('s_mov_b32 %s, %s\ns_branch L_plain' % (s(sWP), s(sW0)))

    OWN, XN, RAW = 232, 212, 188

    def conv(self):
        self.e.label('L_conv')
        self.conv_pair(False)

    def conv_pair(self, plain):
        I, e = self.I, self.e
        e.forget()
        if not plain:
            e.vm = [dict(tag=x['tag'], wr=set()) for x in self.h_tail]
            I('s_lshl_b32 %s, %s, 7\ns_add_u32 %s, %s, %d' % (s(sD), s(sR2), s(sD), s(sD), FH))
        I('s_lshl_b32 %s, %s, 7\ns_add_u32 %s, %s, %d' % (s(sYOFF), s(sCH), s(sYOFF), s(sYOFF), YP))
        lb, le = self.lab('LconvB'), self.lab('LconvE')
        I('s_bitcmp1_b32 %s, 0\ns_cbranch_scc1 %s' % (s(sW), lb))
        vm0, hist0 = list(e.vm), list(e.hist)
        keep = {('v', i) for i in (0, 1, 2, 3, 4, 5, 8, 9, 10, 11, 12, 13, 252, 255)} | {('a', i) for i in range(256)}
        e.written = set(keep)
        self.conv_body(list(range(8)) + list(range(23, 32)), (23,), plain)
        I('s_branch ' + le)
        e.label(lb)
        e.vm, e.lg, e.hist = list(vm0), [], list(hist0)
        e.written = set(keep)
        self.conv_body(list(range(7, 24)), (7,), plain)
        e.label(le)

    def conv_body(self, tiles, carry, plain):
        I, e = self.I, self.e
        ACC, HF, UF, NU = 16, 84, 148, 4
        T1, T2, YV, YPK = 164, 166, 168, 172
        NE = self.o.get('ne', 5)
        acc = {t: ACC + 4 * i for i, t in enumerate(tiles)}
        mmax = max(tiles)
        nsig = mmax // 2 + 1

        def uread(m):
            return 'ds_read2_b64 %s, %s offset0:%d offset1:%d' % (v(UF + 4 * (m % NU), 4), v(2 + m // 16), 16 * (m % 16) + 4, 16 * (m % 16))

        def hread(sg):
            return ['ds_read_b64_tr_b16 %s, v4 offset:%d' % (v(HF + 4 * sg + 2 * hf, 2), 256 * sg + 32 * hf) for hf in range(2)]

        steps = [[t for t in tiles if t >= m and (t - m) % 2 == 0] for m in range(mmax + 1)]
        order = []
        for m in range(mmax + 1):
            for t in steps[m]:
                if (t - m) // 2 not in order:
                    order.append((t - m) // 2)
        I(uread(0))
        for sg in order[:3]:
            self.run(hread(sg))
        I(uread(1))
        pend_h = [(sg, x) for sg in order[3:] for x in hread(sg)]

        def post(t):
            z = acc[t]
            cur, prv = t & 1, (t & 1) ^ 1
            out = []
            dpp = ' row_mask:0xf bank_mask:0xf'
            has_prev = (t - 1) in acc and t not in carry
            chain = [(T1 + cur, z + 3, (acc[t - 1] + 3) if has_prev else None, z + 2),
                     (T2 + cur, T1 + cur, T1 + prv, z + 1)]
            if t not in carry:
                chain.append((YV + (t & 1), T2 + cur, T2 + prv, z))
            ror = ['v_add_f32_dpp %s, %s, %s wave_ror:1%s' % (v(d), v(psrc), v(add), dpp) for d, src, psrc, add in chain] if has_prev else []
            shr = ['v_add_f32_dpp %s, %s, %s wave_shr:1%s%s' % (v(d), v(src), v(add), dpp, '' if has_prev else ' bound_ctrl:0')
                   for d, src, psrc, add in chain]
            out = [ror[0], shr[0], ror[1], ror[2], shr[1], shr[2]] if has_prev else shr
            if t not in carry and t & 1:
                out.append('v_cvt_pk_bf16_f32 %s, %s, %s' % (v(YPK + 4 * ((t >> 3) & 1) + ((t & 7) >> 1)), v(YV), v(YV + 1)))
                if t & 7 == 7:
                    g = t >> 3
                    out.append('s_add_u32 %s, %s, %d' % (s(sT0), s(sYOFF), g * 8 * 640 * 128))
                    out.append(('buffer_store_dwordx4 %s, v5, %s, %s offen sc1' % (v(YPK + 4 * (g & 1), 4), s(rWS, 4), s(sT0)), 'y'))
            return out

        def h_arrive():
            lab = self.lab('Lh')
            lg = list(e.lg)
            I('s_cmp_eq_u32 %s, 0\ns_cbranch_scc1 %s' % (s(sISG), lab))
            e.wait_tag('H')
            self.arrive(LCNT, 6)
            e.label(lab)
            e.lg = lg

        def h_done():
            lab = self.lab('Lh')
            I('s_cmp_eq_u32 %s, 0\ns_cbranch_scc1 %s' % (s(sISG), lab))
            I('s_lshl_b32 %s, %s, 7\ns_add_u32 %s, %s, %d' % (s(sT0), s(sR), s(sT0), s(sT0), FH))
            e.raw('    s_waitcnt lgkmcnt(%d)' % min(15, self.ds_since))
            self.arrive_done(s(sT0), 6)
            e.label(lab)

        RAW, XN, OWN = self.RAW, self.XN, self.OWN
        raw = []
        for q in range(4):
            raw += [('s_add_u32 m0, %s, %d' % (s(sXL), 1088 * q), None),
                    ('s_add_u32 %s, %s, %d' % (s(sB), s(sT1), (256 * (q & 1) + (q >> 1)) * 1280), None),
                    ('buffer_load_dwordx4 v12, %s, %s offen lds' % (s(rQ, 4), s(sB)), 'raw')]
        raw += [('s_mul_i32 %s, %s, 160' % (s(sB), s(sCT)), None), ('v_min_u32 v14, 39, %s' % v(vL), None),
                ('v_lshl_add_u32 v14, v14, 2, %s' % s(sB), None), ('s_add_u32 m0, %s, 4352' % s(sXL), None),
                ('global_load_lds_dword v14, %s' % s(pB2, 2), 'raw'),
                ('v_lshrrev_b32 v15, 4, %s' % v(vL), None), ('v_lshl_add_u32 v15, v15, 3, %s' % s(sXL), None)]
        unpack = [lambda: e.wait_tag('raw')]
        for n in range(5):
            unpack += ['ds_read_b64 %s, v13 offset:%d' % (v(RAW + 2 * n, 2), 32 * n),
                       'ds_read_b64 %s, v15 offset:%d' % (v(RAW + 10 + 2 * n, 2), 4352 + 32 * n)]
        for i in range(10):
            x, b, d, o = RAW + i, RAW + 10 + i, XN + 2 * i, OWN + 2 * i
            unpack += ['v_lshlrev_b32 %s, 16, %s' % (v(d), v(x)), 'v_and_b32 %s, 0xffff0000, %s' % (v(d + 1), v(x)),
                       'v_lshlrev_b32 %s, 16, %s' % (v(o), v(b)), 'v_and_b32 %s, 0xffff0000, %s' % (v(o + 1), v(b)),
                       'v_add_f32 %s, %s, %s' % (v(o), v(o), v(d)), 'v_add_f32 %s, %s, %s' % (v(o + 1), v(o + 1), v(d + 1))]

        total = sum(len(x) for x in steps)
        jobs = []

        def spread(items, p0, p1):
            def scalar(x):
                return isinstance(x, tuple) and x[0].startswith('s_')
            n = sum(1 for x in items if not scalar(x))
            k = 0
            for x in items:
                jobs.append((p0 + (k * (p1 - p0)) / max(n, 1), x))
                k += not scalar(x)
        if plain:
            spread([x for g in range(NE) for x in self.w2_loads(g)], 16, total - 4)
        else:
            hs = self.o.get('hs_at', 44)
            jobs.append((hs, h_arrive))
            jobs.append((hs + 8, h_done))
            r0 = self.o.get('raw_at', 6)
            spread(raw, r0, r0 + 20)
            u0 = self.o.get('unp_at', 76)
            spread(unpack, u0, total - 26)
            spread([x for g in range(NE, 12) for x in self.w2_loads(g)], r0 + 20, total - 26)
            spread([x for g in (12, 13) for x in self.w2_loads(g)], total - 25, total - 9)
            jobs.append((total - 8, lambda: self.poll_issue(vP, s(sD), 'poll')))
        jobs.sort(key=lambda j: j[0])

        done = 0
        pending_post = []
        self.ds_since = 0
        counting = False
        for m, ts in enumerate(steps):
            n = len(ts)
            gaps = [[] for _ in range(n)]
            if m + 2 <= mmax:
                gaps[0].append(uread(m + 2))
            for i, x in enumerate(pending_post):
                gaps[min(n - 1, (i * n) // len(pending_post))].append(x)
            pending_post = []
            for i, t in enumerate(ts):
                sg = (t - m) // 2
                while any(q == sg for q, _ in pend_h):
                    I(pend_h.pop(0)[1])
                I('v_mfma_f32_16x16x32_bf16 %s, %s, %s, %s' % (
                    v(acc[t], 4), v(UF + 4 * (m % NU), 4), v(HF + 4 * sg, 4), '0' if m < 2 else v(acc[t], 4)))
                done += 1
                seq = [pend_h.pop(0)[1] for _ in range(min(2, len(pend_h)))] + gaps[i]
                while jobs and jobs[0][0] <= done:
                    seq.append(jobs.pop(0)[1])
                for x in seq:
                    if x is h_arrive:
                        assert not pend_h
                        counting = True
                    elif counting and isinstance(x, str) and x.startswith('ds_'):
                        self.ds_since += 1
                    self.run([x])
            if m % 4 == 1:
                self.stamp((50 if plain else 30) + m // 4)
            if m in acc:
                pending_post = post(m)
        assert not jobs and not pend_h
        self.run(pending_post)
        self.stamp_sync()

    def gemm2(self):
        I, e = self.I, self.e
        L = v(vL)
        ACC, HR, NR, WX, XN, OWN = 16, 76, 7, self.WX, self.XN, self.OWN
        PRE = self.o.get('pre', 3)
        e.forget()
        e.vm = [dict(tag='poll', wr={('v', vP)}), dict(tag='y', wr=set())]
        self.stamp(9)
        self.poll_check(vP, s(sD), 14)
        self.stamp(10)

        def hload(st):
            out = []
            for t in range(4):
                out.append('buffer_load_dwordx4 %s, %s, %s, %s offen sc1' % (
                    v(HR + 16 * (st % NR) + 4 * t, 4), v(8 + t), s(rWS, 4), s(sH0 if st == 0 else sHOFF)))
            if st < 13:
                out.append('s_add_u32 %s, %s, 4096\ns_cmp_eq_u32 %s, %s\ns_cselect_b32 %s, %s, %s' % (
                    s(sHOFF), s(sHOFF), s(sHOFF), s(sHE), s(sHOFF), s(sHB2), s(sHOFF)))
            return out
        for st in range(PRE):
            self.run(hload(st))
        I('s_lshl_b32 %s, %s, 1\ns_add_u32 %s, %s, %s\ns_lshl_b32 %s, %s, 2\ns_add_u32 %s, %s, %s' % (
            s(sB), s(sR2), s(sB), s(sB), s(sNU), s(sA), s(sB), s(sA), s(sA), s(sW)))
        I('s_lshl_b32 %s, %s, 7\ns_add_u32 %s, %s, %d\nv_and_b32 v14, 15, %s\nv_lshlrev_b32 v14, 3, v14' % (s(sA), s(sA), s(sA), s(sA), STC, L))
        I('buffer_load_dwordx2 v[4:5], v14, %s, %s offen sc1' % (s(rWS, 4), s(sA)))
        I('s_lshl_b32 %s, %s, 3\ns_add_u32 %s, %s, %s\ns_mul_i32 %s, %s, 10240\ns_add_u32 %s, %s, %d' % (
            s(sB), s(sB), s(sB), s(sB), s(sCT), s(sB), s(sB), s(sYOFF), s(sB), YP))
        I('s_lshl_b32 %s, %s, 7\ns_add_u32 %s, %s, %d' % (s(sB), s(sX), s(sB), s(sB), FY))
        I('s_lshl_b32 %s, %s, 7\ns_add_u32 %s, %s, %d' % (s(sD), s(sCT), s(sD), s(sD), FY))
        e.wait_tag('y', and_lg=0)
        I('s_barrier')
        self.signal_wave0([s(sB)], 6)

        def wfrag(st, n):
            fi = 5 * st + n
            return a(4 * fi, 4) if fi < 64 else v(WX + 4 * (fi - 64), 4)

        def tile(t, n):
            return OWN + 4 * n if t == 3 else ACC + 4 * (5 * t + n)

        def mfma(st, t, n):
            c = v(tile(t, n), 4)
            return 'v_mfma_f32_16x16x32_bf16 %s, %s, %s, %s' % (c, wfrag(st, n), v(HR + 16 * (st % NR) + 4 * t, 4), '0' if st == 0 and t < 3 else c)

        TAIL = 3
        pY, cY = self.o.get('pfy', 8), 14 - TAIL
        for st in range(14 - TAIL):
            mf = [mfma(st, t, n) for t in range(4) for n in range(5)]
            mem = hload(st + PRE) if st + PRE < 14 else []
            fill = []
            if st == 3:
                fill += ['v_mul_f32 v4, v4, v5'] + ['v_fma_f32 %s, %s, v5, -v4' % (v(XN + i), v(XN + i)) for i in range(20)]
            if st == 4:
                fill += ['v_lshlrev_b32 v6, 4, v0', 's_cmp_ge_u32 %s, 2\ns_cselect_b32 %s, %d, 8192' % (s(sW), s(sA), OOB),
                         'v_add_u32 v7, %s, v6' % s(sA),
                         'v_lshrrev_b32 v2, 3, v0', 'v_mul_u32_u24 v2, 144, v2', 'v_and_b32 v3, 7, v0', 'v_lshl_add_u32 v2, v3, 4, v2',
                         'v_lshrrev_b32 v15, 2, %s' % L, 'v_mul_u32_u24 v15, 144, v15', 'v_and_b32 v3, 3, %s' % L,
                         'v_lshl_add_u32 v15, v3, 3, v15', 's_lshl_b32 %s, %s, 5' % (s(sA), s(sW)), 'v_add_u32 v15, %s, v15' % s(sA)]
            if st == 5:
                for t, d in enumerate((3, 4, 5)):
                    fill += ['s_add_u32 %s, %s, %d' % (s(sA), s(sW), t + 1), 's_and_b32 %s, %s, 3' % (s(sA), s(sA)),
                             's_mul_i32 %s, %s, 15360' % (s(sA), s(sA)), 's_add_u32 %s, %s, %d' % (s(sA), s(sA), RED + 5120 * t),
                             'v_add_u32 %s, %s, %s' % (v(d), s(sA), v(vL16))]
                fill += ['s_mul_i32 %s, %s, 15360' % (s(sA), s(sW)), 's_add_u32 %s, %s, %d' % (s(sA), s(sA), RED),
                         'v_add_u32 v14, %s, %s' % (s(sA), v(vL16))]
            if st == pY:
                fill.append(lambda: self.poll_issue(vP, s(sD)))
            self.run(self.weave(mf, (mem, 1, 5), (fill, 0, 19.0 / max(len(fill), 1))))
            if st % 2 == 0:
                self.stamp(40 + st // 2)
        YR = HR + 16 * ((14 - TAIL - 1) % NR)
        self.poll_check(vP, s(sD), 32)
        self.stamp(11)
        I('s_add_u32 %s, %s, 4096' % (s(sA), s(sYOFF)))
        pend = ['buffer_load_dwordx4 %s, v6, %s, %s offen sc1' % (v(YR, 4), s(rWS, 4), s(sYOFF)),
                'buffer_load_dwordx4 %s, v6, %s, %s offen sc1' % (v(YR + 4, 4), s(rWS, 4), s(sA)),
                'buffer_load_dwordx4 %s, v7, %s, %s offen sc1' % (v(YR + 8, 4), s(rWS, 4), s(sYOFF))]
        for t in range(4):
            mf = [mfma(st, t, n) for n in range(5) for st in range(14 - TAIL, 14)]
            self.run(self.weave(mf, (pend, 0 if t == 0 else 2, 2 if t == 0 else 3)))
            pend = ['ds_write_b128 %s, %s offset:%d' % (v(3 + t), v(tile(t, n), 4), 1024 * n) for n in range(5)] if t < 3 else []
        for i in range(3):
            I('ds_write_b128 v2, %s offset:%d' % (v(YR + 4 * i, 4), YB + 32 * 144 * i))
        e.wait_lg(0)
        I('s_barrier')
        self.stamp(12)
        P, YT, OUT = HR, 16, 28
        for n in range(5):
            I('ds_read_b64_tr_b16 %s, v15 offset:%d' % (v(YT + 2 * n, 2), YB + 16 * 144 * n))
            for t in range(3):
                I('ds_read_b128 %s, v14 offset:%d' % (v(P + 12 * n + 4 * t, 4), 5120 * t + 1024 * n))
        for n in range(5):
            o = OWN + 4 * n
            for h in range(2):
                y = YT + 2 * n + h
                I('v_lshlrev_b32 %s, 16, %s\nv_and_b32 %s, 0xffff0000, %s' % (v(40 + 2 * h), v(y), v(41 + 2 * h), v(y)))
            for h in range(2):
                I('v_pk_fma_f32 %s, %s, %s, %s' % (v(o + 2 * h, 2), v(XN + 4 * n + 2 * h, 2), v(40 + 2 * h, 2), v(o + 2 * h, 2)))
            for h in range(2):
                p = P + 12 * n + 2 * h
                I('v_pk_add_f32 %s, %s, %s' % (v(p, 2), v(p, 2), v(p + 4, 2)))
                I('v_pk_add_f32 %s, %s, %s' % (v(o + 2 * h, 2), v(o + 2 * h, 2), v(p + 8, 2)))
            for h in range(2):
                I('v_pk_add_f32 %s, %s, %s' % (v(o + 2 * h, 2), v(o + 2 * h, 2), v(P + 12 * n + 2 * h, 2)))
            for h in range(2):
                I('v_cvt_pk_bf16_f32 %s, %s, %s' % (v(OUT + 2 * n + h), v(o + 2 * h), v(o + 2 * h + 1)))
            I('ds_write_b64 v13, %s offset:%d' % (v(OUT + 2 * n, 2), 32 * n))
        I('v_add_u32 v6, %s, %s' % (s(sXL), v(vL16)))
        for q in range(4):
            I('ds_read_b128 %s, v6 offset:%d' % (v(44 + 4 * q, 4), 1088 * q))
        for q in range(4):
            I('s_add_u32 %s, %s, %d' % (s(sB), s(sT1), (256 * (q & 1) + (q >> 1)) * 1280))
            I('buffer_store_dwordx4 %s, v12, %s, %s offen' % (v(44 + 4 * q, 4), s(rOUT, 4), s(sB)))
        self.stamp(13)

    def experiments_head(self):
        I = self.I
        for i in range(self.o.get('x_code', 0) * 128):
            I('v_add3_u32 v%d, v0, v0, v0' % (100 + i % 4))
        n = self.o.get('x_lat', 0)
        if n:
            I('s_mul_i32 %s, s2, 10240\nv_mov_b32 v100, %s' % (s(sT0), s(sT0)))
            for i in range(n):
                I('global_load_dword v101, v100, s[20:21]\nv_and_b32 v101, 0, v101\nv_add3_u32 v100, v100, v101, 64\nv_add_u32 v100, 960, v100')

    def experiments_tail(self):
        I = self.I
        if 'x_pa' in self.o:
            r = self.e.raw
            r('    s_cmp_lg_u32 s2, %d\n    s_cbranch_scc1 L_end\n    s_waitcnt vmcnt(0) lgkmcnt(0)' % self.o.get('x_wg', 0))
            if self.o.get('x_skew'):
                r('    s_load_dword s30, s[34:35], 0x3000 glc\n    s_waitcnt lgkmcnt(0)\n    s_sub_u32 s30, s0, s30\n    s_mov_b32 s0, 0')
                r('    s_max_i32 s30, s30, 0')
            r('    s_sub_u32 s6, s30, s0\n    s_min_u32 s6, s6, 5000\n    s_mul_i32 s6, s6, %d' % self.o.get('x_k', 1))
            r('    s_memrealtime s[0:1]\n    s_waitcnt lgkmcnt(0)')
            r('L_xs:\n    s_memrealtime s[30:31]\n    s_waitcnt lgkmcnt(0)\n    s_sub_u32 s7, s30, s0\n    s_cmp_lt_u32 s7, s6\n    s_cbranch_scc1 L_xs')
        kind, n = self.o.get('x_tail', 0), self.o.get('x_n', 8)
        if kind:
            self.e.wait_all()
            I('s_load_dwordx2 s[20:21], s[0:1], 48')
            I('s_mov_b32 %s, 0x10000000' % s(rWS + 2))
            self.e.wait_lg(0)
            if kind == 1:
                I('s_mul_i32 %s, s2, 10240\nv_mov_b32 v100, %s' % (s(sT0), s(sT0)))
                for i in range(n):
                    I('global_load_dword v101, v100, s[20:21]\nv_and_b32 v101, 0, v101\nv_add3_u32 v100, v100, v101, 64\nv_add_u32 v100, 576, v100')
            else:
                base = {2: 0x2000000, 3: 0x2000000, 4: 0x2000000, 5: 0xF000000, 6: 0x2000000, 7: 0xF000000}[kind]
                step = {2: 0x400000, 3: 0x40000, 4: 0x40000, 5: 0x40000, 6: 0x40000, 7: 0x40000}[kind]
                I('s_lshl_b32 %s, s2, 10\ns_add_u32 %s, %s, %d\nv_lshl_add_u32 v100, v0, 2, %s' % (s(sT0), s(sT0), s(sT0), base, s(sT0)))
                for i in range(n):
                    if kind in (2, 3, 7):
                        I('buffer_load_dword v101, v100, %s, 0 offen' % s(rWS, 4))
                    elif kind in (4, 5):
                        I('buffer_store_dword v0, v100, %s, 0 offen sc1' % s(rWS, 4))
                    else:
                        I('buffer_store_dword v0, v100, %s, 0 offen' % s(rWS, 4))
                    self.e.wait_vm(0)
                    I('v_add_u32 v100, %d, v100' % step)
            self.stamp(14)
        n = self.o.get('x_alu', 0)
        if n:
            self.I('s_mov_b32 %s, 0' % s(sT0))
            self.e.label('L_xalu')
            for i in range(16):
                self.I('v_add_u32 v%d, v0, v0' % (100 + i % 4))
            self.I('s_add_u32 %s, %s, 1\ns_cmp_lt_u32 %s, %d\ns_cbranch_scc1 L_xalu' % (s(sT0), s(sT0), s(sT0), n))
            self.stamp(14)

    def build(self):
        e = self.e
        k = NAME + '_kernel'
        if self.o.get('x_list'):
            if self.o['x_list'] == 2:
                e.raw('; @launch kernel=nop_kernel grid=(256,1,1) block=(256,1,1) lds=0')
            e.raw('; @launch kernel=%s grid=(256,1,1) block=(256,1,1) lds=%d' % (k, LDS_BYTES))
            if self.o['x_list'] == 1:
                e.raw('; @launch kernel=nop_kernel grid=(256,1,1) block=(256,1,1) lds=0')
        else:
            e.raw('; @launch grid=(256,1,1) block=(256,1,1) lds=%d' % LDS_BYTES)
        e.raw('.amdgcn_target "amdgcn-amd-amdhsa--gfx950"')
        e.raw('.text\n.globl %s\n.p2align 8\n.type %s,@function\n%s:' % (k, k, k))
        if self.o.get('x_first'):
            e.raw('    s_memrealtime s[100:101]')
        self.entry()
        if self.o.get('x_first'):
            e.raw('    s_mov_b64 s[0:1], s[100:101]')
        self.experiments_head()
        if self.o['stamps']:
            e.raw('    v_mov_b32 v254, 0')
        self.stamp(60, cyc=True)
        if 'x_pa' in self.o:
            self.srd(rOUT, 30, 2621440)
            self.srd = (lambda real: lambda r, p, n: None if r == rOUT else real(r, p, n))(self.srd)
        self.stamp(0)
        if self.o.get('x_skew'):
            e.raw('    s_cmp_lg_u32 s2, %d\n    s_cbranch_scc1 L_xk\n    s_waitcnt lgkmcnt(0)\n    v_mov_b32 v6, s0\n    v_mov_b32 v7, 0x3000' % self.o.get('x_ref', 0))
            e.raw('    buffer_store_dword v6, v7, s[60:63], 0 offen sc1\nL_xk:')
        self.stamp_sync()
        self.I('s_cmp_eq_u32 %s, 7\ns_cbranch_scc1 L_roleS' % s(sCC))
        hist, vm0 = list(e.hist), list(e.vm)
        self.role_g()
        self.conv()
        self.gemm2()
        self.experiments_tail()
        self.stamp_flush()
        e.label('L_end')
        e.raw('    s_endpgm')
        e.label('L_roleS')
        e.written = {('v', i) for i in (0, 1, 2, 4, 5, 252, 255)}
        e.forget()
        e.hist, e.vm = hist, vm0
        self.role_s()
        e.label('L_last')
        e.raw('    s_endpgm')
        if self.o.get('x_list'):
            e.raw('.globl nop_kernel\n.p2align 8\n.type nop_kernel,@function\nnop_kernel:\n    s_endpgm')
        e.raw('''.section .rodata,"a"
.p2align 6
.amdhsa_kernel %s
  .amdhsa_next_free_vgpr 512
  .amdhsa_next_free_sgpr 102
  .amdhsa_accum_offset 256
  .amdhsa_group_segment_fixed_size 0
  .amdhsa_kernarg_size 112
  .amdhsa_user_sgpr_count 2
  .amdhsa_user_sgpr_kernarg_segment_ptr 1
  .amdhsa_system_sgpr_workgroup_id_x 1
.end_amdhsa_kernel''' % k)
        if self.o.get('x_list'):
            e.raw('''.p2align 6
.amdhsa_kernel nop_kernel
  .amdhsa_next_free_vgpr 8
  .amdhsa_next_free_sgpr 16
  .amdhsa_accum_offset 8
  .amdhsa_group_segment_fixed_size 0
  .amdhsa_kernarg_size 112
  .amdhsa_user_sgpr_count 2
  .amdhsa_user_sgpr_kernarg_segment_ptr 1
  .amdhsa_system_sgpr_workgroup_id_x 1
.end_amdhsa_kernel''')
        return e.text()


if __name__ == '__main__':
    out = sys.argv[1]
    opt = dict(OPT)
    for kv in sys.argv[2:]:
        key, val = kv.split('=')
        opt[key] = int(val)
    g = Gen(opt)
    open(out, 'w').write(g.build())
    print('written', out, 'nop states', g.e.nops)
    for w in g.e.warn:
        print('WARN', w)
```
